```python
import torch

def _softmax(x, axis=-1):
    return torch.softmax(x, dim=axis)

def _gelu(x):
    return torch.nn.functional.gelu(x, approximate='tanh')

def _silu(x):
    return torch.nn.functional.silu(x)

def _sigmoid(x):
    return torch.sigmoid(x)

def _layernorm(x, axis=-1, eps=1e-05):
    m = x.mean(dim=axis, keepdim=True)
    v = x.var(dim=axis, keepdim=True, unbiased=False)
    return (x - m) / torch.sqrt(v + eps)

def _scatter_add(tgt, idx, src, axis=0):
    return tgt.clone().index_add_(axis, idx, src)

def _segment_sum(src, seg, n):
    out = torch.zeros((n,) + src.shape[1:], dtype=src.dtype)
    return out.index_add_(0, seg, src)

def _pad(x, pw):
    flat = tuple((v for pair in reversed(pw) for v in pair))
    return torch.nn.functional.pad(x, flat)
kernel_name = 'adaLN_cond__grouped_kv_mqa__geglu_ffn__prompt'

def setup_inputs():

    _w = lambda a: (lambda t: t.to(torch.bfloat16) if t.is_floating_point() else t)(torch.as_tensor(a))

    def _A_setup():
        B, S, D, H = (1, 2048, 512, 32)
        Dh = D // H
        return {'x': _w((lambda *s: torch.randn(*s, dtype=torch.bfloat16) * 0.05)(B, S, D)), 'wq': _w((lambda *s: torch.randn(*s, dtype=torch.bfloat16) * 0.1)(D, H * Dh)), 'wk': _w((lambda *s: torch.randn(*s, dtype=torch.bfloat16) * 0.1)(D, Dh)), 'wv': _w((lambda *s: torch.randn(*s, dtype=torch.bfloat16) * 0.05)(D, Dh)), 'wo': _w((lambda *s: torch.randn(*s, dtype=torch.bfloat16) * 0.05)(H * Dh, D))}
    _A_in = _A_setup()

    def _B_setup():
        B, S, D, F = (1, 2048, 512, 1792)
        return {'x': _w((lambda *s: torch.randn(*s, dtype=torch.bfloat16) * 0.05)(B, S, D)), 'w_gate': _w((lambda *s: torch.randn(*s, dtype=torch.bfloat16) * 0.05)(D, F)), 'w_up': _w((lambda *s: torch.randn(*s, dtype=torch.bfloat16) * 0.05)(D, F)), 'w_down': _w((lambda *s: torch.randn(*s, dtype=torch.bfloat16) * 0.05)(F, D))}
    _B_in = _B_setup()
    return {'A_x': _A_in['x'], 'A_wq': _A_in['wq'], 'A_wk': _A_in['wk'], 'A_wv': _A_in['wv'], 'A_wo': _A_in['wo'], 'B_x': _B_in['x'], 'B_w_gate': _B_in['w_gate'], 'B_w_up': _B_in['w_up'], 'B_w_down': _B_in['w_down'], 'c': _w((lambda *s: torch.randn(*s, dtype=torch.bfloat16) * 0.1)(1, 512) * 8.0), 'w_mod': _w((lambda *s: torch.randn(*s, dtype=torch.bfloat16) * 0.1)(512, 6 * 512) * 512 ** (-0.5) * 8.0)}

def reference(A_x, A_wq, A_wk, A_wv, A_wo, B_x, B_w_gate, B_w_up, B_w_down, c, w_mod):

    def _A_ref(x, wq, wk, wv, wo):
        B, S, D = x.shape
        H = 32
        Dh = D // H
        q = (lambda x, *d: x.permute(*d))((x @ wq).reshape(B, S, H, Dh), 0, 2, 1, 3)
        k = x @ wk
        v = x @ wv
        scores = torch.einsum('bhqd,bkd->bhqk', q, k) * Dh ** (-0.5)
        p = _softmax(scores, axis=-1)
        o = torch.einsum('bhqk,bkd->bhqd', p, v)
        return (lambda x, *d: x.permute(*d))(o, 0, 2, 1, 3).reshape(B, S, H * Dh) @ wo

    def _B_ref(x, w_gate, w_up, w_down):
        return _gelu(x @ w_gate) * (x @ w_up) @ w_down
    x = A_x
    mod = (_silu(c) @ w_mod).reshape(c.shape[0], 6, 1, -1)
    sa, ca, ga, sb, cb, gb = (mod[:, 0].clone(), mod[:, 1].clone(), mod[:, 2].clone(), mod[:, 3].clone(), mod[:, 4].clone(), mod[:, 5].clone())
    h = _layernorm(x, axis=-1) * (1 + ca) + sa
    x = x + ga * _A_ref(h, A_wq, A_wk, A_wv, A_wo)
    h = _layernorm(x, axis=-1) * (1 + cb) + sb
    x = x + gb * _B_ref(h, B_w_gate, B_w_up, B_w_down)
    return x
```

```python
import re

REG_RE = re.compile(r'^(-|abs\(|-abs\(|\|)?([vsa])(\d+|\[(\d+):(\d+)\])\)?\|?$')

def regs_of(op):
    op = op.strip()
    if op in ('vcc', 'vcc_lo', 'vcc_hi'): return {('vcc', 0)}
    if op in ('exec', 'exec_lo', 'exec_hi'): return {('exec', 0)}
    if op == 'm0': return {('m0', 0)}
    m = REG_RE.match(op)
    if not m: return set()
    k = m.group(2)
    if m.group(4) is not None:
        return {(k, i) for i in range(int(m.group(4)), int(m.group(5)) + 1)}
    return {(k, int(m.group(3)))}

TRANS = ('v_exp_f32', 'v_log_f32', 'v_rcp_f32', 'v_rsq_f32', 'v_sqrt_f32', 'v_sin_f32', 'v_cos_f32', 'v_rcp_iflag_f32')

class Ins:
    def __init__(self, text):
        self.text = text
        t = text.split(';')[0].strip()
        self.label = t.endswith(':')
        self.directive = t.startswith('.')
        self.op = t.split()[0] if t else ''
        rest = t[len(self.op):].strip()
        ops, cur, depth = [], '', 0
        for ch in rest:
            if ch in '[(': depth += 1
            if ch in '])': depth -= 1
            if ch == ',' and depth == 0:
                ops.append(cur.strip()); cur = ''
            else: cur += ch
        if cur.strip(): ops.append(cur.strip())
        self.mods = ''
        if ops:
            parts = ops[-1].split(None, 1)
            ops[-1] = parts[0]
            if len(parts) > 1: self.mods = parts[1]
        self.ops = ops
        self.classify()

    def classify(self):
        op, ops = self.op, self.ops
        self.w, self.r = set(), set()
        self.kind = 'other'
        self.srcc = set(); self.ab = set(); self.passes = 0
        self.store_data = set()
        R = lambda i: regs_of(ops[i]) if i < len(ops) else set()
        if self.label or self.directive or not op:
            self.kind = 'none'; return
        if op.startswith('v_mfma'):
            self.kind = 'mfma'
            self.w = R(0); self.ab = R(1) | R(2); self.srcc = R(3); self.r = self.ab | self.srcc
            self.passes = 8 if '32x32' in op else 4
        elif op.startswith('v_'):
            self.kind = 'valu'
            base = op.replace('_e32', '').replace('_e64', '').replace('_dpp', '').replace('_sdwa', '')
            self.base = base
            self.dpp = op.endswith('_dpp') or 'row_' in self.mods or 'quad_perm' in self.mods or 'wave_' in self.mods
            self.trans = base in TRANS
            if base.startswith('v_cmp'):
                self.w = R(0); self.r = R(1) | R(2)
                if base.startswith('v_cmpx'): self.w |= {('exec', 0)}
            elif base in ('v_add_co_u32', 'v_sub_co_u32', 'v_subrev_co_u32'):
                self.w = R(0) | R(1); self.r = R(2) | R(3)
            elif base in ('v_addc_co_u32', 'v_subb_co_u32'):
                self.w = R(0) | R(1); self.r = R(2) | R(3) | R(4)
            elif base.startswith('v_permlane') or base == 'v_swap_b32':
                self.w = R(0) | R(1); self.r = R(0) | R(1)
            else:
                self.w = R(0)
                for i in range(1, len(ops)): self.r |= R(i)
                if base in ('v_fmac_f32', 'v_pk_fmac_f16', 'v_dot2c_f32_bf16', 'v_writelane_b32') or self.dpp or '_sdwa' in op:
                    self.r |= R(0)
        elif op.startswith('ds_'):
            self.kind = 'ds'
            if op.startswith('ds_read') or '_rtn_' in op or op.startswith('ds_bpermute') or op.startswith('ds_permute') or op.startswith('ds_swizzle'):
                self.w = R(0)
                for i in range(1, len(ops)): self.r |= R(i)
            else:
                for i in range(len(ops)): self.r |= R(i)
        elif op.startswith('buffer_') or op.startswith('global_') or op.startswith('flat_'):
            self.kind = 'vmem'
            lds = (' lds' in ' ' + self.mods) or '_lds_' in op
            self.ldsdma = lds
            if 'load' in op and not lds:
                self.w = R(0)
                for i in range(1, len(ops)): self.r |= R(i)
            else:
                for i in range(len(ops)): self.r |= R(i)
                if lds: self.r |= {('m0', 0)}
                if 'store' in op and ('x4' in op or 'x3' in op):
                    self.store_data = R(0) if op.startswith('buffer_') else R(1)
                if 'atomic' in op and 'sc0' in self.mods:
                    self.w = R(0)
        elif op.startswith('s_'):
            self.kind = 'salu'
            if op in ('s_nop', 's_waitcnt', 's_barrier', 's_endpgm', 's_branch', 's_setprio', 's_sleep') or op.startswith('s_cbranch'):
                pass
            elif op.startswith('s_cmp'):
                for i in range(len(ops)): self.r |= R(i)
            elif op.startswith('s_load') or op.startswith('s_buffer_load') or op.startswith('s_mem'):
                self.kind = 'smem'
                self.w = R(0)
                for i in range(1, len(ops)): self.r |= R(i)
            else:
                self.w = R(0)
                for i in range(1, len(ops)): self.r |= R(i)
                if 'saveexec' in op: self.w |= {('exec', 0)}
    def states(self):
        if self.kind == 'none': return 0
        if self.op == 's_nop': return int(self.ops[0], 0) + 1
        return 1

def need(p, c):
    n = 0
    isv = lambda S: {x for x in S if x[0] in 'va'}
    iss = lambda S: {x for x in S if x[0] in ('s', 'vcc')}
    if p.kind == 'valu':
        wv, ws = isv(p.w), iss(p.w)
        if c.kind == 'valu':
            if c.base in ('v_readlane_b32', 'v_readfirstlane_b32') and (wv & c.r): n = max(n, 1)
            if c.base in ('v_readlane_b32', 'v_writelane_b32') and len(c.ops) > 2 and (ws & regs_of(c.ops[2])): n = max(n, 4)
            if c.dpp and (wv & c.r): n = max(n, 2)
            if c.base.startswith('v_permlane') and (wv & c.r): n = max(n, 2)
            if p.trans and (wv & (c.r)) : n = max(n, 1)
            if ws & c.r: n = max(n, 2)
            if ('exec', 0) in p.w: n = max(n, 5)
            if ('_sdwa' in p.op or 'op_sel' in p.mods) and (wv & (c.r | c.w)): n = max(n, 1)
        if c.kind == 'mfma':
            if wv & c.r: n = max(n, 2)
            if ('exec', 0) in p.w: n = max(n, 4)
        if c.kind == 'vmem' and (ws & c.r): n = max(n, 5)
        if c.kind in ('salu', 'smem') and (ws & c.r): n = max(n, 1)
        if p.trans and c.kind in ('vmem', 'ds') and (wv & c.r): n = max(n, 1)
    if p.kind == 'mfma':
        big = 12 if p.passes == 8 else 8
        if c.kind == 'mfma':
            if p.w & c.ab: n = max(n, big)
            elif p.w & c.srcc:
                if not (p.w == c.srcc and p.passes == c.passes): n = max(n, big - 2)
            elif p.w & c.w: n = max(n, 0)
        elif c.kind in ('valu', 'vmem', 'ds'):
            if p.w & (c.r | c.w): n = max(n, big)
            if c.kind == 'valu' and (p.srcc & c.w): n = max(n, 7 if p.passes == 8 else 3)
    if p.kind == 'vmem' and p.store_data:
        if (p.store_data & c.w): n = max(n, 2)
    if p.kind == 'salu' and ('m0', 0) in p.w:
        if c.kind == 'vmem' and getattr(c, 'ldsdma', False): n = max(n, 1)
    return n

class Asm:
    def __init__(self):
        self.lines = []
    def __call__(self, text):
        for ln in text.strip('\n').split('\n'):
            ln = ln.strip()
            if ln: self.lines.append(ln)
    def fix(self, verbose=False):
        out = []
        for ln in self.lines:
            c = Ins(ln)
            if c.kind != 'none':
                dist = 0; req = 0
                for p in reversed(out):
                    if dist >= 20: break
                    if p.kind != 'none':
                        k = need(p, c) - dist
                        req = max(req, k)
                        dist += p.states()
                if req > 0:
                    if verbose: print('nop', req, 'before', ln)
                    while req > 0:
                        k = min(req, 16)
                        out.append(Ins(f's_nop {k-1}')); req -= k
            out.append(c)
        self.ins = out
        self.check_branches()
        return out
    def check_branches(self):
        ins = self.ins
        labels = {i.text.split(':')[0].strip(): n for n, i in enumerate(ins) if i.label}
        for n, i in enumerate(ins):
            if i.op.startswith('s_cbranch') or i.op == 's_branch':
                tgt = labels.get(i.ops[0])
                if tgt is None: continue
                pre = [x for x in ins[max(0, n - 24):n + 1] if x.kind != 'none']
                post = [x for x in ins[tgt:tgt + 24] if x.kind != 'none']
                for ci, c in enumerate(post):
                    d0 = sum(x.states() for x in post[:ci])
                    dist = d0
                    for p in reversed(pre):
                        if dist >= 20: break
                        if need(p, c) > dist:
                            raise RuntimeError(f'hazard across branch {i.text}: {p.text} -> {c.text} dist {dist} need {need(p,c)}')
                        dist += p.states()
                    if c.op == 's_branch' or c.op == 's_endpgm': break
    def text(self):
        return '\n'.join((i.text if (i.label or i.directive) else '    ' + i.text) for i in self.ins) + '\n'
    def max_regs(self):
        mv = ms = ma = -1
        for i in self.ins:
            for k, n in (i.w | i.r):
                if k == 'v': mv = max(mv, n)
                if k == 's': ms = max(ms, n)
                if k == 'a': ma = max(ma, n)
        return mv, ms, ma
```

```python
from asmlib import Asm
import struct
NAME = "adaLN_cond__grouped_kv_mqa__geglu_ffn__prompt"
WS_MODP  = 0x000000
WS_GB    = 0x00C000
WS_STAT  = 0x010000
WS_WKVF  = 0x018000
WS_KVF   = 0x020000
WS_WQF   = 0x080000
WS_WOF   = 0x100000
WS_Q     = 0x200000
WS_H2F   = 0x400000
WS_WGUF  = 0x600000
WS_WDF   = 0x980000
WS_ACTF  = 0xC00000
WS_END   = 0x1300000
def f32(x): return '0x%08x' % struct.unpack('<I', struct.pack('<f', x))[0]
LOG2E = 1.4426950408889634

def dpp_reduce(a, regs):
    for ctl in ('row_shr:1 row_mask:0xf bank_mask:0xf', 'row_shr:2 row_mask:0xf bank_mask:0xf',
                'row_shr:4 row_mask:0xf bank_mask:0xf', 'row_shr:8 row_mask:0xf bank_mask:0xf',
                'row_bcast:15 row_mask:0xa bank_mask:0xf', 'row_bcast:31 row_mask:0xc bank_mask:0xf'):
        for r in regs:
            a(f'v_add_f32_dpp v{r}, v{r}, v{r} {ctl}')

def silu_bf16(a, dst, src, tmp):
    a(f'v_mul_f32 v{tmp}, {f32(-LOG2E)}, v{src}')
    a(f'v_exp_f32 v{tmp}, v{tmp}')
    a(f'v_add_f32 v{tmp}, 1.0, v{tmp}')
    a(f'v_rcp_f32 v{tmp}, v{tmp}')
    a(f'v_mul_f32 v{dst}, v{src}, v{tmp}')
    a(f'v_cvt_pk_bf16_f32 v{dst}, v{dst}, v{dst}')
    a(f'v_lshlrev_b32 v{dst}, 16, v{dst}')

def round_bf16(a, r):
    a(f'v_cvt_pk_bf16_f32 v{r}, v{r}, v{r}')
    a(f'v_lshlrev_b32 v{r}, 16, v{r}')

def unpack(a, dst, src, n):
    for i in range(n):
        a(f'v_lshlrev_b32 v{dst+2*i}, 16, v{src+i}')
        a(f'v_and_b32 v{dst+2*i+1}, 0xffff0000, v{src+i}')

def pack8(a, dst, src):
    for i in range(4):
        a(f'v_lshl_or_b32 v{dst+i}, v{src+2*i+1}, 16, v{src+2*i}')

def relay_load(a, dst, voff, sbase, stride, n=8):
    for jj in range(n):
        off = jj*stride - (4096 if stride == 1024 else 0)
        a(f'global_load_dwordx2 v[{dst+2*jj}:{dst+2*jj+1}], v{voff}, s[{sbase}:{sbase+1}] offset:{off}')

def relay_perm(a, dst, src, slo, shi):
    for c in range(4):
        for i in range(4):
            r0 = src + 2*(2*i) + (c >> 1); r1 = src + 2*(2*i+1) + (c >> 1)
            a(f'v_perm_b32 v{dst+4*c+i}, v{r1}, v{r0}, s{shi if c & 1 else slo}')

def srd(a, d, base, size):
    a(f's_mov_b32 s{d}, s{base}')
    a(f's_and_b32 s{d+1}, s{base+1}, 0xffff')
    a(f's_mov_b32 s{d+2}, {size}')
    a(f's_mov_b32 s{d+3}, 0x20000')

class Kernel:
    def __init__(self, name, grid, block, lds):
        self.name, self.grid, self.block, self.lds = name, grid, block, lds
        self.a = Asm()
        self.accum = None
    def emit(self):
        a = self.a
        a.fix()
        mv, ms, ma = a.max_regs()
        acc = (mv + 1 + 3) // 4 * 4
        acc = max(acc, 4)
        nfv = acc + ma + 1 if ma >= 0 else mv + 1
        assert acc <= 256 and nfv <= 512, (self.name, acc, nfv)
        self.nfv = nfv
        code = f'.text\n.globl {self.name}\n.p2align 8\n.type {self.name},@function\n{self.name}:\n' + a.text()
        kd = f'''.section .rodata,"a"
.p2align 6
.amdhsa_kernel {self.name}
  .amdhsa_next_free_vgpr {nfv}
  .amdhsa_next_free_sgpr {max(ms+1, 16)}
  .amdhsa_accum_offset {acc}
  .amdhsa_group_segment_fixed_size 0
  .amdhsa_kernarg_size 112
  .amdhsa_user_sgpr_count 2
  .amdhsa_user_sgpr_kernarg_segment_ptr 1
  .amdhsa_system_sgpr_workgroup_id_x 1
.end_amdhsa_kernel
'''
        return code, kd

def build(kernels, path):
    ref = open(f'cdna_kernels/{NAME}.s.ref').read().split('\n')
    head = [l for l in ref if l.startswith(';') and '@launch' not in l and 'Override launch' not in l and 'grid=ceil' not in l]
    out = '\n'.join(head) + '\n'
    for k in kernels:
        out += f'; @launch kernel={k.name} grid=({k.grid},1,1) block=({k.block},1,1) lds={k.lds}\n'
    out += '.amdgcn_target "amdgcn-amd-amdhsa--gfx950"\n'
    kds = ''
    seen = set()
    for k in kernels:
        if k.name in seen: continue
        seen.add(k.name)
        c, kd = k.emit()
        out += c
        kds += kd
        print(f'{k.name}: vgpr {k.nfv}, instrs {sum(1 for i in k.a.ins if i.kind!="none")}')
    out += kds
    open(path, 'w').write(out)

import os
PROF = os.environ.get('PROF', '') == '1'
WS_PROF = 0x1400000
XCC = os.environ.get('XCC', '') == '1'
def stamp(a, i):
    if PROF: a(f's_memrealtime s[{80+2*i}:{81+2*i}]')
def prof_init(a):
    if PROF:
        for i in range(8): a(f's_mov_b32 s{80+2*i}, 0')
        a('s_memrealtime s[80:81]')
def prof_end(a, kidx, wavereg, wsbase, nwaves=8, wait_stores=True):
    if not PROF: return
    if wait_stores: a('s_waitcnt vmcnt(0)')
    a('s_memrealtime s[94:95]')
    a('s_waitcnt lgkmcnt(0)')
    a('s_mov_b64 exec, 1')
    a(f's_mul_i32 s96, s2, {nwaves}')
    a(f's_add_u32 s96, s96, s{wavereg}')
    a('s_lshl_b32 s96, s96, 5')
    a(f's_add_u32 s96, s96, {WS_PROF + kidx*256*16*32}')
    a('v_mov_b32 v0, s96')
    if XCC:
        a('s_getreg_b32 s90, hwreg(HW_REG_XCC_ID)')
        a('s_getreg_b32 s97, hwreg(HW_REG_HW_ID)')
        a('s_and_b32 s90, s90, 15')
        a('s_lshl_b32 s97, s97, 4')
        a('s_or_b32 s90, s90, s97')
    for i in range(8): a(f'v_mov_b32 v{2+i}, s{80+2*i}')
    a(f'global_store_dwordx4 v0, v[2:5], s[{wsbase}:{wsbase+1}]')
    a(f'global_store_dwordx4 v0, v[6:9], s[{wsbase}:{wsbase+1}] offset:16')
```

```python
from common import *

def k0():
    K = Kernel('prep_kernel', 256, 512, 2048)
    a = K.a
    a('''
s_cmp_ge_u32 s2, 256
s_cbranch_scc1 K0_END2
''')
    prof_init(a)
    a('''
s_load_dwordx8 s[16:23], s[0:1], 0
s_load_dwordx4 s[24:27], s[0:1], 72
s_load_dwordx2 s[28:29], s[0:1], 104
s_load_dwordx2 s[36:37], s[0:1], 32
v_lshrrev_b32 v1, 6, v0
v_and_b32 v2, 63, v0
v_readfirstlane_b32 s3, v1
s_and_b32 s4, s2, 7
s_lshr_b32 s5, s2, 3
s_lshl_b32 s8, s4, 8
s_lshl_b32 s7, s5, 3
s_add_u32 s6, s8, s7
s_add_u32 s6, s6, s3
s_lshl_b32 s7, s6, 10
v_lshl_add_u32 v3, v2, 4, s7
s_cmp_ge_u32 s5, 24
s_cbranch_scc1 K0_HI
''')
    a('''
s_mul_i32 s9, s4, 24
s_add_u32 s9, s9, s5
s_lshr_b32 s10, s9, 2
s_and_b32 s9, s9, 3
s_lshl_b32 s10, s10, 7
s_lshl_b32 s11, s9, 7
v_lshrrev_b32 v4, 3, v0
v_add_u32 v4, s11, v4
v_mul_u32_u24 v5, 6144, v4
v_and_b32 v6, 7, v0
v_lshl_add_u32 v5, v6, 4, v5
v_add_u32 v5, s10, v5
v_add_u32 v7, 0x60000, v5
v_lshlrev_b32 v4, 1, v4
s_waitcnt lgkmcnt(0)
''')
    stamp(a, 1)
    a('''
global_load_dwordx4 v[8:11], v5, s[26:27]
global_load_dwordx4 v[20:23], v7, s[26:27]
global_load_dwordx4 v[16:19], v3, s[16:17]
global_load_ushort v12, v4, s[24:25]
global_load_ushort v13, v4, s[24:25] offset:128
''')
    a('''
v_lshlrev_b32 v7, 5, v6
v_lshrrev_b32 v14, 5, v2
v_lshl_add_u32 v7, v14, 4, v7
v_bfe_u32 v14, v2, 4, 1
v_lshl_add_u32 v7, v14, 3, v7
v_lshl_add_u32 v7, v1, 8, v7
s_waitcnt vmcnt(0)
''')
    stamp(a, 2)
    a('v_lshlrev_b32 v12, 16, v12')
    a('v_lshlrev_b32 v13, 16, v13')
    silu_bf16(a, 24, 12, 14)
    silu_bf16(a, 25, 13, 15)
    unpack(a, 40, 8, 4)
    unpack(a, 48, 20, 4)
    for i in range(8): a(f'v_mul_f32 v{40+i}, v{40+i}, v24')
    for i in range(8): a(f'v_fmac_f32 v{40+i}, v{48+i}, v25')
    for i in range(4): a(f'v_permlane32_swap_b32 v{40+i}, v{44+i}')
    for i in range(4): a(f'v_add_f32 v{40+i}, v{40+i}, v{44+i}')
    for i in range(2): a(f'v_permlane16_swap_b32 v{40+i}, v{42+i}')
    for i in range(2): a(f'v_add_f32 v{40+i}, v{40+i}, v{42+i}')
    for i in range(2): a(f'v_add_f32_dpp v{40+i}, v{40+i}, v{40+i} row_ror:8 row_mask:0xf bank_mask:0xf')
    a('''
ds_write_b64 v7, v[40:41]
s_branch K0_LN
K0_HI:
s_mov_b32 s33, 0x05040100
s_mov_b32 s34, 0x07060302
s_lshl_b32 s12, s4, 3
s_add_u32 s12, s12, s5
s_sub_u32 s12, s12, 24
s_lshl_b32 s13, s12, 1
s_and_b32 s14, s3, 1
s_add_u32 s13, s13, s14
s_cmp_ge_u32 s3, 2
s_cbranch_scc1 K0_NOTWQ
''')
    a('''
s_and_b32 s9, s13, 3
s_lshr_b32 s10, s13, 2
v_and_b32 v4, 31, v2
v_lshrrev_b32 v5, 5, v2
v_lshlrev_b32 v6, 13, v5
v_lshl_add_u32 v6, v4, 3, v6
s_lshl_b32 s11, s10, 14
s_lshl_b32 s15, s9, 8
s_add_u32 s11, s11, s15
s_add_u32 s11, s11, 4096
v_add_u32 v6, s11, v6
v_lshrrev_b32 v7, 3, v4
v_lshlrev_b32 v7, 15, v7
v_lshl_add_u32 v7, v5, 9, v7
v_and_b32 v8, 3, v4
v_lshl_add_u32 v7, v8, 7, v7
v_bfe_u32 v8, v4, 2, 1
v_lshl_add_u32 v7, v8, 6, v7
s_lshl_b32 s11, s9, 17
s_lshl_b32 s15, s10, 10
s_add_u32 s11, s11, s15
''')
    a(f's_add_u32 s11, s11, {WS_WQF}')
    a('''
v_add_u32 v7, s11, v7
s_waitcnt lgkmcnt(0)
s_branch K0_RL1024
K0_NOTWQ:
s_cmp_ge_u32 s3, 4
s_cbranch_scc1 K0_NOTWO
''')
    a('''
s_and_b32 s9, s13, 7
s_lshr_b32 s10, s13, 3
v_and_b32 v8, 15, v2
v_lshrrev_b32 v9, 4, v2
v_lshlrev_b32 v6, 13, v9
v_lshl_add_u32 v6, v8, 3, v6
s_lshl_b32 s11, s10, 15
s_lshl_b32 s15, s9, 7
s_add_u32 s11, s11, s15
s_add_u32 s11, s11, 4096
v_add_u32 v6, s11, v6
v_and_b32 v7, 3, v8
v_lshlrev_b32 v7, 14, v7
v_lshl_add_u32 v7, v9, 8, v7
v_lshrrev_b32 v8, 2, v8
v_lshl_add_u32 v7, v8, 6, v7
s_lshl_b32 s11, s9, 16
s_lshl_b32 s15, s10, 10
s_add_u32 s11, s11, s15
''')
    a(f's_add_u32 s11, s11, {WS_WOF}')
    a('''
v_add_u32 v7, s11, v7
s_waitcnt lgkmcnt(0)
s_mov_b32 s18, s36
s_mov_b32 s19, s37
K0_RL1024:
''')
    relay_load(a, 24, 6, 18, 1024)
    a('''
global_load_dwordx4 v[16:19], v3, s[16:17]
s_branch K0_RELAY
K0_NOTWO:
s_cmp_lg_u32 s3, 4
s_cbranch_scc1 K0_XONLY
s_cmp_ge_u32 s12, 8
s_cbranch_scc1 K0_XONLY
''')
    a('''
s_and_b32 s9, s12, 3
s_lshr_b32 s10, s12, 2
v_and_b32 v4, 3, v2
v_lshrrev_b32 v5, 2, v2
v_lshlrev_b32 v6, 8, v5
v_lshl_add_u32 v6, v4, 3, v6
s_lshl_b32 s11, s9, 12
v_add_u32 v6, s11, v6
v_lshrrev_b32 v8, 1, v4
v_and_b32 v9, 1, v4
v_lshl_add_u32 v8, v9, 1, v8
s_cmp_lg_u32 s10, 0
s_cselect_b64 s[30:31], -1, 0
v_cndmask_b32 v4, v4, v8, s[30:31]
v_lshlrev_b32 v7, 8, v5
v_lshl_add_u32 v7, v4, 6, v7
s_lshl_b32 s15, s10, 14
s_add_u32 s11, s11, s15
''')
    a(f's_add_u32 s11, s11, {WS_WKVF}')
    a('''
v_add_u32 v7, s11, v7
s_waitcnt lgkmcnt(0)
s_cmp_lg_u32 s10, 0
s_cselect_b32 s20, s22, s20
s_cselect_b32 s21, s23, s21
''')
    relay_load(a, 24, 6, 20, 32)
    a('global_load_dwordx4 v[16:19], v3, s[16:17]')
    a('K0_RELAY:')
    a('s_waitcnt vmcnt(0)')
    relay_perm(a, 56, 24, 33, 34)
    for c in range(4):
        a(f'global_store_dwordx4 v7, v[{56+4*c}:{59+4*c}], s[28:29] offset:{16*c}')
    a('''
s_branch K0_LN
K0_XONLY:
s_waitcnt lgkmcnt(0)
global_load_dwordx4 v[16:19], v3, s[16:17]
s_waitcnt vmcnt(0)
K0_LN:
''')
    stamp(a, 3)
    unpack(a, 48, 16, 4)
    a('''
v_add_f32 v44, v48, v49
v_add_f32 v45, v50, v51
v_add_f32 v46, v52, v53
v_add_f32 v47, v54, v55
v_add_f32 v44, v44, v45
v_add_f32 v46, v46, v47
v_add_f32 v44, v44, v46
''')
    a(f'v_mul_f32 v44, {f32(1/512)}, v44')
    a('''
s_cmp_ge_u32 s5, 24
s_cbranch_scc1 K0_LN2
s_waitcnt lgkmcnt(0)
s_barrier
s_cmp_lg_u32 s3, 0
s_cbranch_scc1 K0_LN2
v_lshlrev_b32 v20, 2, v2
''')
    for w in range(8):
        a(f'ds_read_b32 v{24+w}, v20 offset:{256*w}')
    a('''
s_mul_i32 s15, s9, 12288
s_lshl_b32 s10, s10, 1
s_add_u32 s15, s15, s10
v_add_u32 v21, s15, v20
s_waitcnt lgkmcnt(0)
v_add_f32 v24, v24, v25
v_add_f32 v26, v26, v27
v_add_f32 v28, v28, v29
v_add_f32 v30, v30, v31
v_add_f32 v24, v24, v26
v_add_f32 v28, v28, v30
v_add_f32 v24, v24, v28
''')
    a(f'global_store_dword v21, v24, s[28:29] offset:{WS_MODP}')
    a('K0_LN2:')
    dpp_reduce(a, [44])
    a('v_readlane_b32 s14, v44, 63')
    for i in range(8):
        a(f'v_subrev_f32 v{48+i}, s14, v{48+i}')
    a('v_mul_f32 v44, v48, v48')
    a('v_mul_f32 v45, v49, v49')
    for i in range(2, 8):
        a(f'v_fmac_f32 v{44+(i&1)}, v{48+i}, v{48+i}')
    a('v_add_f32 v44, v44, v45')
    a(f'v_mul_f32 v44, {f32(1/512)}, v44')
    dpp_reduce(a, [44])
    a(f'v_add_f32 v44, {f32(1e-5)}, v44')
    a('v_rsq_f32 v44, v44')
    a('s_lshl_b32 s15, s6, 3')
    a(f's_add_u32 s15, s15, {WS_STAT}')
    a('v_mov_b32 v21, s15')
    a('v_mul_f32 v45, s14, v44')
    a('v_sub_f32 v45, 0, v45')
    a('''
s_mov_b32 exec_lo, 0
s_mov_b32 exec_hi, 0x80000000
global_store_dwordx2 v21, v[44:45], s[28:29]
''')
    stamp(a, 6)
    prof_end(a, 0, 3, 28)
    a('K0_END2:')
    a('s_endpgm')
    return K
```

```python
from common import *

QSCALE = 0.25 * LOG2E

def k1():
    LDS_MOD = 32768
    LDS_CNT = LDS_MOD + 4096
    K = Kernel('qkv_kernel', 256, 512, LDS_CNT + 16)
    a = K.a
    a('''
s_cmp_ge_u32 s2, 256
s_cbranch_scc1 K1_END2
''')
    prof_init(a)
    a('''
s_load_dwordx2 s[16:17], s[0:1], 0
s_load_dwordx2 s[28:29], s[0:1], 104
v_lshrrev_b32 v1, 6, v0
v_and_b32 v2, 63, v0
v_readfirstlane_b32 s3, v1
s_and_b32 s4, s2, 7
s_lshr_b32 s5, s2, 3
s_lshr_b32 s6, s5, 2
s_lshl_b32 s7, s4, 3
s_add_u32 s7, s7, s6
s_and_b32 s8, s5, 3
s_lshl_b32 s9, s6, 2
v_lshlrev_b32 v3, 4, v2
s_cmp_lt_u32 s3, 4
s_cbranch_scc1 K1_MODW
''')
    a('v_lshrrev_b32 v7, 5, v2')
    for q in range(4):
        a(f'v_add_u32 v{8+q}, {2*q}, v7')
        a(f'v_xor_b32 v{8+q}, v{8+q}, v2')
        a(f'v_lshlrev_b32 v{8+q}, 4, v{8+q}')
        if q: a(f'v_add_u32 v{8+q}, {1024*q}, v{8+q}')
    a('''
s_lshl_b32 s14, s8, 2
s_add_u32 s14, s14, s3
s_sub_u32 s14, s14, 4
s_lshl_b32 s15, s14, 6
s_lshl_b32 s14, s14, 15
''')
    a(f's_add_u32 s14, s14, {WS_WQF}')
    a('''
v_and_b32 v4, 31, v2
v_lshlrev_b32 v4, 10, v4
v_lshl_add_u32 v4, v7, 5, v4
s_lshl_b32 s10, s7, 15
s_add_u32 s10, s10, s15
''')
    a(f's_add_u32 s10, s10, {WS_Q}')
    a(f's_mov_b32 s11, {f32(QSCALE)}')
    a('s_lshl_b32 s30, s9, 10')
    a('s_waitcnt lgkmcnt(0)')
    a('s_barrier')
    stamp(a, 1)
    srd(a, 20, 28, WS_END)
    PRE = 4
    def wld(n):
        g, q = n >> 2, n & 3
        if q == 0: a('s_add_u32 s31, s14, s30')
        r = 64 + 4*n
        a(f'buffer_load_dwordx4 v[{r}:{r+3}], v3, s[20:23], s31 offen offset:{q*1024}')
        if q == 3 and g < 7:
            a('s_add_u32 s30, s30, 4096')
            a('s_and_b32 s30, s30, 0x7fff')
    for n in range(4*PRE): wld(n)
    stamp(a, 2)
    a('s_barrier')
    stamp(a, 4)
    ACC = 16
    def rd(n):
        r = 32 + 4*(n & 7)
        a(f'ds_read_b128 v[{r}:{r+3}], v{8+(n&3)} offset:{(n>>2)*4096}')
    for n in range(8): rd(n)
    nis = 4*PRE
    for n in range(32):
        for _ in range(2):
            if nis < 32: wld(nis); nis += 1
        issued = min(32, n + 8)
        a(f's_waitcnt vmcnt({nis-n-1}) lgkmcnt({issued-n-1})')
        r = 32 + 4*(n & 7); w = 64 + 4*n
        c = '0' if n == 0 else f'v[{ACC}:{ACC+15}]'
        a(f'v_mfma_f32_32x32x16_bf16 v[{ACC}:{ACC+15}], v[{w}:{w+3}], v[{r}:{r+3}], {c}')
        if n + 8 < 32: rd(n + 8)
    stamp(a, 5)
    for i in range(16):
        a(f'v_mul_f32 v{ACC+i}, s11, v{ACC+i}')
    for i in range(8):
        a(f'v_cvt_pk_bf16_f32 v{32+i}, v{ACC+2*i}, v{ACC+2*i+1}')
    a('buffer_store_dwordx4 v[32:35], v4, s[20:23], s10 offen')
    a('buffer_store_dwordx4 v[36:39], v4, s[20:23], s10 offen offset:16')
    stamp(a, 6)
    prof_end(a, 1, 3, 28)
    a('s_endpgm')

    a('K1_MODW:')
    a(f'v_mov_b32 v13, {LDS_CNT}')
    a('''
v_mov_b32 v14, 0
v_mov_b32 v15, 0
ds_write_b64 v13, v[14:15]
s_lshl_b32 s10, s7, 5
s_lshl_b32 s11, s3, 3
s_add_u32 s10, s10, s11
s_lshl_b32 s11, s10, 10
s_add_u32 s11, s11, 4096
v_add_u32 v4, s11, v3
v_lshlrev_b32 v5, 4, v0
s_lshl_b32 s12, s10, 3
''')
    a(f's_add_u32 s12, s12, {WS_STAT}')
    a('''
v_lshrrev_b32 v6, 1, v2
v_subrev_u32 v6, s9, v6
v_and_b32 v6, 31, v6
v_lshlrev_b32 v6, 10, v6
v_and_b32 v7, 1, v2
v_lshl_add_u32 v6, v7, 9, v6
v_and_b32 v7, 7, v2
v_lshl_add_u32 v6, v7, 4, v6
s_lshl_b32 s13, s3, 7
v_add_u32 v6, s13, v6
''')
    a('s_waitcnt lgkmcnt(0)')
    a('s_barrier')
    stamp(a, 1)
    a('s_load_dwordx16 s[32:47], s[28:29], s12')
    srd(a, 20, 28, WS_END)
    a('s_mov_b32 s31, 12288')
    a(f'buffer_load_dwordx4 v[16:19], v5, s[20:23], 0 offen offset:{WS_MODP}')
    a(f'buffer_load_dwordx4 v[20:23], v5, s[20:23], s31 offen offset:{WS_MODP}')
    a('s_mov_b32 s31, 24576')
    a(f'buffer_load_dwordx4 v[24:27], v5, s[20:23], s31 offen offset:{WS_MODP}')
    a('s_mov_b32 s31, 36864')
    a(f'buffer_load_dwordx4 v[28:31], v5, s[20:23], s31 offen offset:{WS_MODP}')
    for t in range(8):
        a(f'global_load_dwordx4 v[{32+4*t}:{35+4*t}], v4, s[16:17] offset:{t*1024-4096}')
    stamp(a, 2)
    a('s_waitcnt vmcnt(8)')
    for i in range(4):
        a(f'v_add_f32 v{16+i}, v{16+i}, v{20+i}')
        a(f'v_add_f32 v{24+i}, v{24+i}, v{28+i}')
    for i in range(4):
        a(f'v_add_f32 v{16+i}, v{16+i}, v{24+i}')
    a('v_cvt_pk_bf16_f32 v20, v16, v17')
    a('v_cvt_pk_bf16_f32 v21, v18, v19')
    unpack(a, 16, 20, 2)
    a('s_cmp_lt_u32 s3, 2')
    a('s_cbranch_scc1 K1_NOADD')
    for i in range(4): a(f'v_add_f32 v{16+i}, 1.0, v{16+i}')
    a('v_cvt_pk_bf16_f32 v20, v16, v17')
    a('v_cvt_pk_bf16_f32 v21, v18, v19')
    unpack(a, 16, 20, 2)
    a('K1_NOADD:')
    a(f'ds_write_b128 v5, v[16:19] offset:{LDS_MOD}')
    a('''
v_mov_b32 v14, 1
v_lshlrev_b32 v12, 5, v2
s_waitcnt lgkmcnt(0)
s_mov_b64 exec, 1
ds_add_u32 v13, v14
s_mov_b64 exec, -1
K1_SPIN:
ds_read_b32 v15, v13
s_waitcnt lgkmcnt(0)
v_readfirstlane_b32 s31, v15
s_cmp_lt_u32 s31, 4
s_cbranch_scc1 K1_SPIN
''')
    a(f'ds_read_b128 v[16:19], v12 offset:{LDS_MOD}')
    a(f'ds_read_b128 v[20:23], v12 offset:{LDS_MOD+16}')
    a(f'ds_read_b128 v[24:27], v12 offset:{LDS_MOD+2048}')
    a(f'ds_read_b128 v[28:31], v12 offset:{LDS_MOD+2048+16}')
    stamp(a, 3)
    for t in range(8):
        x = 32 + 4*t
        T = 144 + 8*(t & 1)
        a(f's_waitcnt vmcnt({7-t})')
        unpack(a, T, x, 4)
        for i in range(4):
            a(f'v_pk_fma_f32 v[{T+2*i}:{T+2*i+1}], v[{T+2*i}:{T+2*i+1}], s[{32+2*t}:{33+2*t}], s[{32+2*t}:{33+2*t}] op_sel:[0,0,1] op_sel_hi:[1,0,1]')
        if t == 0: a('s_waitcnt lgkmcnt(0)')
        for i in range(4):
            a(f'v_pk_fma_f32 v[{T+2*i}:{T+2*i+1}], v[{T+2*i}:{T+2*i+1}], v[{24+2*i}:{25+2*i}], v[{16+2*i}:{17+2*i}]')
        for i in range(4):
            a(f'v_cvt_pk_bf16_f32 v{x+i}, v{T+2*i}, v{T+2*i+1}')
        if t: a(f'v_xor_b32 v12, {16*t}, v6')
        a(f'ds_write_b128 v{12 if t else 6}, v[{x}:{x+3}]')
    a('s_waitcnt lgkmcnt(0)')
    a('s_barrier')
    stamp(a, 4)
    a('''
s_cmp_lg_u32 s3, 0
s_cbranch_scc1 K1_NOKV2
''')
    a('''
s_and_b32 s12, s8, 1
s_lshl_b32 s14, s12, 14
''')
    a(f's_add_u32 s14, s14, {WS_WKVF}')
    a('s_lshl_b32 s30, s9, 9')
    for g in range(8):
        a('s_add_u32 s31, s14, s30')
        for q in range(2):
            r = 64 + 8*g + 4*q
            a(f'buffer_load_dwordx4 v[{r}:{r+3}], v3, s[20:23], s31 offen offset:{q*1024}')
        if g < 7:
            a('s_add_u32 s30, s30, 2048')
            a('s_and_b32 s30, s30, 0x3fff')
    a('''
s_lshr_b32 s13, s8, 1
s_lshl_b32 s13, s13, 4
v_and_b32 v10, 15, v2
v_add_u32 v10, s13, v10
v_bfe_u32 v11, v2, 4, 1
v_lshrrev_b32 v12, 5, v2
v_lshl_add_u32 v15, v11, 5, v10
v_lshl_add_u32 v14, v12, 1, v11
v_xor_b32 v8, v15, v14
v_lshlrev_b32 v8, 4, v8
v_lshl_add_u32 v8, v12, 10, v8
v_xor_b32 v9, 64, v8
v_add_u32 v9, 2048, v9
''')
    for n in range(8):
        r = 144 + 4*n
        a(f'ds_read_b128 v[{r}:{r+3}], v{8+(n&1)} offset:{(n>>1)*4096}')
    for n in range(8, 16):
        r = 32 + 4*(n-8)
        a(f'ds_read_b128 v[{r}:{r+3}], v{8+(n&1)} offset:{(n>>1)*4096}')
    hreg = lambda n: 144 + 4*n if n < 8 else 32 + 4*(n-8)
    a('''
v_lshrrev_b32 v11, 4, v2
v_and_b32 v12, 1, v11
v_lshrrev_b32 v11, 1, v11
s_lshl_b32 s14, s7, 11
''')
    a(f's_add_u32 s14, s14, {WS_KVF}')
    a('s_cmp_lg_u32 s12, 0')
    a('s_cbranch_scc1 K1_V')
    for n in range(16):
        a(f's_waitcnt vmcnt({15-n}) lgkmcnt({15-n})')
        c = '0' if n == 0 else 'v[16:19]'
        a(f'v_mfma_f32_16x16x32_bf16 v[16:19], v[{64+4*n}:{67+4*n}], v[{hreg(n)}:{hreg(n)+3}], {c}')
    a('''
v_lshlrev_b32 v15, 9, v11
v_lshl_add_u32 v15, v10, 4, v15
v_lshl_add_u32 v15, v12, 3, v15
s_branch K1_KVST
K1_V:
''')
    for n in range(16):
        a(f's_waitcnt vmcnt({15-n}) lgkmcnt({15-n})')
        c = '0' if n == 0 else 'v[16:19]'
        a(f'v_mfma_f32_16x16x32_bf16 v[16:19], v[{hreg(n)}:{hreg(n)+3}], v[{64+4*n}:{67+4*n}], {c}')
    a('''
v_and_b32 v15, 15, v2
v_lshl_add_u32 v15, v12, 4, v15
v_lshlrev_b32 v15, 4, v15
v_lshl_add_u32 v15, v11, 3, v15
s_lshl_b32 s13, s13, 5
s_add_u32 s13, s13, 1024
v_add_u32 v15, s13, v15
K1_KVST:
s_nop 4
v_cvt_pk_bf16_f32 v20, v16, v17
v_cvt_pk_bf16_f32 v21, v18, v19
buffer_store_dwordx2 v[20:21], v15, s[20:23], s14 offen
K1_NOKV2:
''')
    a('K1_END:')
    prof_end(a, 1, 3, 28)
    a('K1_END2:')
    a('s_endpgm')
    return K
```

```python
from common import *

L_ONES = 131072
L_OX   = 147456
L_MODS = L_OX + 8448
L_STAT = L_MODS + 6144
L_END  = L_STAT + 512
Q, C, S0, S1, P, O, KK, VA, VB = 16, 20, 36, 52, 68, 76, 92, 96, 100
XR = 104
WO = 108
NPRE = 36
SKIP = os.environ.get('SKIP', '')
RELFLAGS = os.environ.get('RELFLAGS', 'sc1')
TOUCH = int(os.environ.get('TOUCH', '44'))
REL2 = int(os.environ.get('REL2', '19'))
SPREAD = int(os.environ.get('SPREAD', '0'))
ZERO = int(os.environ.get('ZERO', '1'))
WAITS = int(os.environ.get('WAITS', '3'))
PRIO = int(os.environ.get('PRIO', '1'))
PRIO_PERIOD = int(os.environ.get('PRIO_PERIOD', '8'))
PRIO_HI = int(os.environ.get('PRIO_HI', '6'))

def tile(a, t, side=()):
    side = list(side)
    def sd():
        if side: side.pop(0)()
    b = t & 1
    S = S1 if b else S0; SN = S0 if b else S1
    E = lambda i: a(f'v_exp_f32 v{S+i}, v{S+i}')
    Cv = lambda i: a(f'v_cvt_pk_bf16_f32 v{P+i}, v{S+2*i}, v{S+2*i+1}')
    E(0)
    a(f'v_cvt_pk_bf16_f32 v{P+7}, v{SN+14}, v{SN+15}')
    E(1); E(2); Cv(0)
    a('s_waitcnt lgkmcnt(2)')
    a(f'v_mfma_f32_32x32x16_bf16 v[{O}:{O+15}], v[{VB}:{VB+3}], v[{P+4}:{P+7}], v[{O}:{O+15}]')
    a(f'ds_read_b128 v[{VB}:{VB+3}], v9 offset:{t*2048+512}')
    E(3); E(4); Cv(1); sd(); E(5); E(6); Cv(2)
    a('s_waitcnt lgkmcnt(2)')
    a(f'v_mfma_f32_32x32x16_bf16 v[{SN}:{SN+15}], v[{KK}:{KK+3}], v[{Q}:{Q+3}], v[{C}:{C+15}]')
    a(f'ds_read_b128 v[{KK}:{KK+3}], v8 offset:{(t+2)*2048}')
    E(7); E(8); Cv(3); E(9); E(10)
    a('s_waitcnt lgkmcnt(2)')
    a(f'v_mfma_f32_32x32x16_bf16 v[{O}:{O+15}], v[{VA}:{VA+3}], v[{P}:{P+3}], v[{O}:{O+15}]')
    if t == 7:
        a('v_add_u32 v9, v9, v10')
        a(f'ds_read_b128 v[{VA}:{VA+3}], v9')
        a('v_add_u32 v8, 0x4000, v8')
    else:
        a(f'ds_read_b128 v[{VA}:{VA+3}], v9 offset:{(t+1)*2048}')
    Cv(4); E(11); E(12); Cv(5); sd(); E(13); E(14); Cv(6); E(15)
    while side: sd()

def k2():
    K = Kernel('attn_kernel', 256, 512, L_END)
    a = K.a
    a('''
s_cmp_ge_u32 s2, 256
s_cbranch_scc1 K2_END2
''')
    prof_init(a)
    a('''
s_load_dwordx2 s[30:31], s[0:1], 104
s_load_dwordx2 s[16:17], s[0:1], 0
s_load_dwordx2 s[18:19], s[0:1], 88
s_load_dwordx4 s[24:27], s[0:1], 48
s_load_dwordx2 s[28:29], s[0:1], 64
v_lshrrev_b32 v1, 6, v0
v_and_b32 v2, 63, v0
v_readfirstlane_b32 s3, v1
s_and_b32 s4, s2, 7
s_lshr_b32 s5, s2, 3
s_lshl_b32 s6, s4, 8
s_lshl_b32 s7, s5, 3
s_add_u32 s6, s6, s7
v_lshlrev_b32 v3, 4, v2
v_and_b32 v4, 31, v2
v_lshrrev_b32 v5, 5, v2
''')
    a('''
v_lshlrev_b32 v6, 5, v4
v_lshl_add_u32 v6, v5, 4, v6
s_add_u32 s9, s6, s3
s_lshl_b32 s9, s9, 10
''')
    a(f's_add_u32 s9, s9, {WS_Q}')
    a('''
v_mov_b32 v8, v3
v_lshl_add_u32 v9, v5, 4, v4
v_lshlrev_b32 v9, 4, v9
v_add_u32 v9, 0x400, v9
v_cmp_gt_u32 s[32:33], 16, v4
''')
    a(f'v_mov_b32 v11, {L_ONES+1024}')
    a('v_mov_b32 v12, 0x4000')
    if ZERO:
        a('v_and_b32 v13, 27, v4')
        a('v_cmp_eq_u32 s[34:35], 16, v13')
        a('v_add_u32 v13, 16, v11')
        a('v_cndmask_b32 v13, v13, v11, s[34:35]')
        a('v_cndmask_b32 v9, v13, v9, s[32:33]')
    else:
        a('v_cndmask_b32 v9, v11, v9, s[32:33]')
    a('v_cndmask_b32 v10, 0, v12, s[32:33]')
    a('''
v_lshrrev_b32 v12, 1, v2
v_lshlrev_b32 v12, 11, v12
v_and_b32 v13, 1, v2
v_lshl_add_u32 v12, v13, 9, v12
v_add_u32 v12, v12, v11
''')
    for i in range(4): a(f'v_mov_b32 v{VA+i}, 0x3f803f80')
    a('s_mov_b64 exec, 0xffff')
    a(f'ds_write_b128 v12, v[{VA}:{VA+3}]')
    for i in range(4): a(f'v_mov_b32 v{VB+i}, 0')
    a(f'ds_write_b128 v12, v[{VB}:{VB+3}] offset:16')
    a('s_mov_b64 exec, -1')
    a('''
s_lshl_b32 s10, s3, 10
s_lshl_b32 s11, s5, 12
s_add_u32 s11, s11, s10
s_and_b32 s11, s11, 0x1ffff
s_waitcnt lgkmcnt(0)
''')
    stamp(a, 1)
    srd(a, 20, 30, WS_END)
    a(f'buffer_load_dwordx4 v[{Q}:{Q+3}], v6, s[20:23], s9 offen')
    def dma(i):
        a('s_mov_b32 m0, s10')
        a(f's_add_u32 s12, s11, {WS_KVF}')
        a('buffer_load_dwordx4 v3, s[20:23], s12 offen lds')
        if i < 15:
            a('s_add_u32 s10, s10, 8192')
            a('s_add_u32 s11, s11, 8192')
            a('s_and_b32 s11, s11, 0x1ffff')
    for i in range(3): dma(i)
    for i in range(16): a(f'v_mov_b32 v{O+i}, 0')
    for i in range(4): a(f'v_mov_b32 v{P+4+i}, 0')
    for i in range(4): a(f'v_mov_b32 v{VB+i}, 0')
    a(f'v_mov_b32 v{S1+14}, 0')
    a(f'v_mov_b32 v{S1+15}, 0')
    a('s_waitcnt vmcnt(0)')
    a('s_barrier')
    stamp(a, 2)
    dma(3)
    a(f'ds_read_b128 v[{KK}:{KK+3}], v8')
    a('s_waitcnt lgkmcnt(0)')
    a(f'v_mfma_f32_32x32x16_bf16 v[{S0}:{S0+15}], v[{KK}:{KK+3}], v[{Q}:{Q+3}], 0')
    a(f'v_max3_f32 v12, v{S0}, v{S0+1}, v{S0+2}')
    a(f'v_max3_f32 v13, v{S0+3}, v{S0+4}, v{S0+5}')
    for i in range(6, 16, 4):
        a(f'v_max3_f32 v12, v12, v{S0+i}, v{S0+i+1}')
        if i + 2 < 16: a(f'v_max3_f32 v13, v13, v{S0+i+2}, v{S0+i+3}')
    a('''
v_max_f32 v12, v12, v13
v_mov_b32 v13, v12
v_permlane32_swap_b32 v12, v13
v_max_f32 v12, v12, v13
''')
    for i in range(16): a(f'v_sub_f32 v{C+i}, 0, v12')
    a(f'v_mfma_f32_32x32x16_bf16 v[{S0}:{S0+15}], v[{KK}:{KK+3}], v[{Q}:{Q+3}], v[{C}:{C+15}]')
    a(f'ds_read_b128 v[{KK}:{KK+3}], v8 offset:2048')
    a(f'ds_read_b128 v[{VA}:{VA+3}], v9')
    a('s_nop 7')
    if PROF: a('s_memtime s[60:61]')
    TR = 192
    def wo_ld(f, reg):
        ks, c = f >> 2, f & 3
        off = c*16384 + ks*1024
        a(f's_add_u32 s12, s13, {off}')
        a(f'buffer_load_dwordx4 v[{reg}:{reg+3}], v3, s[20:23], s12 offen')
    def ev_bar():
        stamp(a, 3)
        a('s_waitcnt vmcnt(0)')
        a('s_barrier')
    def ev_addr():
        a("""
v_and_b32 v13, 7, v2
v_add_u32 v13, s6, v13
v_lshlrev_b32 v14, 10, v13
v_lshrrev_b32 v15, 3, v2
v_lshl_add_u32 v14, v15, 4, v14
s_lshl_b32 s12, s3, 7
v_add_u32 v14, s12, v14
v_lshlrev_b32 v7, 4, v0
s_lshl_b32 s13, s3, 16
s_lshl_b32 s15, s3, 13
""")
        a(f's_add_u32 s13, s13, {WS_WOF}')
        a(f'global_load_dwordx4 v[{XR}:{XR+3}], v14, s[16:17]')
    def modld(p):
        def f():
            a(f's_mov_b32 s12, {WS_MODP + 4096 + p*12288}')
            a(f'buffer_load_dwordx4 v[{224+4*p}:{227+4*p}], v7, s[20:23], s12 offen')
        return f
    def ev_rel1():
        a("""
s_mov_b32 s40, 0
s_cmp_ge_u32 s3, 6
s_cbranch_scc1 K2_NOREL
s_mul_i32 s41, s2, 6
s_add_u32 s41, s41, s3
s_cmp_ge_u32 s41, 1344
s_cbranch_scc1 K2_NOREL
s_mov_b32 s40, 1
s_cmp_ge_u32 s41, 896
s_cbranch_scc1 K2_RELD
s_cmp_ge_u32 s41, 448
s_cselect_b32 s44, s26, s24
s_cselect_b32 s45, s27, s25
s_cselect_b32 s42, 448, 0
s_cselect_b32 s43, 256, 0
s_sub_u32 s41, s41, s42
s_and_b32 s42, s41, 31
s_lshr_b32 s41, s41, 5
s_mov_b32 s48, 3584
s_mul_i32 s49, s42, 57344
s_lshl_b32 s50, s41, 8
s_add_u32 s49, s49, s50
v_mul_u32_u24 v12, 28672, v5
v_lshl_add_u32 v12, v4, 3, v12
v_lshrrev_b32 v15, 2, v4
v_lshlrev_b32 v15, 15, v15
v_lshl_add_u32 v15, v5, 9, v15
v_and_b32 v13, 1, v4
v_lshl_add_u32 v15, v13, 7, v15
v_bfe_u32 v13, v4, 1, 1
v_lshl_add_u32 v15, v13, 6, v15
s_lshl_b32 s50, s41, 18
s_lshl_b32 s51, s42, 10
s_add_u32 s50, s50, s51
s_add_u32 s50, s50, s43
""")
        a(f's_add_u32 s50, s50, {WS_WGUF}')
        a("""
s_branch K2_RELGO
K2_RELD:
s_sub_u32 s41, s41, 896
s_mov_b32 s44, s28
s_mov_b32 s45, s29
s_and_b32 s42, s41, 3
s_lshr_b32 s41, s41, 2
s_mov_b32 s48, 1024
s_lshl_b32 s49, s41, 14
s_lshl_b32 s50, s42, 8
s_add_u32 s49, s49, s50
v_lshlrev_b32 v12, 13, v5
v_lshl_add_u32 v12, v4, 3, v12
v_lshrrev_b32 v15, 3, v4
v_mul_u32_u24 v15, 0x1c000, v15
v_lshl_add_u32 v15, v5, 9, v15
v_and_b32 v13, 3, v4
v_lshl_add_u32 v15, v13, 7, v15
v_bfe_u32 v13, v4, 2, 1
v_lshl_add_u32 v15, v13, 6, v15
s_mul_i32 s50, s42, 0x70000
s_lshl_b32 s51, s41, 10
s_add_u32 s50, s50, s51
""")
        a(f's_add_u32 s50, s50, {WS_WDF}')
        a('K2_RELGO:')
        a("""
s_and_b32 s45, s45, 0xffff
s_mov_b32 s46, 1835008
s_mov_b32 s47, 0x20000
""")
        for jj in range(8):
            a(f'buffer_load_dwordx2 v[{TR+2*jj}:{TR+2*jj+1}], v12, s[44:47], s49 offen')
            if jj < 7: a('s_add_u32 s49, s49, s48')
        a('K2_NOREL:')
    def ev_rel2():
        a('s_waitcnt vmcnt(0)')
        a("""
s_cmp_eq_u32 s40, 0
s_cbranch_scc1 K2_NOREL2
s_mov_b32 s52, 0x05040100
s_mov_b32 s53, 0x07060302
""")
        relay_perm(a, TR + 16, TR, 52, 53)
        for c in range(4):
            a(f'buffer_store_dwordx4 v[{TR+16+4*c}:{TR+19+4*c}], v15, s[20:23], s50 offen offset:{16*c} {RELFLAGS}')
        a('K2_NOREL2:')
    def ev_mod():
        if 'r' in SKIP or 'm' in SKIP: a('s_waitcnt vmcnt(0)')
        for i in range(4):
            a(f'v_add_f32 v{224+i}, v{224+i}, v{228+i}')
            a(f'v_add_f32 v{232+i}, v{232+i}, v{236+i}')
        for i in range(4): a(f'v_add_f32 v{224+i}, v{224+i}, v{232+i}')
        a('v_cvt_pk_bf16_f32 v228, v224, v225')
        a('v_cvt_pk_bf16_f32 v229, v226, v227')
        unpack(a, 224, 228, 2)
        a("""
s_lshr_b32 s12, s3, 1
s_cmp_lg_u32 s12, 2
s_cbranch_scc1 K2_NOADD
""")
        for i in range(4): a(f'v_add_f32 v{224+i}, 1.0, v{224+i}')
        a('v_cvt_pk_bf16_f32 v228, v224, v225')
        a('v_cvt_pk_bf16_f32 v229, v226, v227')
        unpack(a, 224, 228, 2)
        a("""
K2_NOADD:
s_cmp_ge_u32 s3, 6
s_cbranch_scc1 K2_GB
""")
        a(f'v_add_u32 v13, {L_MODS}, v7')
        a('ds_write_b128 v13, v[224:227]')
        a("""
s_branch K2_GB2
K2_GB:
s_cmp_lg_u32 s2, 0
s_cbranch_scc1 K2_GB2
""")
        a(f's_mov_b32 s12, {WS_GB - 6144}')
        a('buffer_store_dwordx4 v[224:227], v7, s[20:23], s12 offen')
        a('K2_GB2:')
    def prio(p, tag):
        def f():
            a('s_cmp_lt_u32 s3, 4')
            a(f's_cbranch_scc1 K2_P{tag}')
            a(f's_setprio {p}')
            a(f'K2_P{tag}:')
        return f
    side = {T: [] for T in range(64)}
    for i in range(4, 16): side[(i-4)//2].append(lambda i=i: dma(i))
    side[8].append(None)
    post = []
    def put(T, f, grp):
        if grp in SKIP: post.append(f)
        else: side[T].append(f)
    side[9].append(ev_addr)
    put(9, ev_rel1, 'r')
    for p in range(4): put(10 + (p >> 1), modld(p), 'm')
    put(REL2, ev_rel2, 'r')
    put(REL2 + 1, ev_mod, 'm')
    def wo_dma(f, ldsoff):
        ks, c = f >> 2, f & 3
        a(f's_add_u32 s10, s15, {ldsoff}')
        a('s_mov_b32 m0, s10')
        a(f's_add_u32 s12, s13, {c*16384 + ks*1024}')
        a('buffer_load_dwordx4 v3, s[20:23], s12 offen lds')
    def touch(i):
        def f():
            if i == 0:
                a('s_and_b32 s54, s4, 1')
                a('s_mul_i32 s54, s54, 0x1c0000')
                a('s_mul_i32 s55, s5, 57344')
                a('s_add_u32 s54, s54, s55')
                a('s_min_u32 s55, s3, 6')
                a('s_lshl_b32 s55, s55, 13')
                a('s_add_u32 s54, s54, s55')
                a(f's_add_u32 s54, s54, {WS_WGUF}')
                a('v_lshlrev_b32 v12, 6, v2')
            else:
                a('s_add_u32 s54, s54, 4096')
            a('buffer_load_dword v13, v12, s[20:23], s54 offen')
        return f
    slots = [T for T in range(REL2 + 2, 58)]
    regf = list(range(NPRE)) + [50]
    treg = {f: WO + 4*f for f in range(NPRE)}; treg[50] = 252
    assert len(slots) >= len(regf)
    for f, T in zip(regf, slots): put(T, lambda f=f: wo_ld(f, treg[f]), 'w')
    side[33].append('bar')
    for i in range(8): put(34 + 2*i, lambda i=i: wo_dma(NPRE + i, i*1024), 'w')
    side[57].append('bar')
    for i in range(6): put(58 + i//2, lambda i=i: wo_dma(NPRE + 8 + i, 65536 - 0 + i*1024), 'w')
    if TOUCH:
        put(TOUCH, touch(0), 't'); put(TOUCH + 4, touch(1), 't')
    if PRIO:
        for T in range(0, 64, PRIO_PERIOD):
            side[T].insert(0, prio(1, f'a{T}'))
            side[T + PRIO_HI].insert(0, prio(0, f'b{T}'))
    for T in range(64):
        bar = None in side[T]
        tile(a, T & 7, [x for x in side[T] if x is not None and x != 'bar'])
        if bar: ev_bar()
        if 'bar' in side[T]:
            a('s_barrier')
            if T == 57: a('s_mul_i32 s15, s3, 6144')
    if PROF:
        a('s_memtime s[62:63]')
        a('s_waitcnt lgkmcnt(0)')
        a('s_sub_u32 s82, s62, s60')
    for f in post: f()

    stamp(a, 4)
    a('s_setprio 0')
    a(f'v_cvt_pk_bf16_f32 v{P+7}, v{S1+14}, v{S1+15}')
    a('s_waitcnt lgkmcnt(0)')
    a(f'v_mfma_f32_32x32x16_bf16 v[{O}:{O+15}], v[{VB}:{VB+3}], v[{P+4}:{P+7}], v[{O}:{O+15}]')
    a(f'v_add_f32 v12, |v{O}|, |v{O+1}|')
    a(f'v_add_f32 v13, |v{O+2}|, |v{O+3}|')
    a(f'v_add_f32 v12, v12, |v{O+4}|')
    a(f'v_add_f32 v13, v13, |v{O+5}|')
    a(f'v_add_f32 v12, v12, |v{O+6}|')
    a(f'v_add_f32 v13, v13, |v{O+7}|')
    a(f'v_add_f32 v12, v12, v{O+8}')
    a('v_add_f32 v12, v12, v13')
    a('s_mov_b32 s12, 0x7e800000')
    a('v_cmp_gt_f32 vcc, s12, v12')
    a('s_cmp_eq_u64 vcc, -1')
    a('s_cbranch_scc0 K2_SLOW')
    a('K2_FIN:')
    ACC = S1
    BR = KK
    ring = [KK, VA, VB, Q]
    late = [C, C+4, C+8, C+12, S0, S0+4, S0+8, S0+12]
    freg = dict(treg)
    nxt = 51
    order = []
    for r in late:
        freg[nxt] = r; wo_ld(nxt, r); order.append(nxt); nxt += 1
    a(f'v_rcp_f32 v12, v{O+8}')
    for i in range(8): a(f'v_mul_f32 v{O+i}, v{O+i}, v12')
    for i in range(4): a(f'v_cvt_pk_bf16_f32 v{P+i}, v{O+2*i}, v{O+2*i+1}')
    a('s_mul_i32 s12, s3, 1056')
    a(f's_add_u32 s12, s12, {L_OX}')
    a('v_add_u32 v12, s12, v6')
    a(f'ds_write_b128 v12, v[{P}:{P+3}]')
    a('''
v_and_b32 v13, 7, v2
v_mul_u32_u24 v13, 1056, v13
v_lshrrev_b32 v15, 4, v2
v_lshl_add_u32 v13, v15, 4, v13
''')
    a(f'v_add_u32 v13, {L_OX}, v13')
    a('s_lshl_b32 s12, s3, 13')
    a('v_add_u32 v8, s12, v3')
    a('s_add_u32 s12, s15, 65536')
    a('v_add_u32 v9, s12, v3')
    a('s_waitcnt lgkmcnt(0)')
    a('s_barrier')
    stamp(a, 5)
    lg = []
    def lrd_b(ks):
        a(f'ds_read_b128 v[{ring[ks&3]}:{ring[ks&3]+3}], v13 offset:{64*ks}'); lg.append(('b', ks))
    def lrd_w(f, r):
        i = f - NPRE
        vv, off = (8, i*1024) if i < 8 else (9, (i-8)*1024)
        a(f'ds_read_b128 v[{r}:{r+3}], v{vv} offset:{off}'); lg.append(('w', f)); freg[f] = r
    for ks in range(4): lrd_b(ks)
    nl = NPRE
    for ks in range(16):
        br = ring[ks & 3]
        for c in range(4):
            f = 4*ks + c
            w = []
            need = [lg.index(('b', ks))] if c == 0 else []
            if ('w', f) in lg: need.append(lg.index(('w', f)))
            if need: w.append(f'lgkmcnt({min(15, len(lg) - max(need) - 1)})')
            if f in order:
                w.append(f'vmcnt({len(order) - order.index(f) - 1})')
            elif f == 0:
                w.append(f'vmcnt({len(order)})')
            if w: a('s_waitcnt ' + ' '.join(w))
            r = freg[f]
            cc = '0' if ks == 0 else f'v[{ACC+4*c}:{ACC+4*c+3}]'
            a(f'v_mfma_f32_16x16x32_bf16 v[{ACC+4*c}:{ACC+4*c+3}], v[{r}:{r+3}], v[{br}:{br+3}], {cc}')
            if nxt < 64:
                freg[nxt] = r; wo_ld(nxt, r); order.append(nxt); nxt += 1
            elif nl < 50 and f >= 12:
                lrd_w(nl, r); nl += 1
        if ks + 4 < 16: lrd_b(ks + 4)
    stamp(a, 6)
    G, SB, CB, X = 108, 116, 124, 132
    a('''
v_lshrrev_b32 v15, 3, v2
v_lshlrev_b32 v15, 5, v15
s_lshl_b32 s12, s3, 8
''')
    a(f's_add_u32 s12, s12, {L_MODS}')
    a('v_add_u32 v15, s12, v15')
    for i, r in enumerate((G, SB, CB)):
        a(f'ds_read_b128 v[{r}:{r+3}], v15 offset:{2048*i}')
        a(f'ds_read_b128 v[{r+4}:{r+7}], v15 offset:{2048*i+16}')
    unpack(a, X, XR, 4)
    a('v_and_b32 v12, 8, v2')
    a('v_cmp_eq_u32 s[34:35], 0, v12')
    for i in range(8): a(f'v_cndmask_b32 v{ACC+i}, v{ACC+8+i}, v{ACC+i}, s[34:35]')
    a('s_waitcnt lgkmcnt(0)')
    for i in range(8): a(f'v_fmac_f32 v{X+i}, v{ACC+i}, v{G+i}')
    for i in range(4): a(f'v_cvt_pk_bf16_f32 v{XR+i}, v{X+2*i}, v{X+2*i+1}')
    a(f'global_store_dwordx4 v14, v[{XR}:{XR+3}], s[18:19]')
    unpack(a, X, XR, 4)
    def red(r, t):
        a(f'v_add_f32_dpp v{r}, v{r}, v{r} row_ror:8 row_mask:0xf bank_mask:0xf')
        a(f'v_mov_b32 v{t}, v{r}')
        a(f'v_permlane16_swap_b32 v{r}, v{t}')
        a(f'v_add_f32 v{r}, v{r}, v{t}')
        a(f'v_mov_b32 v{t}, v{r}')
        a(f'v_permlane32_swap_b32 v{r}, v{t}')
        a(f'v_add_f32 v{r}, v{r}, v{t}')
    M, D = 140, 144
    a(f'v_add_f32 v{M}, v{X}, v{X+1}')
    a(f'v_add_f32 v{M+1}, v{X+2}, v{X+3}')
    a(f'v_add_f32 v{M+2}, v{X+4}, v{X+5}')
    a(f'v_add_f32 v{M+3}, v{X+6}, v{X+7}')
    a(f'v_add_f32 v{M}, v{M}, v{M+1}')
    a(f'v_add_f32 v{M+2}, v{M+2}, v{M+3}')
    a(f'v_add_f32 v{M}, v{M}, v{M+2}')
    red(M, M+2)
    a(f'v_mul_f32 v{M}, {f32(1/64)}, v{M}')
    for i in range(8): a(f'v_sub_f32 v{D+i}, v{X+i}, v{M}')
    a(f'v_mul_f32 v{M+1}, v{D}, v{D}')
    a(f'v_mul_f32 v{M+2}, v{D+1}, v{D+1}')
    for i in range(2, 8): a(f'v_fmac_f32 v{M+1+(i&1)}, v{D+i}, v{D+i}')
    a(f'v_add_f32 v{M+1}, v{M+1}, v{M+2}')
    red(M+1, M+2)
    a('''
v_and_b32 v12, 7, v2
v_lshlrev_b32 v12, 6, v12
''')
    a(f'v_add_u32 v12, {L_STAT}, v12')
    a('s_lshl_b32 s12, s3, 3')
    a('v_add_u32 v13, s12, v12')
    a('s_mov_b64 exec, 0xff')
    a(f'ds_write_b64 v13, v[{M}:{M+1}]')
    a('s_mov_b64 exec, -1')
    a('s_waitcnt lgkmcnt(0)')
    a('s_barrier')
    ST = 152
    for i in range(4): a(f'ds_read_b128 v[{ST+4*i}:{ST+4*i+3}], v12 offset:{16*i}')
    a('''
s_lshr_b32 s12, s6, 5
s_lshl_b32 s12, s12, 15
s_and_b32 s14, s6, 31
s_lshl_b32 s14, s14, 4
s_add_u32 s12, s12, s14
s_lshl_b32 s14, s3, 12
s_add_u32 s12, s12, s14
''')
    a(f's_add_u32 s12, s12, {WS_H2F}')
    a('''
v_lshrrev_b32 v13, 3, v2
v_lshlrev_b32 v13, 9, v13
v_and_b32 v15, 7, v2
v_lshl_add_u32 v13, v15, 4, v13
s_waitcnt lgkmcnt(0)
''')
    a(f'v_add_f32 v{M}, v{ST}, v{ST+2}')
    a(f'v_add_f32 v{M+1}, v{ST+1}, v{ST+3}')
    for i in range(2, 8):
        a(f'v_add_f32 v{M}, v{M}, v{ST+2*i}')
        a(f'v_add_f32 v{M+1}, v{M+1}, v{ST+2*i+1}')
    a(f'v_mul_f32 v{M}, {f32(1/8)}, v{M}')
    for i in range(8): a(f'v_sub_f32 v{ST+2*i}, v{ST+2*i}, v{M}')
    a(f'v_mul_f32 v{M+2}, v{ST}, v{ST}')
    for i in range(1, 8): a(f'v_fmac_f32 v{M+2}, v{ST+2*i}, v{ST+2*i}')
    a(f'v_mul_f32 v{M+1}, {f32(1/512)}, v{M+1}')
    a(f'v_fmac_f32 v{M+1}, {f32(1/8)}, v{M+2}')
    a(f'v_add_f32 v{M+1}, {f32(1e-5)}, v{M+1}')
    a(f'v_rsq_f32 v{M+1}, v{M+1}')
    for i in range(8): a(f'v_sub_f32 v{X+i}, v{X+i}, v{M}')
    for i in range(8): a(f'v_mul_f32 v{CB+i}, v{CB+i}, v{M+1}')
    for i in range(8): a(f'v_fmac_f32 v{SB+i}, v{X+i}, v{CB+i}')
    for i in range(4): a(f'v_cvt_pk_bf16_f32 v{D+i}, v{SB+2*i}, v{SB+2*i+1}')
    a(f'buffer_store_dwordx4 v[{D}:{D+3}], v13, s[20:23], s12 offen')
    prof_end(a, 2, 3, 30)
    a('K2_END2:')
    a('s_endpgm')

    a('K2_SLOW:')
    a('v_mov_b32 v12, 0xff800000')
    a(f's_mov_b32 s12, {WS_KVF}')
    a('K2_SL1:')
    a(f'buffer_load_dwordx4 v[{KK}:{KK+3}], v3, s[20:23], s12 offen')
    a('s_waitcnt vmcnt(0)')
    a(f'v_mfma_f32_32x32x16_bf16 v[{S0}:{S0+15}], v[{KK}:{KK+3}], v[{Q}:{Q+3}], 0')
    for i in range(0, 16, 2): a(f'v_max3_f32 v12, v12, v{S0+i}, v{S0+i+1}')
    a('s_add_u32 s12, s12, 2048')
    a(f's_cmp_lt_u32 s12, {WS_KVF + 131072}')
    a('s_cbranch_scc1 K2_SL1')
    a('''
v_mov_b32 v13, v12
v_permlane32_swap_b32 v12, v13
v_max_f32 v12, v12, v13
''')
    for i in range(16): a(f'v_sub_f32 v{C+i}, 0, v12')
    for i in range(16): a(f'v_mov_b32 v{O+i}, 0')
    for i in range(8): a(f'v_mov_b32 v{VA+i}, 0x3f803f80')
    a('''
v_lshl_add_u32 v13, v5, 4, v4
v_lshlrev_b32 v13, 4, v13
''')
    a(f's_mov_b32 s12, {WS_KVF}')
    a('K2_SL2:')
    a(f'buffer_load_dwordx4 v[{KK}:{KK+3}], v3, s[20:23], s12 offen')
    a('s_mov_b64 exec, s[32:33]')
    a(f'buffer_load_dwordx4 v[{VA}:{VA+3}], v13, s[20:23], s12 offen offset:1024')
    a(f'buffer_load_dwordx4 v[{VB}:{VB+3}], v13, s[20:23], s12 offen offset:1536')
    a('s_mov_b64 exec, -1')
    a('s_waitcnt vmcnt(0)')
    a(f'v_mfma_f32_32x32x16_bf16 v[{S0}:{S0+15}], v[{KK}:{KK+3}], v[{Q}:{Q+3}], v[{C}:{C+15}]')
    for i in range(16): a(f'v_exp_f32 v{S0+i}, v{S0+i}')
    for i in range(8): a(f'v_cvt_pk_bf16_f32 v{P+i}, v{S0+2*i}, v{S0+2*i+1}')
    a(f'v_mfma_f32_32x32x16_bf16 v[{O}:{O+15}], v[{VA}:{VA+3}], v[{P}:{P+3}], v[{O}:{O+15}]')
    a(f'v_mfma_f32_32x32x16_bf16 v[{O}:{O+15}], v[{VB}:{VB+3}], v[{P+4}:{P+7}], v[{O}:{O+15}]')
    a('s_add_u32 s12, s12, 2048')
    a(f's_cmp_lt_u32 s12, {WS_KVF + 131072}')
    a('s_cbranch_scc1 K2_SL2')
    a('s_nop 15')
    a('s_branch K2_FIN')
    return K
```

```python
from common import *

K0C = -2.0 * 0.7978845608028654 * LOG2E
K1C = K0C * 0.044715

def gelu_ops(G, U, T, out, i):
    ops = []
    for e in range(2):
        g, t = G + 2*i + e, T + e
        ops.append(f'v_mul_f32 v{t}, v{g}, v{g}')
    for e in range(2):
        ops.append(f'v_fmaak_f32 v{T+e}, v{T+e}, v15, {f32(K0C)}')
    for e in range(2):
        ops.append(f'v_mul_f32 v{T+e}, v{T+e}, v{G+2*i+e}')
    for e in range(2):
        ops.append(f'v_exp_f32 v{T+e}, v{T+e}')
    for e in range(2):
        ops.append(f'v_mul_f32 v{G+2*i+e}, v{G+2*i+e}, v{U+2*i+e}')
    for e in range(2):
        ops.append(f'v_add_f32 v{T+e}, 1.0, v{T+e}')
    for e in range(2):
        ops.append(f'v_rcp_f32 v{T+e}, v{T+e}')
    ops.append('s_nop 0')
    for e in range(2):
        ops.append(f'v_mul_f32 v{G+2*i+e}, v{G+2*i+e}, v{T+e}')
    ops.append(f'v_cvt_pk_bf16_f32 v{out+i}, v{G+2*i}, v{G+2*i+1}')
    return ops

NFIRST = int(os.environ.get('NFIRST', '5'))
AHEAD = int(os.environ.get('AHEAD', '8'))
def k3():
    K = Kernel('ffn1_kernel', 256, 512, 131072)
    a = K.a
    W, ACC, BR = 128, 64, 40
    a('''
s_cmp_ge_u32 s2, 256
s_cbranch_scc1 K3_END2
''')
    prof_init(a)
    a('''
s_load_dwordx2 s[30:31], s[0:1], 104
v_lshrrev_b32 v1, 6, v0
v_and_b32 v2, 63, v0
v_readfirstlane_b32 s3, v1
s_and_b32 s4, s2, 7
s_lshr_b32 s5, s2, 3
v_lshlrev_b32 v3, 4, v2
v_add_u32 v4, 0x10000, v3
s_cmp_ge_u32 s2, 224
s_cbranch_scc1 K3_PF
''')
    a('''
s_and_b32 s6, s5, 3
s_lshr_b32 s7, s5, 2
s_add_u32 s9, s6, s7
s_and_b32 s9, s9, 3
s_lshl_b32 s9, s9, 13
s_lshr_b32 s8, s4, 1
s_lshl_b32 s8, s8, 2
s_add_u32 s6, s6, s8
s_and_b32 s8, s4, 1
s_mul_i32 s8, s8, 7
s_add_u32 s7, s7, s8
s_lshl_b32 s7, s7, 3
s_add_u32 s7, s7, s3
s_lshl_b32 s10, s7, 15
''')
    a(f's_add_u32 s10, s10, {WS_WGUF}')
    a('s_lshl_b32 s11, s6, 17')
    a('s_lshl_b32 s12, s3, 10')
    a('s_add_u32 s11, s11, s12')
    a(f's_add_u32 s11, s11, {WS_H2F}')
    a('s_mul_i32 s14, s6, 0x70000')
    a('s_lshl_b32 s15, s7, 10')
    a('s_add_u32 s14, s14, s15')
    a(f's_add_u32 s14, s14, {WS_ACTF}')
    a(f'v_mov_b32 v15, {f32(K1C)}')
    for c in range(4):
        if c == 0: a('s_mov_b32 s32, s9')
        else:
            a(f's_add_u32 s{32+c}, s{31+c}, 8192')
            a(f's_and_b32 s{32+c}, s{32+c}, 0x7fff')
    a('s_waitcnt lgkmcnt(0)')
    stamp(a, 1)
    srd(a, 20, 30, WS_END)
    vm = []
    def dma(t, c):
        a(f's_add_u32 s16, s12, {t*32768 + c*8192}')
        a('s_mov_b32 m0, s16')
        a(f's_add_u32 s17, s11, s{32+c}')
        if t: a(f's_add_u32 s17, s17, {t*32768}')
        a('buffer_load_dwordx4 v3, s[20:23], s17 offen lds')
        vm.append(('d', t, c))
    def wld(p):
        c, q = p >> 3, p & 7
        if q == 0: a(f's_add_u32 s18, s10, s{32+c}')
        if q == 4: a('s_add_u32 s18, s18, 4096')
        a(f'buffer_load_dwordx4 v[{W+4*p}:{W+4*p+3}], v3, s[20:23], s18 offen offset:{(q&3)*1024}')
        vm.append(('w', p))
    def vmw(tag): return len(vm) - vm.index(tag) - 1
    def chunk_loads(c):
        if c < 4: return [lambda t=t: dma(t, c) for t in range(3)] + [lambda p=p: wld(p) for p in range(8*c, 8*c+8)]
        return [lambda cc=cc: dma(3, cc) for cc in range(4)]
    def rd(t, p, reg):
        off = t*32768 + p*1024
        a(f'ds_read_b128 v[{reg}:{reg+3}], v{3 if off < 65536 else 4} offset:{off & 0xffff}')
    allq = []
    for c in range(5): allq += chunk_loads(c)
    for _ in range(NFIRST): allq.pop(0)()
    a(f's_waitcnt vmcnt({vmw(("d",2,0))})')
    a('s_barrier')
    stamp(a, 2)
    for t in range(3): rd(t, 0, BR + 4*t)
    for p in range(32):
        c, q = p >> 3, p & 7
        target = min(48, (p + 1 + AHEAD)*11//8 + 3)
        n = 0
        while allq and len(vm) < target and n < 3:
            allq.pop(0)(); n += 1
        if q == 6:
            tag = ('d', 2, c+1) if c < 3 else ('d', 3, 3)
            a(f's_waitcnt vmcnt({vmw(tag)})')
            a('s_barrier')
        cur = BR + 12*(p & 1); nx = BR + 12*((p+1) & 1)
        if p < 31:
            for t in range(3): rd(t, p+1, nx + 4*t)
            lg = 3
        else:
            for i in range(3): rd(3, i, nx + 4*i)
            lg = 3
        a(f's_waitcnt vmcnt({vmw(("w",p))}) lgkmcnt({lg})')
        for t in range(3):
            cc = '0' if p == 0 else f'v[{ACC+16*t}:{ACC+16*t+15}]'
            a(f'v_mfma_f32_32x32x16_bf16 v[{ACC+16*t}:{ACC+16*t+15}], v[{W+4*p}:{W+4*p+3}], v[{cur+4*t}:{cur+4*t+3}], {cc}')
    stamp(a, 3)
    ops = []
    for t in range(3):
        for i in range(4):
            ops += gelu_ops(ACC+16*t, ACC+16*t+8, 16 + 2*(i & 1), 24 + 4*t, i)
        ops.append(f'STORE {t}')
    per = (len(ops) + 29) // 30
    A3 = ACC + 48
    for i in range(3, 5): rd(3, i, BR + 4*i)
    for p in range(32):
        r = BR + 4*(p % 6)
        if p + 5 < 32: rd(3, p + 5, BR + 4*((p+5) % 6))
        a(f's_waitcnt lgkmcnt({min(31, p+5) - p})')
        cc = '0' if p == 0 else f'v[{A3}:{A3+15}]'
        a(f'v_mfma_f32_32x32x16_bf16 v[{A3}:{A3+15}], v[{W+4*p}:{W+4*p+3}], v[{r}:{r+3}], {cc}')
        if p >= 2:
            for _ in range(per):
                if ops:
                    o = ops.pop(0)
                    if o.startswith('STORE'):
                        t = int(o.split()[1])
                        if t: a(f's_add_u32 s14, s14, 0x1c000')
                        a(f'buffer_store_dwordx4 v[{24+4*t}:{27+4*t}], v3, s[20:23], s14 offen')
                    else: a(o)
    assert not ops
    stamp(a, 4)
    seqs = [gelu_ops(A3, A3+8, 16 + 2*i, 40, i) for i in range(4)]
    seqs = [[o for o in s if o != 's_nop 0'] for s in seqs]
    for k in range(0, len(seqs[0]), 2):
        for s in seqs:
            for o in s[k:k+2]: a(o)
    a('s_add_u32 s14, s14, 0x1c000')
    a('buffer_store_dwordx4 v[40:43], v3, s[20:23], s14 offen')
    stamp(a, 6)
    prof_end(a, 3, 3, 30)
    a('K3_END2:')
    a('s_endpgm')
    a('K3_PF:')
    a('''
s_and_b32 s6, s4, 1
s_mul_i32 s6, s6, 0xe0000
s_sub_u32 s7, s5, 28
s_lshl_b32 s7, s7, 3
s_add_u32 s7, s7, s3
s_mul_i32 s7, s7, 28672
s_add_u32 s6, s6, s7
v_lshlrev_b32 v4, 6, v2
''')
    a(f's_add_u32 s6, s6, {WS_WDF}')
    a('s_waitcnt lgkmcnt(0)')
    srd(a, 20, 30, WS_END)
    for i in range(7):
        a(f'buffer_load_dword v{8+i}, v4, s[20:23], s6 offen')
        if i < 6: a('s_add_u32 s6, s6, 4096')
    a('s_waitcnt vmcnt(0)')
    a('s_endpgm')
    return K
```

```python
from common import *

def k4():
    K = Kernel('ffn2_kernel', 256, 256, 65536)
    a = K.a
    ACC, RING, D = 32, 96, 7
    X2, GB = 208, 216
    a('''
s_cmp_ge_u32 s2, 256
s_cbranch_scc1 K4_END2
''')
    prof_init(a)
    a('''
s_load_dwordx2 s[30:31], s[0:1], 104
s_load_dwordx2 s[18:19], s[0:1], 88
v_lshrrev_b32 v1, 6, v0
v_and_b32 v2, 63, v0
v_readfirstlane_b32 s3, v1
s_and_b32 s4, s2, 7
s_lshr_b32 s5, s2, 3
v_lshlrev_b32 v3, 4, v2
''')
    a('''
s_lshr_b32 s6, s4, 1
s_lshl_b32 s6, s6, 3
s_lshr_b32 s7, s5, 2
s_add_u32 s6, s6, s7
s_and_b32 s8, s4, 1
s_lshl_b32 s8, s8, 2
s_and_b32 s9, s5, 3
s_add_u32 s8, s8, s9
s_mul_i32 s10, s8, 0x38000
s_mul_i32 s11, s6, 0x38000
s_mul_i32 s12, s3, 28672
s_add_u32 s10, s10, s12
s_add_u32 s11, s11, s12
''')
    a(f's_add_u32 s10, s10, {WS_WDF}')
    a(f's_add_u32 s11, s11, {WS_ACTF}')
    a('''
v_add_u32 v4, s10, v3
v_add_u32 v5, 0x1c000, v4
v_add_u32 v6, s11, v3
v_add_u32 v7, 0x1c000, v6
''')
    a('''
s_mul_i32 s13, s7, 3
s_mul_i32 s14, s9, 7
s_add_u32 s13, s13, s14
s_cmp_ge_u32 s13, 28
s_cselect_b32 s14, 28, 0
s_sub_u32 s13, s13, s14
s_lshl_b32 s13, s13, 10
''')
    a('''
s_lshr_b32 s14, s3, 1
s_and_b32 s15, s3, 1
s_lshl_b32 s16, s6, 1
s_add_u32 s16, s16, s14
s_lshl_b32 s16, s16, 15
s_lshl_b32 s17, s8, 1
s_add_u32 s17, s17, s15
s_lshl_b32 s17, s17, 6
s_add_u32 s16, s16, s17
v_and_b32 v8, 31, v2
v_lshlrev_b32 v8, 10, v8
v_lshrrev_b32 v9, 5, v2
v_lshl_add_u32 v8, v9, 5, v8
v_add_u32 v8, s16, v8
s_lshl_b32 s17, s17, 1
''')
    a(f's_add_u32 s17, s17, {WS_GB}')
    a('v_lshlrev_b32 v9, 6, v9')
    a('s_waitcnt lgkmcnt(0)')
    stamp(a, 1)
    srd(a, 20, 30, WS_END)
    def ld(n):
        r = RING + 16*(n % D)
        for q, v in enumerate((4, 6, 5, 7)):
            a(f'buffer_load_dwordx4 v[{r+4*q}:{r+4*q+3}], v{v}, s[20:23], s13 offen')
        if n < 27:
            a('s_add_u32 s13, s13, 1024')
            a('s_cmp_eq_u32 s13, 28672')
            a('s_cselect_b32 s13, 0, s13')
    for n in range(D): ld(n)
    extra = 0
    for n in range(28):
        r = RING + 16*(n % D)
        out_after = 4*(min(28, n + D) - n - 1) + extra
        A0, B0, A1, B1 = r, r+4, r+8, r+12
        def mf(t, A, B):
            cc = '0' if n == 0 else f'v[{ACC+16*t}:{ACC+16*t+15}]'
            a(f'v_mfma_f32_32x32x16_bf16 v[{ACC+16*t}:{ACC+16*t+15}], v[{A}:{A+3}], v[{B}:{B+3}], {cc}')
        a(f's_waitcnt vmcnt({out_after+2})')
        mf(0, A0, B0)
        a(f's_waitcnt vmcnt({out_after+1})')
        mf(1, A1, B0)
        a(f's_waitcnt vmcnt({out_after})')
        mf(2, A0, B1)
        mf(3, A1, B1)
        if n + D < 28: ld(n + D)
        if n + D == 27:
            a(f'global_load_dwordx4 v[{X2}:{X2+3}], v8, s[18:19]')
            a(f'global_load_dwordx4 v[{X2+4}:{X2+7}], v8, s[18:19] offset:16')
            for i in range(4):
                a(f'buffer_load_dwordx4 v[{GB+4*i}:{GB+4*i+3}], v9, s[20:23], s17 offen offset:{16*i}')
            extra = 6
    stamp(a, 3)
    a('s_lshl_b32 s14, s3, 12')
    a('v_add_u32 v10, s14, v3')
    a('s_lshl_b32 s14, s3, 14')
    a('v_add_u32 v11, s14, v3')
    for w in range(4):
        a(f's_cmp_eq_u32 s3, {w}')
        a(f's_cbranch_scc1 K4_W{w}')
    for w in range(4):
        a(f'K4_W{w}:')
        a('s_nop 7')
        for t in range(4):
            if t == w: continue
            for q in range(4):
                r = ACC + 16*t + 4*q
                a(f'ds_write_b128 v10, v[{r}:{r+3}] offset:{t*16384 + q*1024}')
        a('s_waitcnt lgkmcnt(0)')
        a('s_barrier')
        srcs = [s for s in range(4) if s != w]
        for k, s in enumerate(srcs):
            for q in range(4):
                r = RING + 16*k + 4*q
                a(f'ds_read_b128 v[{r}:{r+3}], v11 offset:{s*4096 + q*1024}')
        for i in range(16): a(f'v_mov_b32 v{16+i}, v{ACC+16*w+i}')
        if w < 3: a('s_branch K4_RED')
    a('K4_RED:')
    stamp(a, 4)
    a('s_waitcnt vmcnt(0)')
    unpack(a, 160, X2, 8)
    for k in range(3):
        a(f's_waitcnt lgkmcnt({8-4*k})')
        for i in range(16): a(f'v_add_f32 v{16+i}, v{16+i}, v{RING+16*k+i}')
    for i in range(16): a(f'v_fmac_f32 v{160+i}, v{16+i}, v{GB+i}')
    for i in range(8): a(f'v_cvt_pk_bf16_f32 v{X2+i}, v{160+2*i}, v{161+2*i}')
    a(f'global_store_dwordx4 v8, v[{X2}:{X2+3}], s[18:19]')
    a(f'global_store_dwordx4 v8, v[{X2+4}:{X2+7}], s[18:19] offset:16')
    stamp(a, 6)
    prof_end(a, 4, 3, 30, nwaves=4)
    a('K4_END2:')
    a('s_endpgm')
    return K
```

```python
import sys
from common import *
import mk
from k0 import k0
from k1 import k1
ks = [k0(), k1()]
try:
    from k2 import k2
    ks.append(k2())
    from k3 import k3
    ks.append(k3())
    from k4 import k4
    ks.append(k4())
except ImportError as e:
    print('stop at', e)
out = sys.argv[1] if len(sys.argv) > 1 else 't'
build(ks, out + '.s')
mk.mk(out + '.s', out + '.co')
```

```python
from asmlib import Asm
import struct
NAME = "adaLN_cond__grouped_kv_mqa__geglu_ffn__prompt"
WS_MODP  = 0x000000
WS_GB    = 0x00C000
WS_FLAG  = 0x014000
WS_XCC   = 0x00D000
WS_STAT  = 0x010000
WS_WKVF  = 0x018000
WS_KVF   = 0x020000
WS_WQF   = 0x080000
WS_WOF   = 0x100000
WS_Q     = 0x200000
WS_H2F   = 0x400000
WS_WGUF  = 0x600000
WS_WDF   = 0x980000
WS_ACTF  = 0xC00000
WS_END   = 0x1300000
def f32(x): return '0x%08x' % struct.unpack('<I', struct.pack('<f', x))[0]
LOG2E = 1.4426950408889634

def dpp_reduce(a, regs):
    for ctl in ('row_shr:1 row_mask:0xf bank_mask:0xf', 'row_shr:2 row_mask:0xf bank_mask:0xf',
                'row_shr:4 row_mask:0xf bank_mask:0xf', 'row_shr:8 row_mask:0xf bank_mask:0xf',
                'row_bcast:15 row_mask:0xa bank_mask:0xf', 'row_bcast:31 row_mask:0xc bank_mask:0xf'):
        for r in regs:
            a(f'v_add_f32_dpp v{r}, v{r}, v{r} {ctl}')

def silu_bf16(a, dst, src, tmp):
    a(f'v_mul_f32 v{tmp}, {f32(-LOG2E)}, v{src}')
    a(f'v_exp_f32 v{tmp}, v{tmp}')
    a(f'v_add_f32 v{tmp}, 1.0, v{tmp}')
    a(f'v_rcp_f32 v{tmp}, v{tmp}')
    a(f'v_mul_f32 v{dst}, v{src}, v{tmp}')
    a(f'v_cvt_pk_bf16_f32 v{dst}, v{dst}, v{dst}')
    a(f'v_lshlrev_b32 v{dst}, 16, v{dst}')

def round_bf16(a, r):
    a(f'v_cvt_pk_bf16_f32 v{r}, v{r}, v{r}')
    a(f'v_lshlrev_b32 v{r}, 16, v{r}')

def unpack(a, dst, src, n):
    for i in range(n):
        a(f'v_lshlrev_b32 v{dst+2*i}, 16, v{src+i}')
        a(f'v_and_b32 v{dst+2*i+1}, 0xffff0000, v{src+i}')

def pack8(a, dst, src):
    for i in range(4):
        a(f'v_lshl_or_b32 v{dst+i}, v{src+2*i+1}, 16, v{src+2*i}')

def relay_load(a, dst, voff, sbase, stride, n=8):
    for jj in range(n):
        off = jj*stride - (4096 if stride == 1024 else 0)
        a(f'global_load_dwordx2 v[{dst+2*jj}:{dst+2*jj+1}], v{voff}, s[{sbase}:{sbase+1}] offset:{off}')

def relay_perm(a, dst, src, slo, shi):
    for c in range(4):
        for i in range(4):
            r0 = src + 2*(2*i) + (c >> 1); r1 = src + 2*(2*i+1) + (c >> 1)
            a(f'v_perm_b32 v{dst+4*c+i}, v{r1}, v{r0}, s{shi if c & 1 else slo}')

def srd(a, d, base, size):
    a(f's_mov_b32 s{d}, s{base}')
    a(f's_and_b32 s{d+1}, s{base+1}, 0xffff')
    a(f's_mov_b32 s{d+2}, {size}')
    a(f's_mov_b32 s{d+3}, 0x20000')

class Kernel:
    def __init__(self, name, grid, block, lds):
        self.name, self.grid, self.block, self.lds = name, grid, block, lds
        self.a = Asm()
        self.accum = None
    def emit(self):
        a = self.a
        a.fix()
        mv, ms, ma = a.max_regs()
        acc = (mv + 1 + 3) // 4 * 4
        acc = max(acc, 4)
        nfv = acc + ma + 1 if ma >= 0 else mv + 1
        assert acc <= 256 and nfv <= 512, (self.name, acc, nfv)
        self.nfv = nfv
        code = f'.text\n.globl {self.name}\n.p2align 8\n.type {self.name},@function\n{self.name}:\n' + a.text()
        kd = f'''.section .rodata,"a"
.p2align 6
.amdhsa_kernel {self.name}
  .amdhsa_next_free_vgpr {nfv}
  .amdhsa_next_free_sgpr {max(ms+1, 16)}
  .amdhsa_accum_offset {acc}
  .amdhsa_group_segment_fixed_size 0
  .amdhsa_kernarg_size 112
  .amdhsa_user_sgpr_count 2
  .amdhsa_user_sgpr_kernarg_segment_ptr 1
  .amdhsa_system_sgpr_workgroup_id_x 1
.end_amdhsa_kernel
'''
        return code, kd

def build(kernels, path):
    ref = open(f'cdna_kernels/{NAME}.s.ref').read().split('\n')
    head = [l for l in ref if l.startswith(';') and '@launch' not in l and 'Override launch' not in l and 'grid=ceil' not in l]
    out = '\n'.join(head) + '\n'
    for k in kernels:
        out += f'; @launch kernel={k.name} grid=({k.grid},1,1) block=({k.block},1,1) lds={k.lds}\n'
    out += '.amdgcn_target "amdgcn-amd-amdhsa--gfx950"\n'
    kds = ''
    seen = set()
    for k in kernels:
        if k.name in seen: continue
        seen.add(k.name)
        c, kd = k.emit()
        out += c
        kds += kd
        print(f'{k.name}: vgpr {k.nfv}, instrs {sum(1 for i in k.a.ins if i.kind!="none")}')
    out += kds
    open(path, 'w').write(out)

import os
PROF = os.environ.get('PROF', '') == '1'
WS_PROF = 0x1400000
XCC = os.environ.get('XCC', '') == '1'
NST = 12
def stamp(a, i):
    if PROF: a(f's_memrealtime s[{76+2*i}:{77+2*i}]')
def prof_init(a):
    if PROF:
        for i in range(NST): a(f's_mov_b32 s{76+2*i}, 0')
        a('s_memrealtime s[76:77]')
def prof_end(a, kidx, wavereg, wsbase, nwaves=8, wait_stores=True):
    if not PROF: return
    if wait_stores: a('s_waitcnt vmcnt(0)')
    stamp(a, NST-1)
    a('s_waitcnt lgkmcnt(0)')
    a('s_mov_b64 exec, 1')
    a(f's_mul_i32 s100, s2, {nwaves}')
    a(f's_add_u32 s100, s100, s{wavereg}')
    a('s_lshl_b32 s100, s100, 6')
    a(f's_add_u32 s100, s100, {WS_PROF + kidx*256*8*64}')
    a('v_mov_b32 v0, s100')
    for i in range(NST): a(f'v_mov_b32 v{4+i}, s{76+2*i}')
    for i in range(NST//4):
        a(f'global_store_dwordx4 v0, v[{4+4*i}:{7+4*i}], s[{wsbase}:{wsbase+1}] offset:{16*i}')
```

```python
from common import *

def k0():
    K = Kernel('prep_kernel', 256, 512, 2048)
    a = K.a
    a('''
s_cmp_ge_u32 s2, 256
s_cbranch_scc1 K0_END2
''')
    prof_init(a)
    a('''
s_load_dwordx8 s[16:23], s[0:1], 0
s_load_dwordx4 s[24:27], s[0:1], 72
s_load_dwordx2 s[28:29], s[0:1], 104
s_load_dwordx2 s[36:37], s[0:1], 32
v_lshrrev_b32 v1, 6, v0
v_and_b32 v2, 63, v0
v_readfirstlane_b32 s3, v1
s_and_b32 s4, s2, 7
s_lshr_b32 s5, s2, 3
s_lshl_b32 s8, s4, 8
s_lshl_b32 s7, s5, 3
s_add_u32 s6, s8, s7
s_add_u32 s6, s6, s3
s_lshl_b32 s7, s6, 10
v_lshl_add_u32 v3, v2, 4, s7
s_cmp_ge_u32 s5, 24
s_cbranch_scc1 K0_HI
''')
    a('''
s_mul_i32 s9, s4, 24
s_add_u32 s9, s9, s5
s_lshr_b32 s10, s9, 2
s_and_b32 s9, s9, 3
s_lshl_b32 s10, s10, 7
s_lshl_b32 s11, s9, 7
v_lshrrev_b32 v4, 3, v0
v_add_u32 v4, s11, v4
v_mul_u32_u24 v5, 6144, v4
v_and_b32 v6, 7, v0
v_lshl_add_u32 v5, v6, 4, v5
v_add_u32 v5, s10, v5
v_add_u32 v7, 0x60000, v5
v_lshlrev_b32 v4, 1, v4
s_waitcnt lgkmcnt(0)
''')
    stamp(a, 1)
    a('''
global_load_dwordx4 v[8:11], v5, s[26:27]
global_load_dwordx4 v[20:23], v7, s[26:27]
global_load_dwordx4 v[16:19], v3, s[16:17]
global_load_ushort v12, v4, s[24:25]
global_load_ushort v13, v4, s[24:25] offset:128
''')
    a('''
v_lshlrev_b32 v7, 5, v6
v_lshrrev_b32 v14, 5, v2
v_lshl_add_u32 v7, v14, 4, v7
v_bfe_u32 v14, v2, 4, 1
v_lshl_add_u32 v7, v14, 3, v7
v_lshl_add_u32 v7, v1, 8, v7
s_waitcnt vmcnt(0)
''')
    stamp(a, 2)
    a('v_lshlrev_b32 v12, 16, v12')
    a('v_lshlrev_b32 v13, 16, v13')
    silu_bf16(a, 24, 12, 14)
    silu_bf16(a, 25, 13, 15)
    unpack(a, 40, 8, 4)
    unpack(a, 48, 20, 4)
    for i in range(8): a(f'v_mul_f32 v{40+i}, v{40+i}, v24')
    for i in range(8): a(f'v_fmac_f32 v{40+i}, v{48+i}, v25')
    for i in range(4): a(f'v_permlane32_swap_b32 v{40+i}, v{44+i}')
    for i in range(4): a(f'v_add_f32 v{40+i}, v{40+i}, v{44+i}')
    for i in range(2): a(f'v_permlane16_swap_b32 v{40+i}, v{42+i}')
    for i in range(2): a(f'v_add_f32 v{40+i}, v{40+i}, v{42+i}')
    for i in range(2): a(f'v_add_f32_dpp v{40+i}, v{40+i}, v{40+i} row_ror:8 row_mask:0xf bank_mask:0xf')
    a('''
ds_write_b64 v7, v[40:41]
s_branch K0_LN
K0_HI:
s_mov_b32 s33, 0x05040100
s_mov_b32 s34, 0x07060302
s_lshl_b32 s12, s4, 3
s_add_u32 s12, s12, s5
s_sub_u32 s12, s12, 24
s_lshl_b32 s13, s12, 1
s_and_b32 s14, s3, 1
s_add_u32 s13, s13, s14
s_cmp_ge_u32 s3, 2
s_cbranch_scc1 K0_NOTWQ
''')
    a('''
s_and_b32 s9, s13, 3
s_lshr_b32 s10, s13, 2
v_and_b32 v4, 31, v2
v_lshrrev_b32 v5, 5, v2
v_lshlrev_b32 v6, 13, v5
v_lshl_add_u32 v6, v4, 3, v6
s_lshl_b32 s11, s10, 14
s_lshl_b32 s15, s9, 8
s_add_u32 s11, s11, s15
s_add_u32 s11, s11, 4096
v_add_u32 v6, s11, v6
v_lshrrev_b32 v7, 3, v4
v_lshlrev_b32 v7, 15, v7
v_lshl_add_u32 v7, v5, 9, v7
v_and_b32 v8, 3, v4
v_lshl_add_u32 v7, v8, 7, v7
v_bfe_u32 v8, v4, 2, 1
v_lshl_add_u32 v7, v8, 6, v7
s_lshl_b32 s11, s9, 17
s_lshl_b32 s15, s10, 10
s_add_u32 s11, s11, s15
''')
    a(f's_add_u32 s11, s11, {WS_WQF}')
    a('''
v_add_u32 v7, s11, v7
s_waitcnt lgkmcnt(0)
s_branch K0_RL1024
K0_NOTWQ:
s_cmp_ge_u32 s3, 4
s_cbranch_scc1 K0_NOTWO
''')
    a('''
s_and_b32 s9, s13, 7
s_lshr_b32 s10, s13, 3
v_and_b32 v8, 15, v2
v_lshrrev_b32 v9, 4, v2
v_lshlrev_b32 v6, 13, v9
v_lshl_add_u32 v6, v8, 3, v6
s_lshl_b32 s11, s10, 15
s_lshl_b32 s15, s9, 7
s_add_u32 s11, s11, s15
s_add_u32 s11, s11, 4096
v_add_u32 v6, s11, v6
v_and_b32 v7, 3, v8
v_lshlrev_b32 v7, 14, v7
v_lshl_add_u32 v7, v9, 8, v7
v_lshrrev_b32 v8, 2, v8
v_lshl_add_u32 v7, v8, 6, v7
s_lshl_b32 s11, s9, 16
s_lshl_b32 s15, s10, 10
s_add_u32 s11, s11, s15
''')
    a(f's_add_u32 s11, s11, {WS_WOF}')
    a('''
v_add_u32 v7, s11, v7
s_waitcnt lgkmcnt(0)
s_mov_b32 s18, s36
s_mov_b32 s19, s37
K0_RL1024:
''')
    relay_load(a, 24, 6, 18, 1024)
    a('''
global_load_dwordx4 v[16:19], v3, s[16:17]
s_branch K0_RELAY
K0_NOTWO:
s_cmp_lg_u32 s3, 4
s_cbranch_scc1 K0_XONLY
s_cmp_ge_u32 s12, 8
s_cbranch_scc1 K0_XONLY
''')
    a('''
s_and_b32 s9, s12, 3
s_lshr_b32 s10, s12, 2
v_and_b32 v4, 3, v2
v_lshrrev_b32 v5, 2, v2
v_lshlrev_b32 v6, 8, v5
v_lshl_add_u32 v6, v4, 3, v6
s_lshl_b32 s11, s9, 12
v_add_u32 v6, s11, v6
v_lshrrev_b32 v8, 1, v4
v_and_b32 v9, 1, v4
v_lshl_add_u32 v8, v9, 1, v8
s_cmp_lg_u32 s10, 0
s_cselect_b64 s[30:31], -1, 0
v_cndmask_b32 v4, v4, v8, s[30:31]
v_lshlrev_b32 v7, 8, v5
v_lshl_add_u32 v7, v4, 6, v7
s_lshl_b32 s15, s10, 14
s_add_u32 s11, s11, s15
''')
    a(f's_add_u32 s11, s11, {WS_WKVF}')
    a('''
v_add_u32 v7, s11, v7
s_waitcnt lgkmcnt(0)
s_cmp_lg_u32 s10, 0
s_cselect_b32 s20, s22, s20
s_cselect_b32 s21, s23, s21
''')
    relay_load(a, 24, 6, 20, 32)
    a('global_load_dwordx4 v[16:19], v3, s[16:17]')
    a('K0_RELAY:')
    a('s_waitcnt vmcnt(0)')
    relay_perm(a, 56, 24, 33, 34)
    for c in range(4):
        a(f'global_store_dwordx4 v7, v[{56+4*c}:{59+4*c}], s[28:29] offset:{16*c}')
    a('''
s_branch K0_LN
K0_XONLY:
s_waitcnt lgkmcnt(0)
global_load_dwordx4 v[16:19], v3, s[16:17]
s_cmp_lg_u32 s3, 5
s_cbranch_scc1 K0_NOZ
s_cmp_ge_u32 s12, 17
s_cbranch_scc1 K0_NOZ
s_lshl_b32 s13, s12, 10
''')
    a(f's_add_u32 s13, s13, {WS_FLAG}')
    a('s_cmp_eq_u32 s12, 16')
    a(f's_cselect_b32 s13, {WS_XCC}, s13')
    a('v_lshl_add_u32 v7, v2, 4, s13')
    for i in range(4): a(f'v_mov_b32 v{24+i}, 0')
    a('''
global_store_dwordx4 v7, v[24:27], s[28:29]
K0_NOZ:
s_waitcnt vmcnt(0)
K0_LN:
''')
    stamp(a, 3)
    unpack(a, 48, 16, 4)
    a('''
v_add_f32 v44, v48, v49
v_add_f32 v45, v50, v51
v_add_f32 v46, v52, v53
v_add_f32 v47, v54, v55
v_add_f32 v44, v44, v45
v_add_f32 v46, v46, v47
v_add_f32 v44, v44, v46
''')
    a(f'v_mul_f32 v44, {f32(1/512)}, v44')
    a('''
s_cmp_ge_u32 s5, 24
s_cbranch_scc1 K0_LN2
s_waitcnt lgkmcnt(0)
s_barrier
s_cmp_lg_u32 s3, 0
s_cbranch_scc1 K0_LN2
v_lshlrev_b32 v20, 2, v2
''')
    for w in range(8):
        a(f'ds_read_b32 v{24+w}, v20 offset:{256*w}')
    a('''
s_mul_i32 s15, s9, 12288
s_lshl_b32 s10, s10, 1
s_add_u32 s15, s15, s10
v_add_u32 v21, s15, v20
s_waitcnt lgkmcnt(0)
v_add_f32 v24, v24, v25
v_add_f32 v26, v26, v27
v_add_f32 v28, v28, v29
v_add_f32 v30, v30, v31
v_add_f32 v24, v24, v26
v_add_f32 v28, v28, v30
v_add_f32 v24, v24, v28
''')
    a(f'global_store_dword v21, v24, s[28:29] offset:{WS_MODP}')
    a('K0_LN2:')
    dpp_reduce(a, [44])
    a('v_readlane_b32 s14, v44, 63')
    for i in range(8):
        a(f'v_subrev_f32 v{48+i}, s14, v{48+i}')
    a('v_mul_f32 v44, v48, v48')
    a('v_mul_f32 v45, v49, v49')
    for i in range(2, 8):
        a(f'v_fmac_f32 v{44+(i&1)}, v{48+i}, v{48+i}')
    a('v_add_f32 v44, v44, v45')
    a(f'v_mul_f32 v44, {f32(1/512)}, v44')
    dpp_reduce(a, [44])
    a(f'v_add_f32 v44, {f32(1e-5)}, v44')
    a('v_rsq_f32 v44, v44')
    a('s_lshl_b32 s15, s6, 3')
    a(f's_add_u32 s15, s15, {WS_STAT}')
    a('v_mov_b32 v21, s15')
    a('v_mul_f32 v45, s14, v44')
    a('v_sub_f32 v45, 0, v45')
    a('''
s_mov_b32 exec_lo, 0
s_mov_b32 exec_hi, 0x80000000
global_store_dwordx2 v21, v[44:45], s[28:29]
''')
    stamp(a, 6)
    prof_end(a, 0, 3, 28)
    a('K0_END2:')
    a('s_endpgm')
    return K
```

```python
from common import *
from k3 import gelu_ops, K1C

L_ONES = 131072
L_STAT = 131072
L_OX   = 147008
L_MODS = L_OX + 8448
L_GB   = 161792
L_END  = 163840
Q, C, S0, S1, P, O, KK, VA, VB = 16, 20, 36, 52, 68, 76, 92, 96, 100
XR, WO, NPRE = 104, 108, 36
E_ = lambda k, d: int(os.environ.get(k, str(d)))
PRIO_PERIOD, PRIO_HI = E_('PRIO_PERIOD', 8), E_('PRIO_HI', 6)
TOUCH, TSPAN, WOSTART = E_('TOUCH', 14), E_('TSPAN', 42), E_('WOSTART', 14)
FORCE_SLOW = E_('FORCE_SLOW', 0)
NP1 = E_('NP1', 2)
WD0 = E_('WD0', 8)
PRE = os.environ.get('PRE', 'ha')
ATF = os.environ.get('ATF', '')
DIAG = os.environ.get('DIAG', '')
LD = os.environ.get('LD', 'sc1')

def tile(a, t, side=()):
    side = list(side)
    def sd():
        if side: side.pop(0)()
    b = t & 1
    S = S1 if b else S0; SN = S0 if b else S1
    E = lambda i: a(f'v_exp_f32 v{S+i}, v{S+i}')
    Cv = lambda i: a(f'v_cvt_pk_bf16_f32 v{P+i}, v{S+2*i}, v{S+2*i+1}')
    E(0)
    a(f'v_cvt_pk_bf16_f32 v{P+7}, v{SN+14}, v{SN+15}')
    E(1); E(2); Cv(0)
    a('s_waitcnt lgkmcnt(2)')
    a(f'v_mfma_f32_32x32x16_bf16 v[{O}:{O+15}], v[{VB}:{VB+3}], v[{P+4}:{P+7}], v[{O}:{O+15}]')
    a(f'ds_read_b128 v[{VB}:{VB+3}], v9 offset:{t*2048+512}')
    E(3); E(4); Cv(1); sd(); E(5); E(6); Cv(2)
    a('s_waitcnt lgkmcnt(2)')
    a(f'v_mfma_f32_32x32x16_bf16 v[{SN}:{SN+15}], v[{KK}:{KK+3}], v[{Q}:{Q+3}], v[{C}:{C+15}]')
    a(f'ds_read_b128 v[{KK}:{KK+3}], v8 offset:{(t+2)*2048}')
    E(7); E(8); Cv(3); E(9); E(10)
    a('s_waitcnt lgkmcnt(2)')
    a(f'v_mfma_f32_32x32x16_bf16 v[{O}:{O+15}], v[{VA}:{VA+3}], v[{P}:{P+3}], v[{O}:{O+15}]')
    if t == 7:
        a('v_add_u32 v9, v9, v10')
        a(f'ds_read_b128 v[{VA}:{VA+3}], v9')
        a('v_add_u32 v8, 0x4000, v8')
    else:
        a(f'ds_read_b128 v[{VA}:{VA+3}], v9 offset:{(t+1)*2048}')
    Cv(4); E(11); E(12); Cv(5); sd(); E(13); E(14); Cv(6); E(15)
    while side: sd()

def publish(a, tag, voff, vone, soff, nyoung=0):
    a(f's_waitcnt vmcnt({nyoung})')
    a('s_mov_b64 exec, 1')
    a('s_cmp_lg_u32 s60, 0')
    a(f's_cbranch_scc1 M_PF{tag}')
    a('buffer_wbl2 sc1')
    a('s_waitcnt vmcnt(0)')
    a(f'buffer_store_dword v{vone}, v{voff}, s[20:23], {soff} offen sc0 sc1')
    a(f's_branch M_PX{tag}')
    a(f'M_PF{tag}:')
    a(f'buffer_store_dword v{vone}, v{voff}, s[20:23], {soff} offen')
    a(f'M_PX{tag}:')
    a('s_mov_b64 exec, -1')

def poll(a, tag, voff, vtmp, soff, code):
    a('s_mov_b32 s36, 0x80000')
    a(f'M_W{tag}:')
    a(f'buffer_load_dword v{vtmp}, v{voff}, s[20:23], {soff} offen sc1')
    a('s_waitcnt vmcnt(0)')
    a(f'v_cmp_ne_u32 vcc, 0, v{vtmp}')
    a('s_cmp_eq_u64 vcc, -1')
    a(f's_cbranch_scc1 M_G{tag}')
    a('s_sleep 2')
    a('s_sub_u32 s36, s36, 1')
    a('s_cmp_lg_u32 s36, 0')
    a(f's_cbranch_scc1 M_W{tag}')
    a(f'M_G{tag}:')
    a('s_cmp_lg_u32 s60, 0')
    a(f's_cbranch_scc1 M_A{tag}')
    a('buffer_inv sc1')
    a('s_waitcnt vmcnt(0)')
    a(f'M_A{tag}:')

def mega():
    K = Kernel('mega_kernel', 256, 512, L_END)
    a = K.a
    a('''
s_cmp_ge_u32 s2, 256
s_cbranch_scc1 M_END2
''')
    prof_init(a)
    a('''
s_load_dwordx2 s[30:31], s[0:1], 104
s_load_dwordx2 s[16:17], s[0:1], 0
s_load_dwordx2 s[56:57], s[0:1], 88
s_load_dwordx4 s[24:27], s[0:1], 48
s_load_dwordx2 s[28:29], s[0:1], 64
v_lshrrev_b32 v1, 6, v0
v_and_b32 v2, 63, v0
v_readfirstlane_b32 s3, v1
s_and_b32 s4, s2, 7
s_lshr_b32 s5, s2, 3
s_lshl_b32 s6, s4, 8
s_lshl_b32 s7, s5, 3
s_add_u32 s6, s6, s7
v_lshlrev_b32 v3, 4, v2
v_and_b32 v4, 31, v2
v_lshrrev_b32 v5, 5, v2
v_lshlrev_b32 v6, 5, v4
v_lshl_add_u32 v6, v5, 4, v6
s_add_u32 s9, s6, s3
s_lshl_b32 s9, s9, 10
''')
    a(f's_add_u32 s9, s9, {WS_Q}')
    a('''
v_mov_b32 v8, v3
v_lshl_add_u32 v9, v5, 4, v4
v_lshlrev_b32 v9, 4, v9
v_add_u32 v9, 0x400, v9
v_cmp_gt_u32 s[32:33], 16, v4
''')
    a(f'v_mov_b32 v11, {L_ONES+1024}')
    a('''
v_mov_b32 v12, 0x4000
v_and_b32 v13, 27, v4
v_cmp_eq_u32 s[34:35], 16, v13
v_add_u32 v13, 16, v11
v_cndmask_b32 v13, v13, v11, s[34:35]
v_cndmask_b32 v9, v13, v9, s[32:33]
v_cndmask_b32 v10, 0, v12, s[32:33]
v_lshrrev_b32 v12, 1, v2
v_lshlrev_b32 v12, 11, v12
v_and_b32 v13, 1, v2
v_lshl_add_u32 v12, v13, 9, v12
v_add_u32 v12, v12, v11
''')
    for i in range(4): a(f'v_mov_b32 v{VA+i}, 0x3f803f80')
    for i in range(4): a(f'v_mov_b32 v{VB+i}, 0')
    a('s_mov_b64 exec, 0xffff')
    a(f'ds_write_b128 v12, v[{VA}:{VA+3}]')
    a(f'ds_write_b128 v12, v[{VB}:{VB+3}] offset:16')
    a('s_mov_b64 exec, -1')
    a('''
s_lshl_b32 s63, s3, 10
s_mov_b32 s10, s63
s_lshl_b32 s11, s5, 12
s_add_u32 s11, s11, s10
s_and_b32 s11, s11, 0x1ffff
s_waitcnt lgkmcnt(0)
''')
    srd(a, 20, 30, WS_END)
    a(f'buffer_load_dwordx4 v[{Q}:{Q+3}], v6, s[20:23], s9 offen')
    def dma(i):
        a('s_mov_b32 m0, s10')
        a(f's_add_u32 s12, s11, {WS_KVF}')
        a('buffer_load_dwordx4 v3, s[20:23], s12 offen lds')
        if i < 15:
            a('s_add_u32 s10, s10, 8192')
            a('s_add_u32 s11, s11, 8192')
            a('s_and_b32 s11, s11, 0x1ffff')
    for i in range(3): dma(i)
    for i in range(16): a(f'v_mov_b32 v{O+i}, 0')
    for i in range(4): a(f'v_mov_b32 v{P+4+i}, 0')
    a(f'v_mov_b32 v{S1+14}, 0')
    a(f'v_mov_b32 v{S1+15}, 0')
    a('s_waitcnt vmcnt(0)')
    a('s_barrier')
    stamp(a, 1)
    dma(3)
    a(f'ds_read_b128 v[{KK}:{KK+3}], v8')
    a('s_waitcnt lgkmcnt(0)')
    a(f'v_mfma_f32_32x32x16_bf16 v[{S0}:{S0+15}], v[{KK}:{KK+3}], v[{Q}:{Q+3}], 0')
    a(f'v_max3_f32 v12, v{S0}, v{S0+1}, v{S0+2}')
    a(f'v_max3_f32 v13, v{S0+3}, v{S0+4}, v{S0+5}')
    for i in range(6, 16, 4):
        a(f'v_max3_f32 v12, v12, v{S0+i}, v{S0+i+1}')
        if i + 2 < 16: a(f'v_max3_f32 v13, v13, v{S0+i+2}, v{S0+i+3}')
    a('''
v_max_f32 v12, v12, v13
v_mov_b32 v13, v12
v_permlane32_swap_b32 v12, v13
v_max_f32 v12, v12, v13
''')
    for i in range(16): a(f'v_sub_f32 v{C+i}, 0, v12')
    a(f'v_mfma_f32_32x32x16_bf16 v[{S0}:{S0+15}], v[{KK}:{KK+3}], v[{Q}:{Q+3}], v[{C}:{C+15}]')
    a(f'ds_read_b128 v[{KK}:{KK+3}], v8 offset:2048')
    a(f'ds_read_b128 v[{VA}:{VA+3}], v9')
    a('s_nop 7')

    nvm = [0]
    def wo_ld(f, reg):
        ks, c = f >> 2, f & 3
        a(f's_add_u32 s12, s13, {c*16384 + ks*1024}')
        a(f'buffer_load_dwordx4 v[{reg}:{reg+3}], v3, s[20:23], s12 offen')
        nvm[0] += 1
    def wo_dma(f, ldsoff):
        ks, c = f >> 2, f & 3
        a(f's_add_u32 s10, s53, {ldsoff}')
        a('s_mov_b32 m0, s10')
        a(f's_add_u32 s12, s13, {c*16384 + ks*1024}')
        a('buffer_load_dwordx4 v3, s[20:23], s12 offen lds')
        nvm[0] += 1
    def ev_addr():
        a('''
v_and_b32 v13, 7, v2
v_add_u32 v13, s6, v13
v_lshlrev_b32 v14, 10, v13
v_lshrrev_b32 v15, 3, v2
v_lshl_add_u32 v14, v15, 4, v14
s_lshl_b32 s12, s3, 7
v_add_u32 v14, s12, v14
v_lshlrev_b32 v7, 4, v0
s_lshl_b32 s13, s3, 16
s_lshr_b32 s53, s3, 2
s_lshl_b32 s53, s53, 5
s_and_b32 s12, s3, 3
s_add_u32 s53, s53, s12
s_mul_i32 s62, s53, 28672
s_lshl_b32 s53, s53, 10
s_lshl_b32 s12, s5, 7
s_add_u32 s62, s62, s12
''')
        a(f's_add_u32 s13, s13, {WS_WOF}')
        a(f'global_load_dwordx4 v[{XR}:{XR+3}], v14, s[16:17]')
    def ev_xcc():
        a('''
s_getreg_b32 s58, hwreg(HW_REG_XCC_ID)
s_and_b32 s58, s58, 7
s_mul_i32 s58, s58, 6
s_lshl_b32 s59, s4, 7
''')
        a(f's_add_u32 s59, s59, {WS_XCC}')
        a('''
s_cmp_lg_u32 s3, 0
s_cbranch_scc1 M_NOX
s_lshl_b64 s[36:37], 1, s58
s_or_b32 s37, s37, 0x10000
v_mov_b32 v12, s36
v_mov_b32 v13, s37
v_mov_b32 v15, 0
s_mov_b64 exec, 1
buffer_atomic_add_x2 v[12:13], v15, s[20:23], s59 offen sc1
s_mov_b64 exec, -1
M_NOX:
''')
    xmark = [0]
    def ev_xld():
        a('v_mov_b32 v15, 0')
        a('buffer_load_dwordx2 v[12:13], v15, s[20:23], s59 offen sc1')
        xmark[0] = nvm[0]
    def ev_xchk():
        a(f's_waitcnt vmcnt({nvm[0] - xmark[0]})')
        a('''
s_mov_b32 s38, 0x80000
M_XW:
v_readfirstlane_b32 s36, v12
v_readfirstlane_b32 s37, v13
s_lshr_b32 s39, s37, 16
s_cmp_eq_u32 s39, 32
s_cbranch_scc1 M_XG
s_sleep 1
buffer_load_dwordx2 v[12:13], v15, s[20:23], s59 offen sc1
s_waitcnt vmcnt(0)
s_sub_u32 s38, s38, 1
s_cmp_lg_u32 s38, 0
s_cbranch_scc1 M_XW
M_XG:
s_lshr_b64 s[36:37], s[36:37], s58
s_and_b32 s36, s36, 63
s_cmp_eq_u32 s36, 32
''')
        a(f's_cselect_b32 s60, {0 if FORCE_SLOW else 1}, 0')
        a('s_lshl_b32 s61, s4, 11')
        a(f's_add_u32 s61, s61, {WS_FLAG}')
    def modld(p):
        def f():
            a(f's_mov_b32 s12, {WS_MODP + 4096 + p*12288}')
            a(f'buffer_load_dwordx4 v[{224+4*p}:{227+4*p}], v7, s[20:23], s12 offen')
        return f
    def ev_mod():
        a('s_waitcnt vmcnt(0)')
        for i in range(4):
            a(f'v_add_f32 v{224+i}, v{224+i}, v{228+i}')
            a(f'v_add_f32 v{232+i}, v{232+i}, v{236+i}')
        for i in range(4): a(f'v_add_f32 v{224+i}, v{224+i}, v{232+i}')
        a('v_cvt_pk_bf16_f32 v228, v224, v225')
        a('v_cvt_pk_bf16_f32 v229, v226, v227')
        unpack(a, 224, 228, 2)
        a('''
s_lshr_b32 s12, s3, 1
s_cmp_lg_u32 s12, 2
s_cbranch_scc1 M_NOADD
''')
        for i in range(4): a(f'v_add_f32 v{224+i}, 1.0, v{224+i}')
        a('v_cvt_pk_bf16_f32 v228, v224, v225')
        a('v_cvt_pk_bf16_f32 v229, v226, v227')
        unpack(a, 224, 228, 2)
        a('M_NOADD:')
        a('s_cmp_ge_u32 s3, 6')
        a(f's_cselect_b32 s12, {L_GB - 6144}, {L_MODS}' if False else f's_mov_b32 s12, {L_MODS}')
        a(f's_cselect_b32 s12, {L_GB - 6144}, s12')
        a('v_add_u32 v13, s12, v7')
        a('ds_write_b128 v13, v[224:227]')
    def prio(p, tag):
        def f():
            a('s_cmp_lt_u32 s3, 4')
            a(f's_cbranch_scc1 M_P{tag}')
            a(f's_setprio {p}')
            a(f'M_P{tag}:')
        return f
    def touch_setup():
        a('s_mul_i32 s54, s5, 57344')
        a('v_lshlrev_b32 v11, 7, v2')
        srd(a, 64, 24, 1835008)
        srd(a, 68, 26, 1835008)
        srd(a, 72, 28, 1835008)
    def touch(u):
        def f():
            mat, k = u // 7, u % 7
            a(f's_cmp_lg_u32 s3, {u & 7}')
            a(f's_cbranch_scc1 M_T{u}')
            a(f's_add_u32 s55, s54, {k*8192}')
            a(f'buffer_load_dword v1, v11, s[{64+4*mat}:{67+4*mat}], s55 offen')
            a(f'M_T{u}:')
        return f
    side = {T: [] for T in range(64)}
    for i in range(4, 16): side[(i-4)//2].append(lambda i=i: dma(i))
    side[14].append(ev_xcc)
    side[8].append('vbar')
    side[9].append(ev_addr)
    for p in range(4): side[10 + (p >> 1)].append(modld(p))
    side[13].append(ev_mod)
    side[12].append(touch_setup)
    regf = list(range(NPRE)) + [50]
    treg = {f: WO + 4*f for f in range(NPRE)}; treg[50] = 252
    for k, f in enumerate(regf): side[WOSTART + k*(60 - WOSTART)//37].append(lambda f=f: wo_ld(f, treg[f]))
    side[33].append('bar')
    for i in range(8): side[34 + 2*i].append(lambda i=i: wo_dma(NPRE + i, i*4096))
    side[60].append('bar')
    for i in range(6): side[61 + i//2].append(lambda i=i: wo_dma(NPRE + 8 + i, 65536 + i*4096))
    for u in range(14): side[TOUCH + u*TSPAN//14].append(touch(u))
    def touch_wd():
        a('s_cmp_lg_u32 s3, 7')
        a('s_cbranch_scc1 M_TD')
        a('s_mul_i32 s55, s2, 7168')
        a('buffer_load_dword v1, v11, s[72:75], s55 offen')
        a('M_TD:')
    side[16].append(touch_wd)
    def preown():
        a("""
s_lshr_b32 s12, s6, 5
s_lshl_b32 s12, s12, 15
s_and_b32 s36, s6, 31
s_lshl_b32 s36, s36, 4
s_add_u32 s12, s12, s36
s_lshl_b32 s36, s3, 12
s_add_u32 s12, s12, s36
v_lshrrev_b32 v7, 3, v2
v_lshlrev_b32 v7, 9, v7
v_and_b32 v0, 7, v2
v_lshl_add_u32 v7, v0, 4, v7
""")
        a(f's_add_u32 s12, s12, {WS_H2F}')
        if 'L' in PRE:
            a(f'buffer_load_dword v1, v7, s[20:23], s12 offen')
            a(f'global_load_dword v1, v14, s[56:57]')
        else:
            a(f'buffer_store_dwordx4 v[{Q}:{Q+3}], v7, s[20:23], s12 offen')
            a(f'global_store_dwordx4 v14, v[{Q}:{Q+3}], s[56:57]')
        nvm[0] += 2
    def preown2():
        a("""
s_lshl_b32 s36, s4, 3
s_add_u32 s36, s36, s3
s_mul_i32 s36, s36, 0x1c000
s_min_u32 s37, s5, 27
s_lshl_b32 s37, s37, 12
s_add_u32 s36, s36, s37
""")
        a(f's_add_u32 s36, s36, {WS_ACTF}')
        if 'L' in PRE:
            a('v_lshlrev_b32 v13, 6, v2')
            a(f'buffer_load_dword v1, v13, s[20:23], s36 offen')
            nvm[0] += 1
        else:
            a('s_cmp_ge_u32 s5, 28')
            a('s_cbranch_scc1 M_NPO')
            for c in range(4): a(f'buffer_store_dwordx4 v[{Q}:{Q+3}], v3, s[20:23], s36 offen offset:{c*1024}')
            a('M_NPO:')
    if 'h' in PRE: side[E_('PREH', 40)].append(preown)
    def act_touch(w):
        def f():
            a(f's_cmp_lg_u32 s3, {w}')
            a(f's_cbranch_scc1 M_AT{w}')
            a("""
s_lshl_b32 s36, s4, 3
s_add_u32 s36, s36, s3
s_mul_i32 s36, s36, 0x1c000
s_min_u32 s37, s5, 27
s_lshl_b32 s37, s37, 12
s_add_u32 s36, s36, s37
s_mov_b32 exec_hi, 0
""")
            a(f's_add_u32 s36, s36, {WS_ACTF}')
            a(f'buffer_load_dword v1, v11, s[20:23], s36 offen {ATF}')
            a('s_mov_b64 exec, -1')
            a(f'M_AT{w}:')
        return f
    if 'a' in PRE:
        for w in range(8): side[E_('AT0', 16) + w*E_('ATS', 5)].append(act_touch(w))
    side[44].append(ev_xld)
    side[59].append(ev_xchk)
    for T in range(0, 64, PRIO_PERIOD):
        side[T].insert(0, prio(1, f'a{T}'))
        side[T + PRIO_HI].insert(0, prio(0, f'b{T}'))
    for T in range(64):
        tile(a, T & 7, [x for x in side[T] if not isinstance(x, str)])
        if 'vbar' in side[T]: a('s_waitcnt vmcnt(0)')
        if 'vbar' in side[T] or 'bar' in side[T]: a('s_barrier')

    stamp(a, 2)
    a('s_setprio 0')
    a(f'v_cvt_pk_bf16_f32 v{P+7}, v{S1+14}, v{S1+15}')
    a('s_waitcnt lgkmcnt(0)')
    a(f'v_mfma_f32_32x32x16_bf16 v[{O}:{O+15}], v[{VB}:{VB+3}], v[{P+4}:{P+7}], v[{O}:{O+15}]')
    a(f'v_add_f32 v12, |v{O}|, |v{O+1}|')
    a(f'v_add_f32 v13, |v{O+2}|, |v{O+3}|')
    a(f'v_add_f32 v12, v12, |v{O+4}|')
    a(f'v_add_f32 v13, v13, |v{O+5}|')
    a(f'v_add_f32 v12, v12, |v{O+6}|')
    a(f'v_add_f32 v13, v13, |v{O+7}|')
    a(f'v_add_f32 v12, v12, v{O+8}')
    a('v_add_f32 v12, v12, v13')
    a('s_mov_b32 s12, 0x7e800000')
    a('v_cmp_gt_f32 vcc, s12, v12')
    a('s_cmp_eq_u64 vcc, -1')
    a('s_cbranch_scc0 M_SLOW')
    a('M_FIN:')
    ACC = S1
    ring = [KK, VA, VB, Q]
    a(f'v_rcp_f32 v12, v{O+8}')
    for i in range(8): a(f'v_mul_f32 v{O+i}, v{O+i}, v12')
    for i in range(4): a(f'v_cvt_pk_bf16_f32 v{P+i}, v{O+2*i}, v{O+2*i+1}')
    a('s_mul_i32 s12, s3, 1056')
    a(f's_add_u32 s12, s12, {L_OX}')
    a('v_add_u32 v12, s12, v6')
    a(f'ds_write_b128 v12, v[{P}:{P+3}]')
    late = [C, C+4, C+8, C+12, S0, S0+4, S0+8, S0+12]
    freg = dict(treg)
    nxt = 51
    order = []
    for r in late:
        freg[nxt] = r; wo_ld(nxt, r); order.append(nxt); nxt += 1
    a('''
v_and_b32 v13, 7, v2
v_mul_u32_u24 v13, 1056, v13
v_lshrrev_b32 v15, 4, v2
v_lshl_add_u32 v13, v15, 4, v13
''')
    a(f'v_add_u32 v13, {L_OX}, v13')
    a('v_add_u32 v8, s53, v3')
    a('v_add_u32 v9, 0x10000, v8')
    a('''
v_lshrrev_b32 v10, 3, v2
v_mul_u32_u24 v4, 3584, v10
v_and_b32 v11, 7, v2
v_and_b32 v10, 2, v10
v_xor_b32 v11, v11, v10
v_lshl_add_u32 v4, v11, 4, v4
v_xor_b32 v5, 64, v4
s_cmp_ge_u32 s5, 28
s_cselect_b32 s66, 0, s66
s_cselect_b32 s70, 0, s70
s_waitcnt lgkmcnt(0)
s_barrier
''')
    stamp(a, 3)
    def w1dma(mat, g):
        a(f's_add_u32 s36, s53, {mat*65536 + g*4096}')
        a('s_mov_b32 m0, s36')
        a(f's_add_u32 s37, s62, {0 if "d" in DIAG else g*4*28672}')
        a(f'buffer_load_dwordx4 v{4+mat}, s[{64+4*mat}:{67+4*mat}], s37 offen lds')
        order.append(('d', mat, g))
    w1q = [(m, g) for g in range(8) for m in range(2)]
    lg = []
    def lrd_b(ks):
        a(f'ds_read_b128 v[{ring[ks&3]}:{ring[ks&3]+3}], v13 offset:{64*ks}'); lg.append(('b', ks))
    def lrd_w(f, r):
        i = f - NPRE
        vv, off = (8, i*4096) if i < 8 else (9, (i-8)*4096)
        a(f'ds_read_b128 v[{r}:{r+3}], v{vv} offset:{off}'); lg.append(('w', f)); freg[f] = r
    for ks in range(4): lrd_b(ks)
    nl = NPRE
    for ks in range(16):
        br = ring[ks & 3]
        for c in range(4):
            f = 4*ks + c
            w = []
            need = [lg.index(('b', ks))] if c == 0 else []
            if ('w', f) in lg: need.append(lg.index(('w', f)))
            if need: w.append(f'lgkmcnt({min(15, len(lg) - max(need) - 1)})')
            if f in order: w.append(f'vmcnt({len(order) - order.index(f) - 1})')
            elif f == 0: w.append(f'vmcnt({len(order)})')
            if w: a('s_waitcnt ' + ' '.join(w))
            r = freg[f]
            cc = '0' if ks == 0 else f'v[{ACC+4*c}:{ACC+4*c+3}]'
            a(f'v_mfma_f32_16x16x32_bf16 v[{ACC+4*c}:{ACC+4*c+3}], v[{r}:{r+3}], v[{br}:{br+3}], {cc}')
            if nxt < 64:
                freg[nxt] = r; wo_ld(nxt, r); order.append(nxt); nxt += 1
            elif nl < 50:
                lrd_w(nl, r); nl += 1
        if ks + 4 < 16: lrd_b(ks + 4)
    stamp(a, 4)
    a('s_cmp_ge_u32 s3, 4')
    a('s_cbranch_scc1 M_NOD1')
    for x in w1q: w1dma(*x)
    a('M_NOD1:')
    G, SB, CB, X = 184, 192, 200, 208
    a('''
v_lshrrev_b32 v15, 3, v2
v_lshlrev_b32 v15, 5, v15
s_lshl_b32 s12, s3, 8
''')
    a(f's_add_u32 s12, s12, {L_MODS}')
    a('v_add_u32 v15, s12, v15')
    for i, r in enumerate((G, SB, CB)):
        a(f'ds_read_b128 v[{r}:{r+3}], v15 offset:{2048*i}')
        a(f'ds_read_b128 v[{r+4}:{r+7}], v15 offset:{2048*i+16}')
    unpack(a, X, XR, 4)
    a('v_and_b32 v12, 8, v2')
    a('v_cmp_eq_u32 s[34:35], 0, v12')
    for i in range(8): a(f'v_cndmask_b32 v{ACC+i}, v{ACC+8+i}, v{ACC+i}, s[34:35]')
    a('s_waitcnt lgkmcnt(0)')
    for i in range(8): a(f'v_fmac_f32 v{X+i}, v{ACC+i}, v{G+i}')
    for i in range(4): a(f'v_cvt_pk_bf16_f32 v{XR+i}, v{X+2*i}, v{X+2*i+1}')
    a(f'global_store_dwordx4 v14, v[{XR}:{XR+3}], s[56:57]')
    unpack(a, X, XR, 4)
    def red(r, t):
        a(f'v_add_f32_dpp v{r}, v{r}, v{r} row_ror:8 row_mask:0xf bank_mask:0xf')
        a(f'v_mov_b32 v{t}, v{r}')
        a(f'v_permlane16_swap_b32 v{r}, v{t}')
        a(f'v_add_f32 v{r}, v{r}, v{t}')
        a(f'v_mov_b32 v{t}, v{r}')
        a(f'v_permlane32_swap_b32 v{r}, v{t}')
        a(f'v_add_f32 v{r}, v{r}, v{t}')
    M, D, ST = 216, 220, 228
    a(f'v_add_f32 v{M}, v{X}, v{X+1}')
    a(f'v_add_f32 v{M+1}, v{X+2}, v{X+3}')
    a(f'v_add_f32 v{M+2}, v{X+4}, v{X+5}')
    a(f'v_add_f32 v{M+3}, v{X+6}, v{X+7}')
    a(f'v_add_f32 v{M}, v{M}, v{M+1}')
    a(f'v_add_f32 v{M+2}, v{M+2}, v{M+3}')
    a(f'v_add_f32 v{M}, v{M}, v{M+2}')
    red(M, M+2)
    a(f'v_mul_f32 v{M}, {f32(1/64)}, v{M}')
    for i in range(8): a(f'v_sub_f32 v{D+i}, v{X+i}, v{M}')
    a(f'v_mul_f32 v{M+1}, v{D}, v{D}')
    a(f'v_mul_f32 v{M+2}, v{D+1}, v{D+1}')
    for i in range(2, 8): a(f'v_fmac_f32 v{M+1+(i&1)}, v{D+i}, v{D+i}')
    a(f'v_add_f32 v{M+1}, v{M+1}, v{M+2}')
    red(M+1, M+2)
    a('''
v_and_b32 v12, 7, v2
v_lshlrev_b32 v12, 6, v12
''')
    a(f'v_add_u32 v12, {L_STAT}, v12')
    a('s_lshl_b32 s12, s3, 3')
    a('v_add_u32 v13, s12, v12')
    a('s_mov_b64 exec, 0xff')
    a(f'ds_write_b64 v13, v[{M}:{M+1}]')
    a('s_mov_b64 exec, -1')
    a('''
s_lshr_b32 s12, s6, 5
s_lshl_b32 s12, s12, 15
s_and_b32 s14, s6, 31
s_lshl_b32 s14, s14, 4
s_add_u32 s12, s12, s14
s_lshl_b32 s14, s3, 12
s_add_u32 s12, s12, s14
''')
    a(f's_add_u32 s12, s12, {WS_H2F}')
    a('''
v_lshrrev_b32 v13, 3, v2
v_lshlrev_b32 v13, 9, v13
v_and_b32 v15, 7, v2
v_lshl_add_u32 v13, v15, 4, v13
s_waitcnt lgkmcnt(0)
s_barrier
''')
    for i in range(4): a(f'ds_read_b128 v[{ST+4*i}:{ST+4*i+3}], v12 offset:{16*i}')
    a('s_waitcnt lgkmcnt(0)')
    a(f'v_add_f32 v{M}, v{ST}, v{ST+2}')
    a(f'v_add_f32 v{M+1}, v{ST+1}, v{ST+3}')
    for i in range(2, 8):
        a(f'v_add_f32 v{M}, v{M}, v{ST+2*i}')
        a(f'v_add_f32 v{M+1}, v{M+1}, v{ST+2*i+1}')
    a(f'v_mul_f32 v{M}, {f32(1/8)}, v{M}')
    for i in range(8): a(f'v_sub_f32 v{ST+2*i}, v{ST+2*i}, v{M}')
    a(f'v_mul_f32 v{M+2}, v{ST}, v{ST}')
    for i in range(1, 8): a(f'v_fmac_f32 v{M+2}, v{ST+2*i}, v{ST+2*i}')
    a(f'v_mul_f32 v{M+1}, {f32(1/512)}, v{M+1}')
    a(f'v_fmac_f32 v{M+1}, {f32(1/8)}, v{M+2}')
    a(f'v_add_f32 v{M+1}, {f32(1e-5)}, v{M+1}')
    a(f'v_rsq_f32 v{M+1}, v{M+1}')
    for i in range(8): a(f'v_sub_f32 v{X+i}, v{X+i}, v{M}')
    for i in range(8): a(f'v_mul_f32 v{CB+i}, v{CB+i}, v{M+1}')
    for i in range(8): a(f'v_fmac_f32 v{SB+i}, v{X+i}, v{CB+i}')
    for i in range(4): a(f'v_cvt_pk_bf16_f32 v{D+i}, v{SB+2*i}, v{SB+2*i+1}')
    a(f'buffer_store_dwordx4 v[{D}:{D+3}], v13, s[20:23], s12 offen')
    stamp(a, 5)
    a('''
s_lshl_b32 s12, s5, 3
s_add_u32 s12, s12, s3
s_lshl_b32 s12, s12, 2
v_mov_b32 v6, s12
v_mov_b32 v7, 1
v_bfe_u32 v16, v2, 4, 1
v_lshlrev_b32 v12, 16, v16
v_lshrrev_b32 v17, 5, v2
v_lshl_add_u32 v12, v17, 10, v12
v_bfe_u32 v17, v2, 2, 2
v_lshl_add_u32 v12, v17, 7, v12
v_bfe_u32 v13, v2, 1, 1
v_lshl_add_u32 v12, v13, 3, v12
v_and_b32 v13, 1, v2
v_and_b32 v17, 2, v17
v_xor_b32 v13, v13, v17
v_lshlrev_b32 v16, 2, v16
v_xor_b32 v13, v13, v16
v_lshl_add_u32 v8, v13, 4, v12
v_xor_b32 v9, 32, v8
v_xor_b32 v10, 64, v8
v_xor_b32 v11, 0x60, v8
s_lshl_b32 s11, s4, 3
s_add_u32 s11, s11, s3
s_mul_i32 s14, s11, 0x1c000
s_lshl_b32 s11, s11, 15
s_lshl_b32 s13, s5, 12
s_add_u32 s14, s14, s13
v_and_b32 v12, 31, v2
s_lshl_b32 s13, s3, 7
v_lshl_add_u32 v12, v12, 2, s13
''')
    a(f'v_mov_b32 v15, {f32(K1C)}')
    a(f's_add_u32 s11, s11, {WS_H2F}')
    a(f's_add_u32 s14, s14, {WS_ACTF}')
    publish(a, 1, 6, 7, 's61')
    a('s_cmp_lt_u32 s3, 4')
    a('s_cbranch_scc1 M_NOD2')
    for x in w1q: w1dma(*x)
    a('M_NOD2:')
    GB = 56
    a("""
s_and_b32 s15, s5, 7
s_lshl_b32 s17, s15, 1
s_and_b32 s6, s3, 1
s_add_u32 s17, s17, s6
s_lshl_b32 s17, s17, 2
s_lshr_b32 s8, s3, 2
s_add_u32 s17, s17, s8
s_lshl_b32 s17, s17, 4
s_lshl_b32 s38, s17, 1
v_lshrrev_b32 v16, 5, v2
""")
    a(f's_add_u32 s38, s38, {L_GB}')
    a('v_lshl_add_u32 v16, v16, 6, s38')
    a(f'ds_read_b128 v[{GB}:{GB+3}], v16')
    a(f'ds_read_b128 v[{GB+4}:{GB+7}], v16 offset:16')
    a("""
v_lshrrev_b32 v16, 3, v2
v_and_b32 v17, 7, v2
v_and_b32 v18, 2, v16
v_lshlrev_b32 v18, 1, v18
v_xor_b32 v17, v17, v18
v_lshlrev_b32 v14, 10, v16
v_lshl_add_u32 v14, v17, 4, v14
s_lshl_b32 s10, s15, 7
s_lshl_b32 s16, s3, 13
s_add_u32 s10, s10, s16
s_lshr_b32 s9, s5, 3
s_mul_i32 s13, s9, 2
s_add_u32 s13, s13, s15
s_cmp_ge_u32 s13, 14
s_cselect_b32 s38, 14, 0
s_sub_u32 s13, s13, s38
s_mov_b32 s39, s13
""")
    WSLOT = [131072, 147456, 0, 16384, 65536, 81920]
    ASLOT = [32768, 49152, 98304, 114688]
    def nxt_stage(r):
        a(f's_add_u32 s{r}, s{r}, 1')
        a(f's_cmp_eq_u32 s{r}, 14')
        a(f's_cselect_b32 s{r}, 0, s{r}')
    def wd_dma(s, k):
        if k == 0:
            a('s_lshl_b32 s18, s13, 17')
            a('s_add_u32 s18, s18, s10')
        a(f's_add_u32 s16, s63, {WSLOT[s % 6] + k*8192}')
        a('s_mov_b32 m0, s16')
        if k: a('s_add_u32 s18, s18, 0x10000')
        a('buffer_load_dwordx4 v14, s[72:75], s18 offen lds')
        if k and s < 13: nxt_stage(13)
    a('s_cmp_ge_u32 s5, 28')
    a('s_cbranch_scc1 M_SPARE')
    poll(a, 1, 12, 13, 's61', 1)
    stamp(a, 6)

    BREG, AC1, AR, NR, LOOK = 128, 64, 32, 6, 4
    KS = E_('KS', 20)
    def rd(c, ks, reg):
        a(f'ds_read_b64_tr_b16 v[{reg}:{reg+1}], v{8+c} offset:{ks*2048}')
        a(f'ds_read_b64_tr_b16 v[{reg+2}:{reg+3}], v{8+c} offset:{ks*2048+512}')
    def store(c, reg):
        a(f'buffer_store_dwordx4 v[{reg}:{reg+3}], v3, s[20:23], s14 offen offset:{c*1024}')
    def epi(c):
        o = []
        for i in range(4): o += gelu_ops(AC1+16*c, AC1+16*c+8, 16 + 2*(i & 1), 24 + 4*(c & 1), i)
        o.append(('STORE', c))
        return o
    def emit(o):
        if isinstance(o, tuple): store(o[1], 24 + 4*(o[1] & 1))
        else: a(o)
    def f2_setup():
        a("""
s_bfe_u32 s7, s3, 0x10001
v_lshrrev_b32 v16, 5, v2
v_lshlrev_b32 v8, 10, v16
v_bfe_u32 v17, v2, 2, 2
v_lshl_add_u32 v8, v17, 7, v8
v_bfe_u32 v5, v2, 1, 1
v_lshl_add_u32 v8, v5, 3, v8
v_and_b32 v5, 1, v2
v_lshlrev_b32 v5, 1, v5
v_bfe_u32 v9, v2, 4, 1
v_add_u32 v5, v5, v9
v_and_b32 v17, 2, v17
v_lshl_add_u32 v5, v17, 1, v5
s_lshl_b32 s38, s6, 2
v_xor_b32 v5, s38, v5
v_lshl_add_u32 v8, v5, 4, v8
s_lshl_b32 s38, s8, 13
v_add_u32 v8, s38, v8
v_add_u32 v9, 0x10000, v8
v_add_u32 v13, 0x20000, v8
s_lshl_b32 s38, s7, 13
s_lshl_b32 s40, s8, 12
s_add_u32 s38, s38, s40
v_add_u32 v10, s38, v3
v_add_u32 v11, 0x10000, v10
s_lshl_b32 s40, s4, 2
s_add_u32 s40, s40, s9
s_mul_i32 s11, s40, 0x38000
s_add_u32 s11, s11, s63
""")
        a(f's_add_u32 s11, s11, {WS_ACTF}')
        a("""
s_lshl_b32 s40, s40, 1
s_add_u32 s40, s40, s7
s_lshl_b32 s40, s40, 15
s_add_u32 s40, s40, s17
v_and_b32 v12, 31, v2
v_min_u32 v5, 27, v12
v_lshlrev_b32 v12, 10, v12
v_lshl_add_u32 v12, v16, 5, v12
v_add_u32 v12, s40, v12
s_lshl_b32 s38, s3, 11
v_add_u32 v4, s38, v3
s_xor_b32 s38, s38, 0x2000
v_add_u32 v15, s38, v3
v_lshl_add_u32 v5, v16, 5, v5
s_lshl_b32 s38, s9, 8
s_add_u32 s38, s38, 1024
v_lshl_add_u32 v5, v5, 2, s38
""")
    SPAN = E_('F1SPAN', 52)
    def wd_dma4(s_, k):
        if k == 0:
            a('s_lshl_b32 s18, s13, 17')
            a('s_add_u32 s18, s18, s10')
        a(f's_add_u32 s16, s63, {WSLOT[s_ % 6] + k*4096}')
        a('s_mov_b32 m0, s16')
        if k: a('s_add_u32 s18, s18, 0x8000')
        a('buffer_load_dwordx4 v14, s[72:75], s18 offen lds')
        if k == 3: nxt_stage(13)
    def tail(c):
        A3 = AC1 + 16*c
        out = 24 + 4*(c & 1)
        seqs = [[o for o in gelu_ops(A3, A3+8, 16 + 2*i, out, i) if o != 's_nop 0'] for i in range(4)]
        for k in range(0, len(seqs[0]), 2):
            for s_ in seqs:
                for o in s_[k:k+2]: a(o)
        store(c, out)
    seq = [(c, ks) for ks in range(16) for c in range(4)] + [(c, ks) for c in range(4) for ks in range(16, 32)]
    def step(n, wv=''):
        c, ks = seq[n]
        if n + LOOK < len(seq): rd(*seq[n + LOOK], AR + 4*((n + LOOK) % NR))
        a(f's_waitcnt lgkmcnt({2*(min(len(seq)-1, n+LOOK) - n)}){wv}')
        cc = '0' if ks == 0 else f'v[{AC1+16*c}:{AC1+16*c+15}]'
        r = AR + 4*(n % NR)
        a(f'v_mfma_f32_32x32x16_bf16 v[{AC1+16*c}:{AC1+16*c+15}], v[{r}:{r+3}], v[{BREG+4*ks}:{BREG+4*ks+3}], {cc}')
        if 'f' in DIAG and n in (0, 32, 63, 96, 127): stamp(a, 1 + (0, 32, 63, 96, 127).index(n))
    def half1(young):
        vm = []
        def bld(ks):
            if ks & 3 == 0 and ks: a('s_add_u32 s11, s11, 4096')
            a(f'buffer_load_dwordx4 v[{BREG+4*ks}:{BREG+4*ks+3}], v3, s[20:23], s11 offen offset:{(ks&3)*1024} {LD}')
            vm.append(ks)
        q = [lambda ks=ks: bld(ks) for ks in range(32)]
        if young:
            a('s_waitcnt lgkmcnt(0)')
            a('s_barrier')
            a('s_barrier')
            while q: q.pop(0)()
        else:
            for _ in range(NL0): q.pop(0)()
            a('s_waitcnt lgkmcnt(0)')
            a('s_barrier')
        for n in range(LOOK): rd(*seq[n], AR + 4*(n % NR))
        for n in range(64):
            c, ks = seq[n]
            if q:
                q.pop(0)()
                if len(q) == B2AT: a('s_barrier')
            step(n, f' vmcnt({len(vm) - vm.index(ks) - 1})' if c == 0 else '')
        if not young:
            for s_ in range(2):
                for k in range(4): wd_dma4(s_, k)
            a('s_waitcnt vmcnt(8)')
        else:
            for _ in range(2): nxt_stage(13)
            a('s_waitcnt vmcnt(0)')
    NL0, B2AT = E_('NL0', 10), E_('B2AT', 0)
    a('s_cmp_ge_u32 s3, 4')
    a('s_cbranch_scc1 M_F1Y')
    half1(False)
    a('s_branch M_F1J')
    a('M_F1Y:')
    half1(True)
    a('M_F1J:')
    a('s_barrier')
    stamp(a, 7)
    wdq = [(s_, k) for s_ in range(2, 6) for k in range(2)]
    for n in range(64, 128):
        step(n)
        if wdq and n % 4 == 1: wd_dma(*wdq.pop(0))
        if n % 16 == 15: tail(seq[n][0])
    assert not wdq
    stamp(a, 8)
    a("""
s_lshl_b32 s12, s3, 5
s_add_u32 s12, s12, s5
s_lshl_b32 s12, s12, 2
s_add_u32 s12, s12, 1024
v_mov_b32 v6, s12
""")
    f2_setup()
    publish(a, 2, 6, 7, 's61')
    a('s_branch M_F2')
    a('M_SPARE:')
    a('s_waitcnt vmcnt(0) lgkmcnt(0)')
    a('s_barrier')
    a('''
s_sub_u32 s7, s5, 28
s_lshl_b32 s7, s7, 3
s_add_u32 s7, s7, s3
s_lshl_b32 s7, s7, 13
v_lshlrev_b32 v4, 7, v2
''')
    for i in range(7):
        a(f'buffer_load_dword v{16+i}, v4, s[72:75], s7 offen')
        if i < 6: a('s_add_u32 s7, s7, 0x40000')
    for s_ in range(6):
        for k in range(2): wd_dma(s_, k)
    f2_setup()
    a('s_waitcnt vmcnt(0)')

    a('M_F2:')
    AC2, AF, BF, X2 = 16, 32, 64, 80
    a('s_cmp_lg_u32 s3, 0')
    a('s_cbranch_scc1 M_NP2')
    poll(a, 2, 5, 6, 's61', 2)
    a('M_NP2:')
    a('s_barrier')
    stamp(a, 9)
    vm = []
    def issue_a(s_):
        a('s_lshl_b32 s19, s39, 13')
        a('s_add_u32 s19, s19, s11')
        for k in range(2):
            a(f's_add_u32 s16, s63, {ASLOT[s_ & 3] + k*8192}')
            a('s_mov_b32 m0, s16')
            if k: a('s_add_u32 s19, s19, 0x1c000')
            a(f'buffer_load_dwordx4 v3, s[20:23], s19 offen {LD} lds')
        vm.extend([s_]*2)
        if s_ < 13: nxt_stage(39)
    for s_ in range(4): issue_a(s_)
    a(f'global_load_dwordx4 v[{X2}:{X2+3}], v12, s[56:57] {LD}')
    vm.append(3)
    for s_ in range(14):
        a(f's_waitcnt vmcnt({len(vm) - 1 - max(i for i, x in enumerate(vm) if x <= s_)})')
        a('s_barrier')
        if 's' in DIAG and s_ in (0, 3, 6, 9, 12): stamp(a, 1 + s_//3)
        wo_, ao = WSLOT[s_ % 6], ASLOT[s_ & 3]
        va = (8, 9, 13)[wo_ >> 16]; vb = (10, 11)[ao >> 16]
        for j in range(4):
            a(f'ds_read_b128 v[{BF+4*j}:{BF+4*j+3}], v{vb} offset:{(ao & 0xffff) + j*1024}')
            a(f'ds_read_b64_tr_b16 v[{AF+4*j}:{AF+4*j+1}], v{va} offset:{(wo_ & 0xffff) + j*2048}')
            a(f'ds_read_b64_tr_b16 v[{AF+4*j+2}:{AF+4*j+3}], v{va} offset:{(wo_ & 0xffff) + j*2048 + 512}')
        if s_ >= 1:
            if s_ + 3 < 14: issue_a(s_ + 3)
            if s_ + 5 < 14:
                for k in range(2): wd_dma(s_ + 5, k)
                vm.extend([s_ + 5]*2)
        for j in range(4):
            a(f's_waitcnt lgkmcnt({9-3*j})')
            cc = '0' if (s_ == 0 and j == 0) else f'v[{AC2}:{AC2+15}]'
            a(f'v_mfma_f32_32x32x16_bf16 v[{AC2}:{AC2+15}], v[{AF+4*j}:{AF+4*j+3}], v[{BF+4*j}:{BF+4*j+3}], {cc}')
    stamp(a, 10)
    unpack(a, 88, X2, 4)
    a('s_cmp_ge_u32 s3, 4')
    a('s_cbranch_scc1 F2_HI')
    a(f'ds_write_b128 v4, v[{AC2+8}:{AC2+11}]')
    a(f'ds_write_b128 v4, v[{AC2+12}:{AC2+15}] offset:1024')
    a('s_branch F2_X')
    a('F2_HI:')
    a('s_nop 2')
    a(f'ds_write_b128 v4, v[{AC2}:{AC2+3}]')
    a(f'ds_write_b128 v4, v[{AC2+4}:{AC2+7}] offset:1024')
    for i in range(8): a(f'v_mov_b32 v{AC2+i}, v{AC2+8+i}')
    a('F2_X:')
    a('s_waitcnt lgkmcnt(0)')
    a('s_barrier')
    a(f'ds_read_b128 v[{AF}:{AF+3}], v15')
    a(f'ds_read_b128 v[{AF+4}:{AF+7}], v15 offset:1024')
    a('s_waitcnt lgkmcnt(0)')
    for i in range(8): a(f'v_add_f32 v{AC2+i}, v{AC2+i}, v{AF+i}')
    for i in range(8): a(f'v_fmac_f32 v{88+i}, v{AC2+i}, v{GB+i}')
    for i in range(4): a(f'v_cvt_pk_bf16_f32 v{X2+i}, v{88+2*i}, v{89+2*i}')
    a(f'global_store_dwordx4 v12, v[{X2}:{X2+3}], s[56:57]')
    prof_end(a, 2, 3, 30)
    a('M_END2:')
    a('s_endpgm')

    a('M_SLOW:')
    a('v_mov_b32 v12, 0xff800000')
    a(f's_mov_b32 s12, {WS_KVF}')
    a('M_SL1:')
    a(f'buffer_load_dwordx4 v[{KK}:{KK+3}], v3, s[20:23], s12 offen')
    a('s_waitcnt vmcnt(0)')
    a(f'v_mfma_f32_32x32x16_bf16 v[{S0}:{S0+15}], v[{KK}:{KK+3}], v[{Q}:{Q+3}], 0')
    for i in range(0, 16, 2): a(f'v_max3_f32 v12, v12, v{S0+i}, v{S0+i+1}')
    a('s_add_u32 s12, s12, 2048')
    a(f's_cmp_lt_u32 s12, {WS_KVF + 131072}')
    a('s_cbranch_scc1 M_SL1')
    a('''
v_mov_b32 v13, v12
v_permlane32_swap_b32 v12, v13
v_max_f32 v12, v12, v13
''')
    for i in range(16): a(f'v_sub_f32 v{C+i}, 0, v12')
    for i in range(16): a(f'v_mov_b32 v{O+i}, 0')
    for i in range(8): a(f'v_mov_b32 v{VA+i}, 0x3f803f80')
    a('''
v_lshl_add_u32 v13, v5, 4, v4
v_lshlrev_b32 v13, 4, v13
''')
    a(f's_mov_b32 s12, {WS_KVF}')
    a('M_SL2:')
    a(f'buffer_load_dwordx4 v[{KK}:{KK+3}], v3, s[20:23], s12 offen')
    a('s_mov_b64 exec, s[32:33]')
    a(f'buffer_load_dwordx4 v[{VA}:{VA+3}], v13, s[20:23], s12 offen offset:1024')
    a(f'buffer_load_dwordx4 v[{VB}:{VB+3}], v13, s[20:23], s12 offen offset:1536')
    a('s_mov_b64 exec, -1')
    a('s_waitcnt vmcnt(0)')
    a(f'v_mfma_f32_32x32x16_bf16 v[{S0}:{S0+15}], v[{KK}:{KK+3}], v[{Q}:{Q+3}], v[{C}:{C+15}]')
    for i in range(16): a(f'v_exp_f32 v{S0+i}, v{S0+i}')
    for i in range(8): a(f'v_cvt_pk_bf16_f32 v{P+i}, v{S0+2*i}, v{S0+2*i+1}')
    a(f'v_mfma_f32_32x32x16_bf16 v[{O}:{O+15}], v[{VA}:{VA+3}], v[{P}:{P+3}], v[{O}:{O+15}]')
    a(f'v_mfma_f32_32x32x16_bf16 v[{O}:{O+15}], v[{VB}:{VB+3}], v[{P+4}:{P+7}], v[{O}:{O+15}]')
    a('s_add_u32 s12, s12, 2048')
    a(f's_cmp_lt_u32 s12, {WS_KVF + 131072}')
    a('s_cbranch_scc1 M_SL2')
    a('s_nop 15')
    a('s_branch M_FIN')
    return K
```

```python
from asmlib import Asm
import struct
NAME = "adaLN_cond__grouped_kv_mqa__geglu_ffn__prompt"
WS_MODP  = 0x000000
WS_GB    = 0x00C000
WS_FLAG  = 0x014000
WS_XCC   = 0x00D000
WS_STAT  = 0x010000
WS_WKVF  = 0x018000
WS_KVF   = 0x020000
WS_MODG  = 0x040000
WS_EPOCH = 0x00D800
WS_GFL   = 0x00E000
WS_WFL   = 0x00E400
WS_QFL   = 0x00F000
WS_KVL   = 0x060000
WS_LFL   = 0x011000
WS_XT    = 0x010000
WS_WQF   = 0x080000
WS_WOF   = 0x100000
WS_Q     = 0x200000
WS_H2F   = 0x400000
WS_WGUF  = 0x600000
WS_WDF   = 0x980000
WS_ACTF  = 0xC00000
WS_END   = 0x1300000
def f32(x): return '0x%08x' % struct.unpack('<I', struct.pack('<f', x))[0]
LOG2E = 1.4426950408889634

def dpp_reduce(a, regs):
    for ctl in ('row_shr:1 row_mask:0xf bank_mask:0xf', 'row_shr:2 row_mask:0xf bank_mask:0xf',
                'row_shr:4 row_mask:0xf bank_mask:0xf', 'row_shr:8 row_mask:0xf bank_mask:0xf',
                'row_bcast:15 row_mask:0xa bank_mask:0xf', 'row_bcast:31 row_mask:0xc bank_mask:0xf'):
        for r in regs:
            a(f'v_add_f32_dpp v{r}, v{r}, v{r} {ctl}')

def silu_bf16(a, dst, src, tmp):
    a(f'v_mul_f32 v{tmp}, {f32(-LOG2E)}, v{src}')
    a(f'v_exp_f32 v{tmp}, v{tmp}')
    a(f'v_add_f32 v{tmp}, 1.0, v{tmp}')
    a(f'v_rcp_f32 v{tmp}, v{tmp}')
    a(f'v_mul_f32 v{dst}, v{src}, v{tmp}')
    a(f'v_cvt_pk_bf16_f32 v{dst}, v{dst}, v{dst}')
    a(f'v_lshlrev_b32 v{dst}, 16, v{dst}')

def round_bf16(a, r):
    a(f'v_cvt_pk_bf16_f32 v{r}, v{r}, v{r}')
    a(f'v_lshlrev_b32 v{r}, 16, v{r}')

def unpack(a, dst, src, n):
    for i in range(n):
        a(f'v_lshlrev_b32 v{dst+2*i}, 16, v{src+i}')
        a(f'v_and_b32 v{dst+2*i+1}, 0xffff0000, v{src+i}')

def pack8(a, dst, src):
    for i in range(4):
        a(f'v_lshl_or_b32 v{dst+i}, v{src+2*i+1}, 16, v{src+2*i}')

def relay_load(a, dst, voff, sbase, stride, n=8):
    for jj in range(n):
        off = jj*stride - (4096 if stride == 1024 else 0)
        a(f'global_load_dwordx2 v[{dst+2*jj}:{dst+2*jj+1}], v{voff}, s[{sbase}:{sbase+1}] offset:{off}')

def relay_perm(a, dst, src, slo, shi):
    for c in range(4):
        for i in range(4):
            r0 = src + 2*(2*i) + (c >> 1); r1 = src + 2*(2*i+1) + (c >> 1)
            a(f'v_perm_b32 v{dst+4*c+i}, v{r1}, v{r0}, s{shi if c & 1 else slo}')

def code_touch(a, start_label, end_label, tag):
    if os.environ.get('NOCT'): return
    a(f's_getpc_b64 s[40:41]')
    a(f'CT_{tag}:')
    a(f's_sub_u32 s40, s40, CT_{tag}-{start_label}')
    a('s_subb_u32 s41, s41, 0')
    a(f's_mov_b32 s42, ({end_label}-{start_label}+4095)/4096')
    a('s_lshr_b32 s43, s2, 3')
    a('s_mul_i32 s43, s43, s42')
    a('v_add_u32 v4, s43, v0')
    a('v_lshlrev_b32 v4, 7, v4')
    a(f's_mov_b32 s44, {end_label}-{start_label}-4')
    a('v_min_u32 v4, s44, v4')
    a('v_cmp_gt_u32 vcc, s42, v0')
    a('s_and_saveexec_b64 s[44:45], vcc')
    a(f's_cbranch_execz CT_X{tag}')
    a('global_load_dword v62, v4, s[40:41]')
    a(f'CT_X{tag}:')
    a('s_mov_b64 exec, s[44:45]')

def srd(a, d, base, size):
    a(f's_mov_b32 s{d}, s{base}')
    a(f's_and_b32 s{d+1}, s{base+1}, 0xffff')
    a(f's_mov_b32 s{d+2}, {size}')
    a(f's_mov_b32 s{d+3}, 0x20000')

class Kernel:
    def __init__(self, name, grid, block, lds):
        self.name, self.grid, self.block, self.lds = name, grid, block, lds
        self.a = Asm()
        self.accum = None
    def emit(self):
        a = self.a
        a.fix()
        mv, ms, ma = a.max_regs()
        acc = (mv + 1 + 3) // 4 * 4
        acc = max(acc, 4)
        nfv = acc + ma + 1 if ma >= 0 else mv + 1
        assert acc <= 256 and nfv <= 512, (self.name, acc, nfv)
        self.nfv = nfv
        code = f'.text\n.globl {self.name}\n.p2align 8\n.type {self.name},@function\n{self.name}:\n' + a.text()
        kd = f'''.section .rodata,"a"
.p2align 6
.amdhsa_kernel {self.name}
  .amdhsa_next_free_vgpr {nfv}
  .amdhsa_next_free_sgpr {max(ms+1, 16)}
  .amdhsa_accum_offset {acc}
  .amdhsa_group_segment_fixed_size 0
  .amdhsa_kernarg_size 112
  .amdhsa_user_sgpr_count 2
  .amdhsa_user_sgpr_kernarg_segment_ptr 1
  .amdhsa_system_sgpr_workgroup_id_x 1
.end_amdhsa_kernel
'''
        return code, kd

def build(kernels, path):
    ref = open(f'cdna_kernels/{NAME}.s.ref').read().split('\n')
    head = [l for l in ref if l.startswith(';') and '@launch' not in l and 'Override launch' not in l and 'grid=ceil' not in l]
    out = '\n'.join(head) + '\n'
    for k in kernels:
        if os.environ.get('PLAIN'): out += f'; @launch grid=({k.grid},1,1) block=({k.block},1,1) lds={k.lds}\n'
        else: out += f'; @launch kernel={k.name} grid=({k.grid},1,1) block=({k.block},1,1) lds={k.lds}\n'
    out += '.amdgcn_target "amdgcn-amd-amdhsa--gfx950"\n'
    kds = ''
    seen = set()
    for k in kernels:
        if k.name in seen: continue
        seen.add(k.name)
        c, kd = k.emit()
        out += c
        kds += kd
        print(f'{k.name}: vgpr {k.nfv}, instrs {sum(1 for i in k.a.ins if i.kind!="none")}')
    out += kds
    open(path, 'w').write(out)

import os
PROF = os.environ.get('PROF', '') == '1'
WS_PROF = 0x1400000
XCC = os.environ.get('XCC', '') == '1'
NST = 12
def stamp(a, i):
    if PROF: a(f's_memrealtime s[{76+2*i}:{77+2*i}]')
def prof_init(a):
    if PROF:
        for i in range(NST): a(f's_mov_b32 s{76+2*i}, 0')
        a('s_memrealtime s[76:77]')
def prof_end(a, kidx, wavereg, wsbase, nwaves=8, wait_stores=True):
    if not PROF: return
    if wait_stores: a('s_waitcnt vmcnt(0)')
    stamp(a, NST-1)
    a('s_waitcnt lgkmcnt(0)')
    a('s_mov_b64 exec, 1')
    a(f's_mul_i32 s100, s2, {nwaves}')
    a(f's_add_u32 s100, s100, s{wavereg}')
    a('s_lshl_b32 s100, s100, 6')
    a(f's_add_u32 s100, s100, {WS_PROF + kidx*256*8*64}')
    a('v_mov_b32 v0, s100')
    for i in range(NST): a(f'v_mov_b32 v{4+i}, s{76+2*i}')
    for i in range(NST//4):
        a(f'global_store_dwordx4 v0, v[{4+4*i}:{7+4*i}], s[{wsbase}:{wsbase+1}] offset:{16*i}')
    if os.environ.get('DBGWG'):
        a(f's_cmp_lg_u32 s2, {os.environ["DBGWG"]}')
        a('s_cbranch_scc1 DBG_SKIP')
        a(f's_cmp_lg_u32 s{wavereg}, 4')
        a('s_cbranch_scc1 DBG_SKIP')
        a('s_load_dwordx2 s[100:101], s[0:1], 96')
        for i in range(NST): a(f'v_subrev_u32 v{4+i}, s76, v{4+i}')
        a('v_mov_b32 v0, 0')
        a('s_waitcnt lgkmcnt(0)')
        for i in range(NST//4):
            a(f'global_store_dwordx4 v0, v[{4+4*i}:{7+4*i}], s[100:101] offset:{16*i}')
        a('DBG_SKIP:')
```

```python
from common import *
QSCALE = 0.25 * LOG2E
E_ = lambda k, d: int(os.environ.get(k, str(d)))
L_KVW = 131072
L_MOD = 147456
L_WOS = L_MOD + 4096
L_TAG = L_WOS + 4096
WT = 'sc0 sc1'

FD = 'F' in os.environ.get('DIAG', '')
def fs(a, i):
    if FD: stamp(a, i)
def fphase(a):
    a('''
s_load_dwordx4 s[16:19], s[0:1], 0
s_load_dwordx4 s[32:35], s[0:1], 72
s_load_dwordx2 s[30:31], s[0:1], 104
s_load_dwordx4 s[24:27], s[0:1], 16
s_load_dwordx2 s[28:29], s[0:1], 32
s_load_dwordx2 s[64:65], s[0:1], 48
s_load_dwordx2 s[68:69], s[0:1], 56
s_load_dwordx2 s[72:73], s[0:1], 64
s_load_dwordx2 s[56:57], s[0:1], 88
''')
    code_touch(a, NAME + '_kernel', 'CODE_END', 'a')
    a('''
v_lshrrev_b32 v1, 6, v0
v_and_b32 v2, 63, v0
v_readfirstlane_b32 s3, v1
s_and_b32 s4, s2, 7
s_lshr_b32 s5, s2, 3
s_lshr_b32 s6, s5, 2
s_lshl_b32 s7, s4, 3
s_add_u32 s7, s7, s6
s_and_b32 s8, s5, 3
v_lshlrev_b32 v3, 4, v2
''')
    a(f'v_mov_b32 v15, {L_TAG}')
    a('s_cmp_ge_u32 s3, 4')
    a('s_cbranch_scc1 F_HI')
    def get_tag():
        a('ds_read_b32 v63, v15')
        a('s_waitcnt lgkmcnt(0)')
        a('v_readfirstlane_b32 s59, v63')
    def flag(soff_reg, fl=WT, n=0):
        a('v_mov_b32 v16, s59')
        a('v_mov_b32 v17, 0')
        a(f's_waitcnt vmcnt({n})')
        a('s_mov_b64 exec, 1')
        a(f'buffer_store_dword v16, v17, s[20:23], {soff_reg} offen {fl}')
        a('s_mov_b64 exec, -1')
    def get_fast():
        a('ds_read_b32 v63, v15 offset:4')
        a('s_waitcnt lgkmcnt(0)')
        a('v_readfirstlane_b32 s60, v63')
    X, XN, MR = 64, 96, 160
    a('''
s_lshl_b32 s10, s7, 5
s_lshl_b32 s11, s3, 3
s_add_u32 s10, s10, s11
s_lshl_b32 s11, s10, 10
s_add_u32 s11, s11, 4096
v_add_u32 v4, s11, v3
v_lshlrev_b32 v14, 5, v0
s_lshr_b32 s9, s5, 3
s_and_b32 s12, s5, 7
s_lshl_b32 s13, s4, 3
s_add_u32 s12, s12, s13
s_lshl_b32 s13, s12, 1
s_add_u32 s13, s13, s3
s_add_u32 s13, s13, 63
s_cmp_eq_u32 s3, 0
s_cselect_b32 s12, s12, s13
s_lshl_b32 s13, s12, 5
s_mul_i32 s14, s9, 786432
s_add_u32 s13, s13, s14
v_lshrrev_b32 v5, 1, v2
v_mul_u32_u24 v10, 24576, v5
v_and_b32 v11, 1, v2
v_lshl_add_u32 v10, v11, 4, v10
s_lshl_b32 s14, s9, 8
v_lshl_add_u32 v5, v5, 3, s14
s_waitcnt lgkmcnt(0)
''')
    def mod_load(B):
        for r in range(4):
            a(f'buffer_load_dwordx4 v[{B+4*r}:{B+4*r+3}], v10, s[36:39], s13 offen')
            if r < 3: a('s_add_u32 s13, s13, 6144')
        a(f'global_load_dwordx2 v[{B+16}:{B+17}], v5, s[32:33]')
    def mod_calc(B):
        Sx, Ac, Tm = B+20, B+24, B+32
        unpack(a, Sx, B+16, 2)
        for r in range(4): a(f'v_mul_f32 v{Ac+r}, {f32(-LOG2E)}, v{Sx+r}')
        for r in range(4): a(f'v_exp_f32 v{Ac+r}, v{Ac+r}')
        for r in range(4): a(f'v_add_f32 v{Ac+r}, 1.0, v{Ac+r}')
        for r in range(4): a(f'v_rcp_f32 v{Ac+r}, v{Ac+r}')
        for r in range(4): a(f'v_mul_f32 v{Sx+r}, v{Sx+r}, v{Ac+r}')
        a(f'v_cvt_pk_bf16_f32 v{Ac}, v{Sx}, v{Sx+1}')
        a(f'v_cvt_pk_bf16_f32 v{Ac+1}, v{Sx+2}, v{Sx+3}')
        unpack(a, Sx, Ac, 2)
        for r in range(4):
            unpack(a, Tm, B + 4*r, 4)
            for i in range(8):
                a(f'v_mul_f32 v{Ac+i}, v{Tm+i}, v{Sx}' if r == 0 else f'v_fmac_f32 v{Ac+i}, v{Tm+i}, v{Sx+r}')
        for i in range(4): a(f'v_permlane32_swap_b32 v{Ac+i}, v{Ac+4+i}')
        for i in range(4): a(f'v_add_f32 v{Ac+i}, v{Ac+i}, v{Ac+4+i}')
        for i in range(2): a(f'v_permlane16_swap_b32 v{Ac+i}, v{Ac+2+i}')
        for i in range(2): a(f'v_add_f32 v{Ac+i}, v{Ac+i}, v{Ac+2+i}')
        for sh in (8, 4, 2):
            for i in range(2): a(f'v_add_f32_dpp v{Ac+i}, v{Ac+i}, v{Ac+i} row_ror:{sh} row_mask:0xf bank_mask:0xf')
        a(f'v_mov_b32 v{Ac+2}, v{Ac+1}')
        a(f'v_mov_b32 v{Ac+1}, s59')
        a(f'v_mov_b32 v{Ac+3}, s59')
        a('s_mov_b32 exec_lo, 0x00030003')
        a('s_mov_b32 exec_hi, 0x00030003')
        a(f'buffer_store_dwordx4 v[{Ac}:{Ac+3}], v11, s[20:23], s14 offen {WT}')
        a('s_mov_b64 exec, -1')
    fs(a, 1)
    srd(a, 36, 34, 3145728)
    a('s_cmp_lg_u32 s3, 0')
    a('s_cbranch_scc1 F_X')
    a(f's_load_dword s59, s[30:31], {WS_EPOCH}')
    mod_load(16)
    a('F_X:')
    for t in range(8):
        a(f'global_load_dwordx4 v[{X+4*t}:{X+4*t+3}], v4, s[16:17] offset:{t*1024-4096}')
    srd(a, 20, 30, WS_END)
    a('''
v_lshlrev_b32 v11, 6, v11
v_lshrrev_b32 v8, 5, v2
v_lshl_add_u32 v11, v8, 5, v11
v_bfe_u32 v8, v2, 4, 1
v_lshl_add_u32 v11, v8, 4, v11
s_mul_i32 s14, s9, 24576
s_lshl_b32 s15, s12, 7
s_add_u32 s14, s14, s15
''')
    a(f's_add_u32 s14, s14, {WS_MODG}')
    a('''
s_lshl_b32 s15, s6, 12
v_lshlrev_b32 v6, 9, v2
v_subrev_u32 v6, s15, v6
v_and_b32 v6, 0x7fff, v6
v_and_b32 v7, 7, v2
v_lshl_add_u32 v6, v7, 4, v6
s_lshl_b32 s15, s3, 7
v_add_u32 v6, s15, v6
v_lshlrev_b32 v12, 5, v2
''')
    a(f'v_add_u32 v12, {L_MOD}, v12')
    a('s_cmp_lg_u32 s3, 0')
    a('s_cbranch_scc1 F_LN0')
    a('s_waitcnt vmcnt(8) lgkmcnt(0)')
    a('s_add_u32 s59, s59, 1')
    mod_calc(16)
    a('ds_write_b32 v15, v41')
    a('''
s_getreg_b32 s15, hwreg(HW_REG_XCC_ID)
s_and_b32 s15, s15, 7
v_mov_b32 v42, s15
s_lshl_b32 s15, s4, 5
s_add_u32 s15, s15, s5
s_lshl_b32 s15, s15, 3
v_mov_b32 v44, 0
''')
    a(f's_add_u32 s15, s15, {WS_XT}')
    a('s_mov_b64 exec, 1')
    a(f'buffer_store_dwordx2 v[42:43], v44, s[20:23], s15 offen {WT}')
    a('s_mov_b64 exec, -1')
    a('s_waitcnt vmcnt(2)')
    a('s_branch F_LN')
    a('F_LN0:')
    a('s_waitcnt vmcnt(0)')
    a('F_LN:')
    fs(a, 5)
    SM = 48
    for t in range(8): unpack(a, XN + 8*t, X + 4*t, 4)
    for t in range(8):
        b = XN + 8*t
        a(f'v_add_f32 v{SM+t}, v{b}, v{b+1}')
        a(f'v_add_f32 v56, v{b+2}, v{b+3}')
        a(f'v_add_f32 v57, v{b+4}, v{b+5}')
        a(f'v_add_f32 v58, v{b+6}, v{b+7}')
        a(f'v_add_f32 v{SM+t}, v{SM+t}, v56')
        a('v_add_f32 v57, v57, v58')
        a(f'v_add_f32 v{SM+t}, v{SM+t}, v57')
    for t in range(8): a(f'v_mul_f32 v{SM+t}, {f32(-1/512)}, v{SM+t}')
    dpp_reduce(a, [SM+t for t in range(8)])
    for t in range(8): a(f'v_readlane_b32 s{48+t}, v{SM+t}, 63')
    for t in range(8):
        for i in range(8): a(f'v_add_f32 v{XN+8*t+i}, s{48+t}, v{XN+8*t+i}')
    for t in range(8):
        b = XN + 8*t
        a(f'v_mul_f32 v{SM+t}, v{b}, v{b}')
        for i in range(1, 8): a(f'v_fmac_f32 v{SM+t}, v{b+i}, v{b+i}')
    dpp_reduce(a, [SM+t for t in range(8)])
    def sweep_issue():
        for p in range(4):
            a(f's_mov_b32 s61, {WS_MODG + p*24576}')
            a(f'buffer_load_dwordx4 v[{16+8*p}:{19+8*p}], v14, s[20:23], s61 offen sc1')
            a(f'buffer_load_dwordx4 v[{20+8*p}:{23+8*p}], v14, s[20:23], s61 offen offset:16 sc1')
        a('buffer_load_dwordx2 v[60:61], v59, s[20:23], s63 offen sc1')
    a(f'v_mov_b32 v56, {f32(1e-5)}')
    a('v_and_b32 v59, 31, v2')
    a('v_lshlrev_b32 v59, 3, v59')
    a('s_lshl_b32 s63, s4, 8')
    a(f's_add_u32 s63, s63, {WS_XT}')
    a('s_getreg_b32 s58, hwreg(HW_REG_XCC_ID)')
    a('s_and_b32 s58, s58, 7')
    for t in range(8): a(f'v_fmamk_f32 v{SM+t}, v{SM+t}, {f32(1/512)}, v56')
    for t in range(8): a(f'v_rsq_f32 v{SM+t}, v{SM+t}')
    for t in range(8): a(f'v_readlane_b32 s{48+t}, v{SM+t}, 63')
    for t in range(8):
        for i in range(8): a(f'v_mul_f32 v{XN+8*t+i}, s{48+t}, v{XN+8*t+i}')
    fs(a, 6)
    a('s_waitcnt lgkmcnt(0)')
    a('s_barrier')
    fs(a, 7)
    sweep_issue()
    get_tag()
    a('s_mov_b32 s62, 0x40000')
    a('F_SW:')
    a('s_waitcnt vmcnt(0)')
    a('v_xor_b32 v48, s59, v61')
    for r in range(17, 48, 2):
        a(f'v_xor_b32 v49, s59, v{r}')
        a('v_or_b32 v48, v48, v49')
    a('v_cmp_ne_u32 vcc, 0, v48')
    a('s_cmp_eq_u64 vcc, 0')
    a('s_cbranch_scc1 F_SG')
    a('s_mov_b64 exec, vcc')
    a(f's_sleep {E_("SWS", 2)}')
    sweep_issue()
    a('s_mov_b64 exec, -1')
    a('s_sub_u32 s62, s62, 1')
    a('s_cmp_lg_u32 s62, 0')
    a('s_cbranch_scc1 F_SW')
    a('s_waitcnt vmcnt(0)')
    a('F_SG:')
    fs(a, 8)
    a('v_cmp_eq_u32 vcc, s58, v60')
    a('s_cmp_eq_u64 vcc, -1')
    a(f's_cselect_b32 s60, {0 if E_("FORCE_SLOW", 0) else 1}, 0')
    a('v_mov_b32 v60, s60')
    a('ds_write_b32 v15, v60 offset:4')
    for i in range(4):
        a(f'v_add_f32 v{16+2*i}, v{16+2*i}, v{24+2*i}')
        a(f'v_add_f32 v{32+2*i}, v{32+2*i}, v{40+2*i}')
    for i in range(4): a(f'v_add_f32 v{16+i}, v{16+2*i}, v{32+2*i}')
    a('v_cvt_pk_bf16_f32 v20, v16, v17')
    a('v_cvt_pk_bf16_f32 v21, v18, v19')
    unpack(a, 16, 20, 2)
    a('s_cmp_lt_u32 s3, 2')
    a('s_cbranch_scc1 F_NOADD')
    for i in range(4): a(f'v_add_f32 v{16+i}, 1.0, v{16+i}')
    a('v_cvt_pk_bf16_f32 v20, v16, v17')
    a('v_cvt_pk_bf16_f32 v21, v18, v19')
    unpack(a, 16, 20, 2)
    a('F_NOADD:')
    a('v_lshrrev_b32 v20, 1, v14')
    a(f'v_add_u32 v20, {L_MOD}, v20')
    a('ds_write_b128 v20, v[16:19]')
    KW = 160
    a('s_cmp_eq_u32 s3, 0')
    a('s_cbranch_scc1 F_SL0')
    a('s_cmp_eq_u32 s3, 3')
    a('s_cbranch_scc1 F_SL3')
    mod_load(MR)
    a('s_branch F_SLX')
    a('F_SL3:')
    a('''
s_cmp_ge_u32 s2, 128
s_cbranch_scc1 F_SLX
v_lshrrev_b32 v9, 3, v2
v_lshlrev_b32 v10, 10, v9
v_and_b32 v9, 7, v2
v_lshl_add_u32 v10, v9, 4, v10
s_lshl_b32 s13, s5, 15
s_lshl_b32 s15, s4, 7
s_add_u32 s13, s13, s15
''')
    srd(a, 36, 28, 524288)
    for k in range(4):
        a(f's_mov_b32 m0, {L_WOS + k*1024}')
        if k: a('s_add_u32 s13, s13, 8192')
        a('buffer_load_dwordx4 v10, s[36:39], s13 offen lds')
    a('s_branch F_SLX')
    a('F_SL0:')
    a('''
s_and_b32 s12, s8, 1
v_and_b32 v8, 3, v2
v_lshrrev_b32 v9, 1, v8
v_and_b32 v10, 1, v8
v_lshl_add_u32 v9, v10, 1, v9
s_cmp_lg_u32 s12, 0
s_cselect_b64 s[40:41], -1, 0
v_cndmask_b32 v8, v8, v9, s[40:41]
v_lshlrev_b32 v8, 3, v8
v_bfe_u32 v9, v2, 2, 2
v_lshl_add_u32 v8, v9, 5, v8
v_lshrrev_b32 v9, 4, v2
v_lshl_add_u32 v8, v9, 8, v8
''')
    a(f'v_add_u32 v8, {L_KVW}, v8')
    a('F_SLX:')
    a('s_waitcnt lgkmcnt(0)')
    if not FD: stamp(a, 1)
    a('s_barrier')
    fs(a, 9)
    a('ds_read_b128 v[16:19], v12')
    a('ds_read_b128 v[20:23], v12 offset:16')
    a('ds_read_b128 v[24:27], v12 offset:2048')
    a('ds_read_b128 v[28:31], v12 offset:2064')
    a('s_waitcnt lgkmcnt(0)')
    for t in range(8):
        T = XN + 8*t; x = X + 4*t
        for i in range(4):
            a(f'v_pk_fma_f32 v[{T+2*i}:{T+2*i+1}], v[{T+2*i}:{T+2*i+1}], v[{24+2*i}:{25+2*i}], v[{16+2*i}:{17+2*i}]')
        for i in range(4): a(f'v_cvt_pk_bf16_f32 v{x+i}, v{T+2*i}, v{T+2*i+1}')
        if t: a(f'v_xor_b32 v13, {16*t}, v6')
        a(f'ds_write_b128 v{13 if t else 6}, v[{x}:{x+3}]')
    a('s_waitcnt lgkmcnt(0)')
    a('s_barrier')
    fs(a, 10)
    a('s_cmp_eq_u32 s3, 0')
    a('s_cbranch_scc1 F_KV')
    a('s_waitcnt vmcnt(0)')
    a('s_cmp_eq_u32 s3, 3')
    a('s_cbranch_scc1 F_S3')
    mod_calc(MR)
    a('''
s_cmp_lg_u32 s3, 1
s_cbranch_scc1 F_END
s_cmp_lg_u32 s2, 0
s_cbranch_scc1 F_END
v_mov_b32 v16, s59
v_mov_b32 v17, 0
s_mov_b64 exec, 1
''')
    a(f's_mov_b32 s13, {WS_EPOCH}')
    a('buffer_store_dword v16, v17, s[20:23], s13 offen')
    a('s_mov_b64 exec, -1')
    a('s_branch F_END')
    a('F_S3:')
    a('''
s_cmp_ge_u32 s2, 128
s_cbranch_scc1 F_END
v_lshrrev_b32 v9, 4, v2
v_lshlrev_b32 v8, 10, v9
v_bfe_u32 v9, v2, 2, 2
v_lshl_add_u32 v8, v9, 7, v8
v_and_b32 v9, 3, v2
v_lshl_add_u32 v8, v9, 5, v8
s_lshl_b32 s13, s4, 16
s_lshl_b32 s15, s5, 10
s_add_u32 s13, s13, s15
''')
    a(f'v_add_u32 v8, {L_WOS}, v8')
    a(f's_add_u32 s13, s13, {WS_WOF}')
    for c in range(4):
        a(f'ds_read_b64_tr_b16 v[{MR+4*c}:{MR+4*c+1}], v8 offset:{8*c}')
        a(f'ds_read_b64_tr_b16 v[{MR+4*c+2}:{MR+4*c+3}], v8 offset:{8*c+512}')
    a('s_waitcnt lgkmcnt(0)')
    for c in range(4):
        a(f'buffer_store_dwordx4 v[{MR+4*c}:{MR+4*c+3}], v3, s[20:23], s13 offen {WT}')
        if c < 3: a('s_add_u32 s13, s13, 16384')
    a('s_lshl_b32 s13, s2, 2')
    a(f's_add_u32 s13, s13, {WS_WFL}')
    flag('s13')
    a('s_branch F_END')
    a('F_KV:')
    for n in range(16):
        a(f'ds_read_b64_tr_b16 v[{KW+4*n}:{KW+4*n+1}], v8 offset:{n*1024}')
        a(f'ds_read_b64_tr_b16 v[{KW+4*n+2}:{KW+4*n+3}], v8 offset:{n*1024+128}')
    a('''
s_lshr_b32 s13, s8, 1
s_lshl_b32 s13, s13, 4
v_and_b32 v10, 15, v2
v_add_u32 v10, s13, v10
v_bfe_u32 v11, v2, 4, 1
v_lshrrev_b32 v12, 5, v2
v_lshl_add_u32 v15, v11, 5, v10
v_lshl_add_u32 v14, v12, 1, v11
v_xor_b32 v7, v15, v14
v_lshlrev_b32 v7, 4, v7
v_lshl_add_u32 v7, v12, 10, v7
v_xor_b32 v9, 64, v7
v_add_u32 v9, 2048, v9
''')
    H = 96
    for n in range(16):
        a(f'ds_read_b128 v[{H+4*n}:{H+4*n+3}], v{9 if n & 1 else 7} offset:{(n>>1)*4096}')
    a('''
v_lshrrev_b32 v11, 4, v2
v_and_b32 v12, 1, v11
v_lshrrev_b32 v11, 1, v11
s_lshl_b32 s14, s7, 11
''')
    a(f's_add_u32 s14, s14, {WS_KVF}')
    a('s_cmp_lg_u32 s12, 0')
    a('s_cbranch_scc1 F_V')
    for n in range(16):
        a(f's_waitcnt lgkmcnt({15-n})')
        c = '0' if n == 0 else 'v[16:19]'
        a(f'v_mfma_f32_16x16x32_bf16 v[16:19], v[{KW+4*n}:{KW+4*n+3}], v[{H+4*n}:{H+4*n+3}], {c}')
    a('''
v_lshlrev_b32 v15, 9, v11
v_lshl_add_u32 v15, v10, 4, v15
v_lshl_add_u32 v15, v12, 3, v15
s_branch F_KVST
F_V:
''')
    for n in range(16):
        a(f's_waitcnt lgkmcnt({15-n})')
        c = '0' if n == 0 else 'v[16:19]'
        a(f'v_mfma_f32_16x16x32_bf16 v[16:19], v[{H+4*n}:{H+4*n+3}], v[{KW+4*n}:{KW+4*n+3}], {c}')
    a('''
v_and_b32 v15, 15, v2
v_lshl_add_u32 v15, v12, 4, v15
v_lshlrev_b32 v15, 4, v15
v_lshl_add_u32 v15, v11, 3, v15
s_lshl_b32 s13, s13, 5
s_add_u32 s13, s13, 1024
v_add_u32 v15, s13, v15
F_KVST:
s_nop 4
v_cvt_pk_bf16_f32 v20, v16, v17
v_cvt_pk_bf16_f32 v21, v18, v19
''')
    a(f's_add_u32 s15, s14, {WS_KVL - WS_KVF}')
    a('s_lshl_b32 s13, s4, 5')
    a('s_add_u32 s13, s13, s5')
    a('s_lshl_b32 s13, s13, 2')
    a(f's_add_u32 s12, s13, {WS_LFL}')
    a(f's_add_u32 s13, s13, {WS_GFL}')
    a('s_cmp_lg_u32 s60, 0')
    a('s_cbranch_scc0 F_KVS')
    a('buffer_store_dwordx2 v[20:21], v15, s[20:23], s15 offen')
    a(f'buffer_store_dwordx2 v[20:21], v15, s[20:23], s14 offen {WT}')
    flag('s12', '', 1)
    flag('s13', WT, 1)
    a('s_branch F_END')
    a('F_KVS:')
    a(f'buffer_store_dwordx2 v[20:21], v15, s[20:23], s15 offen {WT}')
    a(f'buffer_store_dwordx2 v[20:21], v15, s[20:23], s14 offen {WT}')
    flag('s12')
    flag('s13', WT, 1)
    a('s_branch F_END')

    a('F_HI:')
    W = 64
    a('''
s_sub_u32 s9, s3, 4
v_lshrrev_b32 v6, 3, v2
v_and_b32 v7, 7, v2
v_and_b32 v5, 2, v6
v_lshlrev_b32 v5, 1, v5
v_xor_b32 v7, v7, v5
v_lshlrev_b32 v4, 10, v6
v_lshl_add_u32 v4, v7, 4, v4
s_lshl_b32 s10, s8, 8
s_lshl_b32 s11, s9, 13
s_add_u32 s10, s10, s11
s_lshl_b32 s12, s9, 10
s_lshl_b32 s13, s6, 16
v_lshrrev_b32 v7, 5, v2
v_lshlrev_b32 v8, 10, v7
v_bfe_u32 v6, v2, 2, 2
v_lshl_add_u32 v8, v6, 7, v8
v_bfe_u32 v5, v2, 1, 1
v_lshl_add_u32 v8, v5, 3, v8
v_and_b32 v5, 1, v2
v_lshlrev_b32 v5, 1, v5
v_bfe_u32 v9, v2, 4, 1
v_add_u32 v5, v5, v9
v_and_b32 v6, 2, v6
v_lshl_add_u32 v5, v6, 1, v5
s_and_b32 s52, s9, 1
s_lshl_b32 s52, s52, 2
v_xor_b32 v5, s52, v5
v_lshl_add_u32 v8, v5, 4, v8
s_lshr_b32 s52, s9, 1
s_lshl_b32 s52, s52, 16
v_add_u32 v13, s52, v8
''')
    for q in range(4):
        a(f'v_add_u32 v{8+q}, {2*q}, v7')
        a(f'v_xor_b32 v{8+q}, v{8+q}, v2')
        a(f'v_lshlrev_b32 v{8+q}, 4, v{8+q}')
        if q: a(f'v_add_u32 v{8+q}, {1024*q}, v{8+q}')
    a('''
s_lshl_b32 s53, s7, 2
s_add_u32 s53, s53, s8
s_lshl_b32 s53, s53, 2
s_add_u32 s53, s53, s9
s_lshl_b32 s54, s53, 2
s_lshl_b32 s53, s53, 11
''')
    a(f's_add_u32 s53, s53, {WS_Q}')
    a(f's_add_u32 s54, s54, {WS_QFL}')
    a(f's_mov_b32 s55, {f32(QSCALE)}')
    a('s_waitcnt lgkmcnt(0)')
    fs(a, 1)
    srd(a, 36, 18, 524288)
    srd(a, 20, 30, WS_END)
    a('''
s_and_b32 s15, s8, 1
s_cmp_lg_u32 s15, 0
s_cselect_b32 s44, s26, s24
s_cselect_b32 s45, s27, s25
s_and_b32 s45, s45, 0xffff
s_mov_b32 s46, 16384
s_mov_b32 s47, 0x20000
''')
    for n in range(16):
        a('s_add_u32 s14, s13, s10')
        a(f's_add_u32 s15, s12, {n*4096}')
        a('s_mov_b32 m0, s15')
        a('s_add_u32 s15, s15, 0x10000')
        a('buffer_load_dwordx4 v4, s[36:39], s14 offen lds')
        a('s_mov_b32 m0, s15')
        a('s_add_u32 s14, s14, 128')
        a('buffer_load_dwordx4 v4, s[36:39], s14 offen lds')
        if n < 15:
            a('s_add_u32 s13, s13, 0x8000')
            a('s_and_b32 s13, s13, 0x7ffff')
    a('s_lshl_b32 s13, s6, 11')
    a('s_add_u32 s13, s13, s12')
    for k in range(4):
        a('s_and_b32 s13, s13, 0x3fff')
        a(f's_add_u32 s15, s12, {L_KVW + k*4096}')
        a('s_mov_b32 m0, s15')
        a('s_nop 0')
        a('buffer_load_dwordx4 v3, s[44:47], s13 offen lds')
        if k < 3: a('s_add_u32 s13, s13, 4096')
    fs(a, 5)
    a('s_waitcnt vmcnt(20)')
    a('s_barrier')
    fs(a, 7)
    def wrd(n):
        a(f'ds_read_b64_tr_b16 v[{W+4*n}:{W+4*n+1}], v13 offset:{n*2048}')
        a(f'ds_read_b64_tr_b16 v[{W+4*n+2}:{W+4*n+3}], v13 offset:{n*2048+512}')
    for n in range(16): wrd(n)
    if E_('QPRE', 1):
        a('''
v_and_b32 v14, 15, v2
v_lshlrev_b32 v14, 7, v14
v_add_u32 v12, s53, v14
s_lshl_b32 s14, s7, 11
''')
        a(f's_add_u32 s14, s14, {WS_KVL}')
        a('v_add_u32 v14, s14, v14')
        a('v_cmp_gt_u32 vcc, 16, v2')
        a('s_lshl_b32 s14, s4, 7')
        a(f's_add_u32 s14, s14, {WS_LFL}')
        a('v_cndmask_b32 v12, v14, v12, vcc')
        a('v_writelane_b32 v12, s14, 32')
        a('v_writelane_b32 v12, s54, 33')
    get_tag()
    a('s_waitcnt vmcnt(0)')
    if E_('QPRE', 1):
        a('s_mov_b32 exec_hi, 3')
        a('buffer_load_dword v1, v12, s[20:23], 0 offen')
        a('s_mov_b64 exec, -1')
    fs(a, 8)
    if not FD: stamp(a, 1)
    a('s_barrier')
    for n in range(16, 32): wrd(n)
    get_fast()
    a('s_barrier')
    fs(a, 9)
    ACC = 16
    def rd(n):
        r = 32 + 4*(n & 7)
        a(f'ds_read_b128 v[{r}:{r+3}], v{8+(n&3)} offset:{(n>>2)*4096}')
    for n in range(8): rd(n)
    for n in range(32):
        a(f's_waitcnt lgkmcnt({min(32, n + 8) - n - 1})')
        r = 32 + 4*(n & 7); w = W + 4*n
        c = '0' if n == 0 else f'v[{ACC}:{ACC+15}]'
        a(f'v_mfma_f32_32x32x16_bf16 v[{ACC}:{ACC+15}], v[{w}:{w+3}], v[{r}:{r+3}], {c}')
        if n + 8 < 32: rd(n + 8)
    fs(a, 10)
    for i in range(16): a(f'v_mul_f32 v{ACC+i}, s55, v{ACC+i}')
    for i in range(8): a(f'v_cvt_pk_bf16_f32 v{32+i}, v{ACC+2*i}, v{ACC+2*i+1}')
    a('s_cmp_lg_u32 s60, 0')
    a('s_cbranch_scc1 F_QF')
    a(f'buffer_store_dwordx4 v[32:35], v3, s[20:23], s53 offen {WT}')
    a(f'buffer_store_dwordx4 v[36:39], v3, s[20:23], s53 offen offset:1024 {WT}')
    flag('s54')
    a('s_branch F_END')
    a('F_QF:')
    a('buffer_store_dwordx4 v[32:35], v3, s[20:23], s53 offen')
    a('buffer_store_dwordx4 v[36:39], v3, s[20:23], s53 offen offset:1024')
    flag('s54', '')
    a('F_END:')
```

```python
from common import *
from k3 import gelu_ops, K1C, K0C
from fphase import fphase

L_ONES = 131072
L_STAT = 131072
L_OX   = 147008
L_MODS = L_OX + 8448
L_GB   = 161792
L_END  = 163840
Q, C, S0, S1, P, O, KK, VA, VB = 16, 20, 36, 52, 68, 76, 92, 96, 100
XR, WO, NPRE = 104, 108, 36
E_ = lambda k, d: int(os.environ.get(k, str(d)))
PRIO_PERIOD, PRIO_HI = E_('PRIO_PERIOD', 8), E_('PRIO_HI', 6)
TOUCH, TSPAN, WOSTART = E_('TOUCH', 14), E_('TSPAN', 42), E_('WOSTART', 23)
FORCE_SLOW = E_('FORCE_SLOW', 0)
NP1 = E_('NP1', 2)
WD0 = E_('WD0', 8)
PRE = os.environ.get('PRE', 'ha')
W1F = os.environ.get('W1F', 'nt')
STA = os.environ.get('STA', '')
STH = os.environ.get('STH', '')
STO = os.environ.get('STO', '')
TCH = os.environ.get('TCH', 'mu')
ATF = os.environ.get('ATF', '')
DIAG = os.environ.get('DIAG', '')
LD = os.environ.get('LD', 'sc1')

def tile(a, t, side=()):
    side = list(side)
    def sd():
        if side: side.pop(0)()
    b = t & 1
    S = S1 if b else S0; SN = S0 if b else S1
    E = lambda i: a(f'v_exp_f32 v{S+i}, v{S+i}')
    Cv = lambda i: a(f'v_cvt_pk_bf16_f32 v{P+i}, v{S+2*i}, v{S+2*i+1}')
    E(0)
    a(f'v_cvt_pk_bf16_f32 v{P+7}, v{SN+14}, v{SN+15}')
    E(1); E(2); Cv(0)
    a('s_waitcnt lgkmcnt(2)')
    a(f'v_mfma_f32_32x32x16_bf16 v[{O}:{O+15}], v[{VB}:{VB+3}], v[{P+4}:{P+7}], v[{O}:{O+15}]')
    a(f'ds_read_b128 v[{VB}:{VB+3}], v9 offset:{t*2048+512}')
    E(3); E(4); Cv(1); sd(); E(5); E(6); Cv(2)
    a('s_waitcnt lgkmcnt(2)')
    a(f'v_mfma_f32_32x32x16_bf16 v[{SN}:{SN+15}], v[{KK}:{KK+3}], v[{Q}:{Q+3}], v[{C}:{C+15}]')
    a(f'ds_read_b128 v[{KK}:{KK+3}], v8 offset:{(t+2)*2048}')
    E(7); E(8); Cv(3); E(9); E(10)
    a('s_waitcnt lgkmcnt(2)')
    a(f'v_mfma_f32_32x32x16_bf16 v[{O}:{O+15}], v[{VA}:{VA+3}], v[{P}:{P+3}], v[{O}:{O+15}]')
    if t == 7:
        a('v_add_u32 v9, v9, v10')
        a(f'ds_read_b128 v[{VA}:{VA+3}], v9')
        a('v_add_u32 v8, 0x4000, v8')
    else:
        a(f'ds_read_b128 v[{VA}:{VA+3}], v9 offset:{(t+1)*2048}')
    Cv(4); E(11); E(12); Cv(5); sd(); E(13); E(14); Cv(6); E(15)
    while side: sd()

def publish(a, tag, voff, vone, soff, nyoung=0):
    a(f's_waitcnt vmcnt({nyoung})')
    a('s_mov_b64 exec, 1')
    a('s_cmp_lg_u32 s60, 0')
    a(f's_cbranch_scc1 M_PF{tag}')
    a('buffer_wbl2 sc1')
    a('s_waitcnt vmcnt(0)')
    a(f'buffer_store_dword v{vone}, v{voff}, s[20:23], {soff} offen sc0 sc1')
    a(f's_branch M_PX{tag}')
    a(f'M_PF{tag}:')
    a(f'buffer_store_dword v{vone}, v{voff}, s[20:23], {soff} offen')
    a(f'M_PX{tag}:')
    a('s_mov_b64 exec, -1')

def poll(a, tag, voff, vtmp, soff, code):
    a('s_mov_b32 s36, 0x80000')
    a(f'M_W{tag}:')
    a(f'buffer_load_dword v{vtmp}, v{voff}, s[20:23], {soff} offen sc1')
    a('s_waitcnt vmcnt(0)')
    a(f'v_cmp_eq_u32 vcc, s59, v{vtmp}')
    a('s_cmp_eq_u64 vcc, -1')
    a(f's_cbranch_scc1 M_G{tag}')
    a('s_sleep 2')
    a('s_sub_u32 s36, s36, 1')
    a('s_cmp_lg_u32 s36, 0')
    a(f's_cbranch_scc1 M_W{tag}')
    a(f'M_G{tag}:')
    a('s_cmp_lg_u32 s60, 0')
    a(f's_cbranch_scc1 M_A{tag}')
    a('buffer_inv sc1')
    a('s_waitcnt vmcnt(0)')
    a(f'M_A{tag}:')

def mega():
    K = Kernel(NAME + '_kernel', 256, 512, L_END)
    a = K.a
    a('''
s_cmp_ge_u32 s2, 256
s_cbranch_scc1 M_END2
''')
    prof_init(a)
    fphase(a)
    stamp(a, 2)
    a("""
s_lshl_b32 s6, s4, 8
s_lshl_b32 s9, s5, 3
s_add_u32 s6, s6, s9
v_and_b32 v4, 31, v2
v_lshrrev_b32 v5, 5, v2
v_lshlrev_b32 v6, 5, v4
v_lshl_add_u32 v6, v5, 4, v6
v_lshrrev_b32 v7, 1, v4
v_lshlrev_b32 v7, 11, v7
v_lshl_add_u32 v7, v5, 10, v7
v_and_b32 v8, 1, v4
v_lshl_add_u32 v7, v8, 9, v7
s_add_u32 s9, s6, s3
s_and_b32 s9, s9, 31
s_lshl_b32 s9, s9, 4
s_lshl_b32 s10, s7, 15
s_add_u32 s9, s9, s10
""")
    a(f's_add_u32 s9, s9, {WS_Q}')
    a("""
v_mov_b32 v8, v3
v_lshl_add_u32 v9, v5, 4, v4
v_lshlrev_b32 v9, 4, v9
v_add_u32 v9, 0x400, v9
v_cmp_gt_u32 s[32:33], 16, v4
""")
    a(f'v_mov_b32 v11, {L_ONES+1024}')
    a("""
v_mov_b32 v12, 0x4000
v_and_b32 v13, 27, v4
v_cmp_eq_u32 s[34:35], 16, v13
v_add_u32 v13, 16, v11
v_cndmask_b32 v13, v13, v11, s[34:35]
v_cndmask_b32 v9, v13, v9, s[32:33]
v_cndmask_b32 v10, 0, v12, s[32:33]
v_lshrrev_b32 v12, 1, v2
v_lshlrev_b32 v12, 11, v12
v_and_b32 v13, 1, v2
v_lshl_add_u32 v12, v13, 9, v12
v_add_u32 v12, v12, v11
""")
    for i in range(4): a(f'v_mov_b32 v{VA+i}, 0x3f803f80')
    for i in range(4): a(f'v_mov_b32 v{VB+i}, 0')
    for i in range(16): a(f'v_mov_b32 v{O+i}, 0')
    for i in range(4): a(f'v_mov_b32 v{P+4+i}, 0')
    a(f'v_mov_b32 v{S1+14}, 0')
    a(f'v_mov_b32 v{S1+15}, 0')
    a("""
s_lshl_b32 s63, s3, 10
s_mov_b32 s10, s63
s_lshl_b32 s11, s4, 14
s_add_u32 s11, s11, s10
s_cmp_lg_u32 s3, 7
s_cbranch_scc1 M_NP0
v_and_b32 v13, 15, v2
s_lshl_b32 s14, s7, 6
s_lshl_b32 s15, s4, 7
""")
    a(f's_add_u32 s14, s14, {WS_QFL}')
    a(f's_add_u32 s15, s15, {WS_LFL}')
    a("""
v_lshl_add_u32 v13, v13, 2, s14
v_lshl_add_u32 v14, v4, 2, s15
v_cmp_gt_u32 vcc, 32, v2
s_mov_b32 s36, 0x80000
v_cndmask_b32 v13, v13, v14, vcc
M_W0:
buffer_load_dword v24, v13, s[20:23], 0 offen sc1
s_waitcnt vmcnt(0)
v_cmp_eq_u32 vcc, s59, v24
s_cmp_eq_u64 vcc, -1
s_cbranch_scc1 M_NP0
""")
    a(f's_sleep {E_("P0S", 1)}')
    a("""
s_sub_u32 s36, s36, 1
s_cmp_lg_u32 s36, 0
s_cbranch_scc1 M_W0
M_NP0:
s_barrier
""")
    stamp(a, 3)
    a(f'buffer_load_dwordx4 v[{Q}:{Q+3}], v7, s[20:23], s9 offen sc1')
    def dma(i):
        a('s_mov_b32 m0, s10')
        a(f's_add_u32 s12, s11, {WS_KVL if i < 2 else WS_KVF}')
        a('buffer_load_dwordx4 v3, s[20:23], s12 offen sc1 lds')
        if i < 15:
            a('s_add_u32 s10, s10, 8192')
            a('s_add_u32 s11, s11, 8192')
            a('s_and_b32 s11, s11, 0x1ffff')
    for i in range(2): dma(i)
    a('s_mov_b64 exec, 0xffff')
    a(f'ds_write_b128 v12, v[{VA}:{VA+3}]')
    a(f'ds_write_b128 v12, v[{VB}:{VB+3}] offset:16')
    a('s_mov_b64 exec, -1')
    a('s_waitcnt vmcnt(0) lgkmcnt(0)')
    a('s_barrier')
    stamp(a, 4)
    a(f'ds_read_b128 v[{KK}:{KK+3}], v8')
    a('s_waitcnt lgkmcnt(0)')
    a(f'v_mfma_f32_32x32x16_bf16 v[{S0}:{S0+15}], v[{KK}:{KK+3}], v[{Q}:{Q+3}], 0')
    a(f'v_max3_f32 v12, v{S0}, v{S0+1}, v{S0+2}')
    a(f'v_max3_f32 v13, v{S0+3}, v{S0+4}, v{S0+5}')
    for i in range(6, 16, 4):
        a(f'v_max3_f32 v12, v12, v{S0+i}, v{S0+i+1}')
        if i + 2 < 16: a(f'v_max3_f32 v13, v13, v{S0+i+2}, v{S0+i+3}')
    a('''
v_max_f32 v12, v12, v13
v_mov_b32 v13, v12
v_permlane32_swap_b32 v12, v13
v_max_f32 v12, v12, v13
''')
    for i in range(16): a(f'v_sub_f32 v{C+i}, 0, v12')
    a(f'v_mfma_f32_32x32x16_bf16 v[{S0}:{S0+15}], v[{KK}:{KK+3}], v[{Q}:{Q+3}], v[{C}:{C+15}]')
    a(f'ds_read_b128 v[{KK}:{KK+3}], v8 offset:2048')
    a(f'ds_read_b128 v[{VA}:{VA+3}], v9')
    a('s_nop 7')

    nvm = [0]
    def wo_ld(f, reg):
        ks, c = f >> 2, f & 3
        a(f's_add_u32 s12, s13, {c*16384 + ks*1024}')
        a(f'buffer_load_dwordx4 v[{reg}:{reg+3}], v3, s[20:23], s12 offen sc1')
        nvm[0] += 1
    def wo_dma(f, ldsoff):
        ks, c = f >> 2, f & 3
        a(f's_add_u32 s10, s53, {ldsoff}')
        a('s_mov_b32 m0, s10')
        a(f's_add_u32 s12, s13, {c*16384 + ks*1024}')
        a('buffer_load_dwordx4 v3, s[20:23], s12 offen lds')
        nvm[0] += 1
    def ev_addr():
        a('''
v_and_b32 v13, 7, v2
v_add_u32 v13, s6, v13
v_lshlrev_b32 v14, 10, v13
v_lshrrev_b32 v15, 3, v2
v_lshl_add_u32 v14, v15, 4, v14
s_lshl_b32 s12, s3, 7
v_add_u32 v14, s12, v14
v_lshlrev_b32 v7, 4, v0
v_lshlrev_b32 v15, 5, v0
v_lshlrev_b32 v12, 3, v2
s_lshl_b32 s13, s3, 16
s_mul_i32 s62, s3, 28672
s_lshl_b32 s12, s5, 7
s_add_u32 s62, s62, s12
''')
        a(f's_add_u32 s13, s13, {WS_WOF}')
        a(f'global_load_dwordx4 v[{XR}:{XR+3}], v14, s[16:17]')
    xmark = [0]
    def ev_xld():
        a('s_getreg_b32 s58, hwreg(HW_REG_XCC_ID)')
        a('s_and_b32 s58, s58, 7')
        a('s_lshl_b32 s39, s4, 8')
        a(f's_add_u32 s39, s39, {WS_XT}')
        a('v_lshlrev_b32 v15, 3, v4')
        a('buffer_load_dwordx2 v[12:13], v15, s[20:23], s39 offen sc1')
        xmark[0] = nvm[0]
    def ev_xchk():
        a(f's_waitcnt vmcnt({nvm[0] - xmark[0]})')
        a("""
s_mov_b32 s38, 0x80000
M_XW:
v_cmp_eq_u32 vcc, s59, v13
s_cmp_eq_u64 vcc, -1
s_cbranch_scc1 M_XG
buffer_load_dwordx2 v[12:13], v15, s[20:23], s39 offen sc1
s_waitcnt vmcnt(0)
s_sub_u32 s38, s38, 1
s_cmp_lg_u32 s38, 0
s_cbranch_scc1 M_XW
M_XG:
v_cmp_eq_u32 vcc, s58, v12
s_cmp_eq_u64 vcc, -1
""")
        a(f's_cselect_b32 s60, {0 if FORCE_SLOW else 1}, 0')
        a('s_lshl_b32 s61, s4, 11')
        a(f's_add_u32 s61, s61, {WS_FLAG}')
    def modld(p):
        def f():
            a(f's_mov_b32 s12, {WS_MODG + 8192 + p*24576}')
            a(f'buffer_load_dwordx4 v[{224+8*p}:{227+8*p}], v15, s[20:23], s12 offen sc1')
            a(f'buffer_load_dwordx4 v[{228+8*p}:{231+8*p}], v15, s[20:23], s12 offen offset:16 sc1')
        return f
    def ev_mod():
        a('s_mov_b32 s38, 0x40000')
        a('M_MW:')
        a('s_waitcnt vmcnt(0)')
        a('v_mov_b32 v220, 0')
        for r in range(225, 256, 4):
            a(f'v_xor_b32 v222, s59, v{r}')
            a(f'v_xor_b32 v223, s59, v{r+2}')
            a('v_or3_b32 v220, v220, v222, v223')
        a('v_cmp_eq_u32 vcc, 0, v220')
        a('s_cmp_eq_u64 vcc, -1')
        a('s_cbranch_scc1 M_MG')
        for p in range(4): modld(p)()
        a('s_sub_u32 s38, s38, 1')
        a('s_cmp_lg_u32 s38, 0')
        a('s_cbranch_scc1 M_MW')
        a('s_waitcnt vmcnt(0)')
        a('M_MG:')
        for i in range(4):
            a(f'v_add_f32 v{224+2*i}, v{224+2*i}, v{232+2*i}')
            a(f'v_add_f32 v{240+2*i}, v{240+2*i}, v{248+2*i}')
        for i in range(4): a(f'v_add_f32 v{224+i}, v{224+2*i}, v{240+2*i}')
        a('v_cvt_pk_bf16_f32 v228, v224, v225')
        a('v_cvt_pk_bf16_f32 v229, v226, v227')
        unpack(a, 224, 228, 2)
        a('''
s_lshr_b32 s12, s3, 1
s_cmp_lg_u32 s12, 2
s_cbranch_scc1 M_NOADD
''')
        for i in range(4): a(f'v_add_f32 v{224+i}, 1.0, v{224+i}')
        a('v_cvt_pk_bf16_f32 v228, v224, v225')
        a('v_cvt_pk_bf16_f32 v229, v226, v227')
        unpack(a, 224, 228, 2)
        a('M_NOADD:')
        a('s_cmp_ge_u32 s3, 6')
        a(f's_cselect_b32 s12, {L_GB - 6144}, {L_MODS}' if False else f's_mov_b32 s12, {L_MODS}')
        a(f's_cselect_b32 s12, {L_GB - 6144}, s12')
        a('v_add_u32 v13, s12, v7')
        a('ds_write_b128 v13, v[224:227]')
    def prio(p, tag):
        def f():
            a('s_cmp_lt_u32 s3, 4')
            a(f's_cbranch_scc1 M_P{tag}')
            a(f's_setprio {p}')
            a(f'M_P{tag}:')
        return f
    def touch_setup():
        a('s_mul_i32 s54, s5, 57344')
        a('v_lshlrev_b32 v11, 7, v2')
        for r in (64, 68, 72):
            a(f's_and_b32 s{r+1}, s{r+1}, 0xffff')
            a(f's_mov_b32 s{r+2}, 1835008')
            a(f's_mov_b32 s{r+3}, 0x20000')
    def touch(u):
        def f():
            mat, k = u // 7, u % 7
            a(f's_cmp_lg_u32 s3, {u & 7}')
            a(f's_cbranch_scc1 M_T{u}')
            a(f's_add_u32 s55, s54, {k*8192}')
            a(f'buffer_load_dword v1, v11, s[{64+4*mat}:{67+4*mat}], s55 offen')
            a(f'M_T{u}:')
        return f
    side = {T: [] for T in range(64)}
    def gf_ld():
        a(f's_mov_b32 s15, {WS_GFL}')
        a('buffer_load_dwordx4 v[220:223], v3, s[20:23], s15 offen sc1')
        a(f's_mov_b32 s15, {WS_WFL}')
        a('buffer_load_dwordx2 v[216:217], v12, s[20:23], s15 offen sc1')
    def gf_chk():
        a('s_mov_b32 s36, 0x80000')
        a('M_GW:')
        a('s_waitcnt vmcnt(0)')
        for r in (216, 217, 220, 221, 222, 223): a(f'v_xor_b32 v{r}, s59, v{r}')
        a("""
v_or3_b32 v220, v220, v221, v222
v_or_b32 v216, v216, v217
v_or3_b32 v220, v220, v223, v216
v_cmp_eq_u32 vcc, 0, v220
s_cmp_eq_u64 vcc, -1
s_cbranch_scc1 M_GG
s_sleep 4
""")
        gf_ld()
        a("""
s_sub_u32 s36, s36, 1
s_cmp_lg_u32 s36, 0
s_cbranch_scc1 M_GW
s_waitcnt vmcnt(0)
M_GG:
""")
        a('s_lshl_b32 s61, s4, 11')
        a(f's_add_u32 s61, s61, {WS_FLAG}')
    a('v_lshlrev_b32 v12, 3, v2')
    gf_ld()
    side[2].append(gf_chk)
    for i in range(2, 16): side[min(2 + (i-2)//2, 8)].append(lambda i=i: dma(i))
    side[5].append('vbar6')
    side[11].append('vbar')
    A0, MODT = E_('A0', 12), E_('MODT', 22)
    side[9].append(ev_addr)
    side[10].append(touch_setup)
    for p in range(4): side[A0 + 1 + p*E_('MODS', 1)].append(modld(p))
    side[MODT].append(ev_mod)
    NREG = 37
    treg = {f: WO + 4*f for f in range(NREG)}
    WOEND = E_('WOEND', 42)
    for f in range(NREG): side[WOSTART + f*(WOEND - WOSTART)//NREG].append(lambda f=f: wo_ld(f, treg[f]))
    order = []
    def w1setup():
        a("""
v_lshrrev_b32 v7, 3, v2
v_mul_u32_u24 v0, 3584, v7
v_and_b32 v15, 7, v2
v_and_b32 v7, 2, v7
v_xor_b32 v15, v15, v7
v_lshl_add_u32 v0, v15, 4, v0
v_xor_b32 v7, 64, v0
s_mov_b32 s44, s64
s_mov_b32 s45, s65
s_mov_b32 s47, 0x20000
s_mov_b32 s48, s68
s_mov_b32 s49, s69
s_mov_b32 s51, 0x20000
s_cmp_ge_u32 s5, 28
s_cselect_b32 s46, 0, s66
s_cselect_b32 s50, 0, s70
""")
    def w1dma(mat, g, fl=''):
        a(f's_add_u32 s36, s63, {mat*65536 + g*8192}')
        a('s_mov_b32 m0, s36')
        a(f's_add_u32 s37, s62, {g*8*28672}')
        a(f'buffer_load_dwordx4 v{7 if mat else 0}, s[{44+4*mat}:{47+4*mat}], s37 offen {fl} lds')
        order.append(('d', mat, g)); nvm[0] += 1
    B0 = E_('B0', 42)
    side[B0 - 2].append(w1setup)
    side[B0 - 1].append('bar')
    for g in range(12):
        T = B0 + g*(E_('BEND', 61) - B0)//12
        if g == 8:
            assert T >= 50
            side[T - 1].append('bar')
        side[T].append(lambda g=g: w1dma(g >> 3, g & 7, W1F))
    def tch(tag, w, srdr, base_expr):
        def f():
            a(f's_cmp_lg_u32 s3, {w}')
            a(f's_cbranch_scc1 M_T{tag}')
            for x in base_expr: a(x)
            a(f'buffer_load_dword v1, v11, s[{srdr}:{srdr+3}], s55 offen')
            a(f'M_T{tag}:')
        return f
    if 'm' in TCH:
        side[A0 + 1].append(tch('g', 5, 64, ['s_mul_i32 s55, s2, 7168']))
        side[A0 + 2].append(tch('u', 6, 68, ['s_mul_i32 s55, s2, 7168']))
    if 'u' in TCH:
        for k in range(4):
            side[E_('TU0', 43) + 4*k].append(tch(f'v{k}', k, 68, ['s_mul_i32 s55, s5, 28672', f's_add_u32 s55, s55, {917504 + min(k*8192, 28672-8192)}']))
    if 'd' in TCH:
        for k in range(7):
            side[E_('TD0', 20) + 3*k].append(tch(f'w{k}', k, 72, [f's_add_u32 s55, s54, {k*8192}']))
    def touch_wd():
        a('s_cmp_lg_u32 s3, 7')
        a('s_cbranch_scc1 M_TD')
        a('s_mul_i32 s55, s2, 7168')
        a('buffer_load_dword v1, v11, s[72:75], s55 offen')
        a('M_TD:')
    side[A0 + 3].append(touch_wd)
    for k in range(2):
        side[A0].append(tch(f'o{k}', k, 20, ['s_lshl_b32 s55, s5, 14', f's_add_u32 s55, s55, {WS_WOF + k*8192}']))
    def preown():
        a("""
s_lshr_b32 s12, s6, 5
s_lshl_b32 s12, s12, 15
s_and_b32 s36, s6, 31
s_lshl_b32 s36, s36, 4
s_add_u32 s12, s12, s36
s_lshl_b32 s36, s3, 12
s_add_u32 s12, s12, s36
v_lshrrev_b32 v7, 3, v2
v_lshlrev_b32 v7, 9, v7
v_and_b32 v0, 7, v2
v_lshl_add_u32 v7, v0, 4, v7
""")
        a(f's_add_u32 s12, s12, {WS_H2F}')
        if 'L' in PRE:
            a(f'buffer_load_dword v1, v7, s[20:23], s12 offen')
            a(f'global_load_dword v1, v14, s[56:57]')
        else:
            a(f'buffer_store_dwordx4 v[{Q}:{Q+3}], v7, s[20:23], s12 offen')
            a(f'global_store_dwordx4 v14, v[{Q}:{Q+3}], s[56:57]')
        nvm[0] += 2
    def preown2():
        a("""
s_lshl_b32 s36, s4, 3
s_add_u32 s36, s36, s3
s_mul_i32 s36, s36, 0x1c000
s_min_u32 s37, s5, 27
s_lshl_b32 s37, s37, 12
s_add_u32 s36, s36, s37
""")
        a(f's_add_u32 s36, s36, {WS_ACTF}')
        if 'L' in PRE:
            a('v_lshlrev_b32 v13, 6, v2')
            a(f'buffer_load_dword v1, v13, s[20:23], s36 offen')
            nvm[0] += 1
        else:
            a('s_cmp_ge_u32 s5, 28')
            a('s_cbranch_scc1 M_NPO')
            for c in range(4): a(f'buffer_store_dwordx4 v[{Q}:{Q+3}], v3, s[20:23], s36 offen offset:{c*1024}')
            a('M_NPO:')
    if 'h' in PRE: side[E_('PREH', 39)].append(preown)
    def act_touch(w):
        def f():
            a(f's_cmp_lg_u32 s3, {w}')
            a(f's_cbranch_scc1 M_AT{w}')
            a("""
s_lshl_b32 s36, s4, 3
s_add_u32 s36, s36, s3
s_mul_i32 s36, s36, 0x1c000
s_min_u32 s37, s5, 27
s_lshl_b32 s37, s37, 12
s_add_u32 s36, s36, s37
s_mov_b32 exec_hi, 0
""")
            a(f's_add_u32 s36, s36, {WS_ACTF}')
            a(f'buffer_load_dword v1, v11, s[20:23], s36 offen {ATF}')
            a('s_mov_b64 exec, -1')
            a(f'M_AT{w}:')
        return f
    if 'a' in PRE:
        for w in range(8): side[E_('AT0', 44) + w*E_('ATS', 2)].append(act_touch(w))
    for T in range(0, 64, PRIO_PERIOD):
        side[T].insert(0, prio(1, f'a{T}'))
        side[T + PRIO_HI].insert(0, prio(0, f'b{T}'))
    LT = [int(x) for x in os.environ.get('LT', '2,5,11,20,33').split(',')]
    for T in range(64):
        tile(a, T & 7, [x for x in side[T] if not isinstance(x, str)])
        if 'vbar' in side[T]: a('s_waitcnt vmcnt(0)')
        if 'vbar6' in side[T]: a('s_waitcnt vmcnt(6)')
        if 'vbar' in side[T] or 'bar' in side[T] or 'vbar6' in side[T]: a('s_barrier')
        if 'l' in DIAG and T in LT: stamp(a, 6 + LT.index(T))

    if 'F' not in DIAG: stamp(a, 5)
    a('s_setprio 0')
    a(f'v_cvt_pk_bf16_f32 v{P+7}, v{S1+14}, v{S1+15}')
    a('s_waitcnt lgkmcnt(0)')
    a(f'v_mfma_f32_32x32x16_bf16 v[{O}:{O+15}], v[{VB}:{VB+3}], v[{P+4}:{P+7}], v[{O}:{O+15}]')
    a(f'v_add_f32 v12, |v{O}|, |v{O+1}|')
    a(f'v_add_f32 v13, |v{O+2}|, |v{O+3}|')
    a(f'v_add_f32 v12, v12, |v{O+4}|')
    a(f'v_add_f32 v13, v13, |v{O+5}|')
    a(f'v_add_f32 v12, v12, |v{O+6}|')
    a(f'v_add_f32 v13, v13, |v{O+7}|')
    a(f'v_add_f32 v12, v12, v{O+8}')
    a('v_add_f32 v12, v12, v13')
    a('s_mov_b32 s12, 0x7e800000')
    a('v_cmp_gt_f32 vcc, s12, v12')
    a('s_cmp_eq_u64 vcc, -1')
    a('s_cbranch_scc0 M_SLOW')
    a('M_FIN:')
    ACC = S1
    ring = [KK, VA, VB, Q]
    a(f'v_rcp_f32 v12, v{O+8}')
    for i in range(8): a(f'v_mul_f32 v{O+i}, v{O+i}, v12')
    for i in range(4): a(f'v_cvt_pk_bf16_f32 v{P+i}, v{O+2*i}, v{O+2*i+1}')
    a('s_mul_i32 s12, s3, 1056')
    a(f's_add_u32 s12, s12, {L_OX}')
    a('v_add_u32 v12, s12, v6')
    a(f'ds_write_b128 v12, v[{P}:{P+3}]')
    late = [C, C+4, C+8, C+12, S0, S0+4, S0+8, S0+12]
    freg = dict(treg)
    nxt = NREG
    order.clear()
    for r in late:
        freg[nxt] = r; wo_ld(nxt, r); order.append(nxt); nxt += 1
    a("""
v_and_b32 v13, 7, v2
v_mul_u32_u24 v13, 1056, v13
v_lshrrev_b32 v15, 4, v2
v_lshl_add_u32 v13, v15, 4, v13
""")
    a(f'v_add_u32 v13, {L_OX}, v13')
    a('s_waitcnt lgkmcnt(0)')
    for r in (O, O+4, O+8, O+12, P, P+4):
        freg[nxt] = r; wo_ld(nxt, r); order.append(nxt); nxt += 1
    a('s_barrier')
    lg = []
    def lrd_b(ks):
        a(f'ds_read_b128 v[{ring[ks&3]}:{ring[ks&3]+3}], v13 offset:{64*ks}'); lg.append(('b', ks))
    for ks in range(4): lrd_b(ks)
    w1q = [(1, g) for g in range(4, 8)]
    for ks in range(16):
        br = ring[ks & 3]
        for c in range(4):
            f = 4*ks + c
            w = []
            if c == 0: w.append(f'lgkmcnt({len(lg) - lg.index(("b", ks)) - 1})')
            if f in order: w.append(f'vmcnt({len(order) - order.index(f) - 1})')
            elif f == 0: w.append(f'vmcnt({len(order)})')
            if w: a('s_waitcnt ' + ' '.join(w))
            r = freg[f]
            cc = '0' if ks == 0 else f'v[{ACC+4*c}:{ACC+4*c+3}]'
            a(f'v_mfma_f32_16x16x32_bf16 v[{ACC+4*c}:{ACC+4*c+3}], v[{r}:{r+3}], v[{br}:{br+3}], {cc}')
            if nxt < 64:
                freg[nxt] = r; wo_ld(nxt, r); order.append(nxt); nxt += 1
            elif w1q and f >= 30: w1dma(*w1q.pop(0))
        if ks + 4 < 16: lrd_b(ks + 4)
    G, SB, CB, X = 184, 192, 200, 208
    a('''
v_lshrrev_b32 v15, 3, v2
v_lshlrev_b32 v15, 5, v15
s_lshl_b32 s12, s3, 8
''')
    a(f's_add_u32 s12, s12, {L_MODS}')
    a('v_add_u32 v15, s12, v15')
    for i, r in enumerate((G, SB, CB)):
        a(f'ds_read_b128 v[{r}:{r+3}], v15 offset:{2048*i}')
        a(f'ds_read_b128 v[{r+4}:{r+7}], v15 offset:{2048*i+16}')
    unpack(a, X, XR, 4)
    a('v_and_b32 v12, 8, v2')
    a('v_cmp_eq_u32 s[34:35], 0, v12')
    for i in range(8): a(f'v_cndmask_b32 v{ACC+i}, v{ACC+8+i}, v{ACC+i}, s[34:35]')
    a('s_waitcnt lgkmcnt(0)')
    for i in range(8): a(f'v_fmac_f32 v{X+i}, v{ACC+i}, v{G+i}')
    for i in range(4): a(f'v_cvt_pk_bf16_f32 v{XR+i}, v{X+2*i}, v{X+2*i+1}')
    a(f'global_store_dwordx4 v14, v[{XR}:{XR+3}], s[56:57]')
    unpack(a, X, XR, 4)
    def red(r, t):
        a(f'v_add_f32_dpp v{r}, v{r}, v{r} row_ror:8 row_mask:0xf bank_mask:0xf')
        a(f'v_mov_b32 v{t}, v{r}')
        a(f'v_permlane16_swap_b32 v{r}, v{t}')
        a(f'v_add_f32 v{r}, v{r}, v{t}')
        a(f'v_mov_b32 v{t}, v{r}')
        a(f'v_permlane32_swap_b32 v{r}, v{t}')
        a(f'v_add_f32 v{r}, v{r}, v{t}')
    M, D, ST = 216, 220, 228
    a(f'v_add_f32 v{M}, v{X}, v{X+1}')
    a(f'v_add_f32 v{M+1}, v{X+2}, v{X+3}')
    a(f'v_add_f32 v{M+2}, v{X+4}, v{X+5}')
    a(f'v_add_f32 v{M+3}, v{X+6}, v{X+7}')
    a(f'v_add_f32 v{M}, v{M}, v{M+1}')
    a(f'v_add_f32 v{M+2}, v{M+2}, v{M+3}')
    a(f'v_add_f32 v{M}, v{M}, v{M+2}')
    red(M, M+2)
    a(f'v_mul_f32 v{M}, {f32(1/64)}, v{M}')
    for i in range(8): a(f'v_sub_f32 v{D+i}, v{X+i}, v{M}')
    a(f'v_mul_f32 v{M+1}, v{D}, v{D}')
    a(f'v_mul_f32 v{M+2}, v{D+1}, v{D+1}')
    for i in range(2, 8): a(f'v_fmac_f32 v{M+1+(i&1)}, v{D+i}, v{D+i}')
    a(f'v_add_f32 v{M+1}, v{M+1}, v{M+2}')
    red(M+1, M+2)
    a('''
v_and_b32 v12, 7, v2
v_lshlrev_b32 v12, 6, v12
''')
    a(f'v_add_u32 v12, {L_STAT}, v12')
    a('s_lshl_b32 s12, s3, 3')
    a('v_add_u32 v13, s12, v12')
    a('s_mov_b64 exec, 0xff')
    a(f'ds_write_b64 v13, v[{M}:{M+1}]')
    a('s_mov_b64 exec, -1')
    a('''
s_lshr_b32 s12, s6, 5
s_lshl_b32 s12, s12, 15
s_and_b32 s14, s6, 31
s_lshl_b32 s14, s14, 4
s_add_u32 s12, s12, s14
s_lshl_b32 s14, s3, 12
s_add_u32 s12, s12, s14
''')
    a(f's_add_u32 s12, s12, {WS_H2F}')
    a('''
v_lshrrev_b32 v13, 3, v2
v_lshlrev_b32 v13, 9, v13
v_and_b32 v15, 7, v2
v_lshl_add_u32 v13, v15, 4, v13
s_waitcnt lgkmcnt(0)
s_barrier
''')
    for i in range(4): a(f'ds_read_b128 v[{ST+4*i}:{ST+4*i+3}], v12 offset:{16*i}')
    a('s_waitcnt lgkmcnt(0)')
    a(f'v_add_f32 v{M}, v{ST}, v{ST+2}')
    a(f'v_add_f32 v{M+1}, v{ST+1}, v{ST+3}')
    for i in range(2, 8):
        a(f'v_add_f32 v{M}, v{M}, v{ST+2*i}')
        a(f'v_add_f32 v{M+1}, v{M+1}, v{ST+2*i+1}')
    a(f'v_mul_f32 v{M}, {f32(1/8)}, v{M}')
    for i in range(8): a(f'v_sub_f32 v{ST+2*i}, v{ST+2*i}, v{M}')
    a(f'v_mul_f32 v{M+2}, v{ST}, v{ST}')
    for i in range(1, 8): a(f'v_fmac_f32 v{M+2}, v{ST+2*i}, v{ST+2*i}')
    a(f'v_mul_f32 v{M+1}, {f32(1/512)}, v{M+1}')
    a(f'v_fmac_f32 v{M+1}, {f32(1/8)}, v{M+2}')
    a(f'v_add_f32 v{M+1}, {f32(1e-5)}, v{M+1}')
    a(f'v_rsq_f32 v{M+1}, v{M+1}')
    for i in range(8): a(f'v_sub_f32 v{X+i}, v{X+i}, v{M}')
    for i in range(8): a(f'v_mul_f32 v{CB+i}, v{CB+i}, v{M+1}')
    for i in range(8): a(f'v_fmac_f32 v{SB+i}, v{X+i}, v{CB+i}')
    for i in range(4): a(f'v_cvt_pk_bf16_f32 v{D+i}, v{SB+2*i}, v{SB+2*i+1}')
    a(f'buffer_store_dwordx4 v[{D}:{D+3}], v13, s[20:23], s12 offen {STH}')
    stamp(a, 6) if 'l' not in DIAG and 'F' not in DIAG else None
    a('''
s_lshl_b32 s12, s5, 3
s_add_u32 s12, s12, s3
s_lshl_b32 s12, s12, 2
v_mov_b32 v6, s12
v_mov_b32 v7, s59
v_bfe_u32 v16, v2, 4, 1
v_lshlrev_b32 v12, 16, v16
v_lshrrev_b32 v17, 5, v2
v_lshl_add_u32 v12, v17, 10, v12
v_bfe_u32 v17, v2, 2, 2
v_lshl_add_u32 v12, v17, 7, v12
v_bfe_u32 v13, v2, 1, 1
v_lshl_add_u32 v12, v13, 3, v12
v_and_b32 v13, 1, v2
v_and_b32 v17, 2, v17
v_xor_b32 v13, v13, v17
v_lshlrev_b32 v16, 2, v16
v_xor_b32 v13, v13, v16
v_lshl_add_u32 v8, v13, 4, v12
v_xor_b32 v9, 32, v8
v_xor_b32 v10, 64, v8
v_xor_b32 v11, 0x60, v8
s_lshl_b32 s11, s4, 3
s_add_u32 s11, s11, s3
s_mul_i32 s14, s11, 0x1c000
s_lshl_b32 s11, s11, 15
s_lshl_b32 s13, s5, 12
s_add_u32 s14, s14, s13
v_and_b32 v12, 31, v2
s_lshl_b32 s13, s3, 7
v_lshl_add_u32 v12, v12, 2, s13
''')
    a(f'v_mov_b32 v15, {f32(K1C)}')
    a(f's_mov_b32 s42, {f32(K1C)}')
    a(f's_mov_b32 s43, {f32(K0C)}')
    a(f's_add_u32 s11, s11, {WS_H2F}')
    a(f's_add_u32 s14, s14, {WS_ACTF}')
    publish(a, 1, 6, 7, 's61')
    GB = 56
    a("""
s_and_b32 s15, s5, 7
s_lshl_b32 s17, s15, 1
s_and_b32 s6, s3, 1
s_add_u32 s17, s17, s6
s_lshl_b32 s17, s17, 2
s_lshr_b32 s8, s3, 2
s_add_u32 s17, s17, s8
s_lshl_b32 s17, s17, 4
s_lshl_b32 s38, s17, 1
v_lshrrev_b32 v16, 5, v2
""")
    a(f's_add_u32 s38, s38, {L_GB}')
    a('v_lshl_add_u32 v16, v16, 6, s38')
    a(f'ds_read_b128 v[{GB}:{GB+3}], v16')
    a(f'ds_read_b128 v[{GB+4}:{GB+7}], v16 offset:16')
    a("""
v_lshrrev_b32 v16, 3, v2
v_and_b32 v17, 7, v2
v_and_b32 v18, 2, v16
v_lshlrev_b32 v18, 1, v18
v_xor_b32 v17, v17, v18
v_lshlrev_b32 v14, 10, v16
v_lshl_add_u32 v14, v17, 4, v14
s_lshl_b32 s10, s15, 7
s_lshl_b32 s16, s3, 13
s_add_u32 s10, s10, s16
s_lshr_b32 s9, s5, 3
s_mul_i32 s13, s9, 2
s_add_u32 s13, s13, s15
s_cmp_ge_u32 s13, 14
s_cselect_b32 s38, 14, 0
s_sub_u32 s13, s13, s38
s_mov_b32 s39, s13
""")
    WSLOT = [131072, 147456, 0, 16384, 65536, 81920]
    ASLOT = [32768, 49152, 98304, 114688]
    def nxt_stage(r):
        a(f's_add_u32 s{r}, s{r}, 1')
        a(f's_cmp_eq_u32 s{r}, 14')
        a(f's_cselect_b32 s{r}, 0, s{r}')
    def wd_dma(s, k):
        if k == 0:
            a('s_lshl_b32 s18, s13, 17')
            a('s_add_u32 s18, s18, s10')
        a(f's_add_u32 s16, s63, {WSLOT[s % 6] + k*8192}')
        a('s_mov_b32 m0, s16')
        if k: a('s_add_u32 s18, s18, 0x10000')
        a('buffer_load_dwordx4 v14, s[72:75], s18 offen lds')
        if k and s < 13: nxt_stage(13)
    a('s_cmp_ge_u32 s5, 28')
    a('s_cbranch_scc1 M_SPARE')
    poll(a, 1, 12, 13, 's61', 1)
    stamp(a, 7) if 'l' not in DIAG and 'F' not in DIAG else None

    BREG, AC1, AR, NR, LOOK = 128, 64, 32, 6, 4
    KS = E_('KS', 20)
    def rd(c, ks, reg):
        a(f'ds_read_b64_tr_b16 v[{reg}:{reg+1}], v{8+c} offset:{ks*2048}')
        a(f'ds_read_b64_tr_b16 v[{reg+2}:{reg+3}], v{8+c} offset:{ks*2048+512}')
    def store(c, reg):
        a(f'buffer_store_dwordx4 v[{reg}:{reg+3}], v3, s[20:23], s14 offen offset:{c*1024} {STA}')
    def epi(c):
        o = []
        for i in range(4): o += gelu_ops(AC1+16*c, AC1+16*c+8, 16 + 2*(i & 1), 24 + 4*(c & 1), i)
        o.append(('STORE', c))
        return o
    def emit(o):
        if isinstance(o, tuple): store(o[1], 24 + 4*(o[1] & 1))
        else: a(o)
    def f2_setup():
        a("""
s_bfe_u32 s7, s3, 0x10001
v_lshrrev_b32 v16, 5, v2
v_lshlrev_b32 v8, 10, v16
v_bfe_u32 v17, v2, 2, 2
v_lshl_add_u32 v8, v17, 7, v8
v_bfe_u32 v5, v2, 1, 1
v_lshl_add_u32 v8, v5, 3, v8
v_and_b32 v5, 1, v2
v_lshlrev_b32 v5, 1, v5
v_bfe_u32 v9, v2, 4, 1
v_add_u32 v5, v5, v9
v_and_b32 v17, 2, v17
v_lshl_add_u32 v5, v17, 1, v5
s_lshl_b32 s38, s6, 2
v_xor_b32 v5, s38, v5
v_lshl_add_u32 v8, v5, 4, v8
s_lshl_b32 s38, s8, 13
v_add_u32 v8, s38, v8
v_add_u32 v9, 0x10000, v8
v_add_u32 v13, 0x20000, v8
s_lshl_b32 s38, s7, 13
s_lshl_b32 s40, s8, 12
s_add_u32 s38, s38, s40
v_add_u32 v10, s38, v3
v_add_u32 v11, 0x10000, v10
s_lshl_b32 s40, s4, 2
s_add_u32 s40, s40, s9
s_mul_i32 s11, s40, 0x38000
s_add_u32 s11, s11, s63
""")
        a(f's_add_u32 s11, s11, {WS_ACTF}')
        a("""
s_lshl_b32 s40, s40, 1
s_add_u32 s40, s40, s7
s_lshl_b32 s40, s40, 15
s_add_u32 s40, s40, s17
v_and_b32 v12, 31, v2
v_min_u32 v5, 27, v12
v_lshlrev_b32 v12, 10, v12
v_lshl_add_u32 v12, v16, 5, v12
v_add_u32 v12, s40, v12
s_lshl_b32 s38, s3, 11
v_add_u32 v4, s38, v3
s_xor_b32 s38, s38, 0x2000
v_add_u32 v15, s38, v3
v_lshl_add_u32 v5, v16, 5, v5
s_lshl_b32 s38, s9, 8
s_add_u32 s38, s38, 1024
v_lshl_add_u32 v5, v5, 2, s38
""")
    SPAN = E_('F1SPAN', 52)
    def wd_dma4(s_, k):
        if k == 0:
            a('s_lshl_b32 s18, s13, 17')
            a('s_add_u32 s18, s18, s10')
        a(f's_add_u32 s16, s63, {WSLOT[s_ % 6] + k*4096}')
        a('s_mov_b32 m0, s16')
        if k: a('s_add_u32 s18, s18, 0x8000')
        a('buffer_load_dwordx4 v14, s[72:75], s18 offen lds')
        if k == 3: nxt_stage(13)
    def tail(c):
        A3 = AC1 + 16*c
        out = 24 + 4*(c & 1)
        if E_('PK', 0):
            G_, U_, T_ = A3, A3 + 8, 16
            pr = lambda b, i: f'v[{b+2*i}:{b+2*i+1}]'
            for i in range(4): a(f'v_pk_mul_f32 {pr(T_,i)}, {pr(G_,i)}, {pr(G_,i)}')
            for i in range(4): a(f'v_pk_fma_f32 {pr(T_,i)}, {pr(T_,i)}, s[42:43], s[42:43] op_sel:[0,0,1] op_sel_hi:[1,0,1]')
            for i in range(4): a(f'v_pk_mul_f32 {pr(T_,i)}, {pr(T_,i)}, {pr(G_,i)}')
            for i in range(8): a(f'v_exp_f32 v{T_+i}, v{T_+i}')
            for i in range(4): a(f'v_pk_mul_f32 {pr(G_,i)}, {pr(G_,i)}, {pr(U_,i)}')
            for i in range(4): a(f'v_pk_add_f32 {pr(T_,i)}, {pr(T_,i)}, 1.0 op_sel_hi:[1,0]')
            for i in range(8): a(f'v_rcp_f32 v{T_+i}, v{T_+i}')
            for i in range(4): a(f'v_pk_mul_f32 {pr(G_,i)}, {pr(G_,i)}, {pr(T_,i)}')
            for i in range(4): a(f'v_cvt_pk_bf16_f32 v{out+i}, v{G_+2*i}, v{G_+2*i+1}')
        else:
            seqs = [[o for o in gelu_ops(A3, A3+8, 16 + 2*i, out, i) if o != 's_nop 0'] for i in range(4)]
            for k in range(0, len(seqs[0]), 2):
                for s_ in seqs:
                    for o in s_[k:k+2]: a(o)
        store(c, out)
    seq = [(c, ks) for ks in range(16) for c in range(4)] + [(c, ks) for c in range(4) for ks in range(16, 32)]
    def step(n, wv=''):
        c, ks = seq[n]
        if n + LOOK < len(seq): rd(*seq[n + LOOK], AR + 4*((n + LOOK) % NR))
        a(f's_waitcnt lgkmcnt({2*(min(len(seq)-1, n+LOOK) - n)}){wv}')
        cc = '0' if ks == 0 else f'v[{AC1+16*c}:{AC1+16*c+15}]'
        r = AR + 4*(n % NR)
        a(f'v_mfma_f32_32x32x16_bf16 v[{AC1+16*c}:{AC1+16*c+15}], v[{r}:{r+3}], v[{BREG+4*ks}:{BREG+4*ks+3}], {cc}')
        if 'f' in DIAG and n in (0, 32, 63, 96, 127): stamp(a, 1 + (0, 32, 63, 96, 127).index(n))
    def half1(young):
        vm = []
        def bld(ks):
            if ks & 3 == 0 and ks: a('s_add_u32 s11, s11, 4096')
            a(f'buffer_load_dwordx4 v[{BREG+4*ks}:{BREG+4*ks+3}], v3, s[20:23], s11 offen offset:{(ks&3)*1024} {LD}')
            vm.append(ks)
        if young:
            a('s_waitcnt lgkmcnt(0)')
            a('s_barrier')
            a('s_barrier')
            for ks in range(16): bld(ks)
        else:
            for ks in range(NL0): bld(ks)
            a('s_waitcnt lgkmcnt(0)')
            a('s_barrier')
        for n in range(LOOK): rd(*seq[n], AR + 4*(n % NR))
        for n in range(64):
            c, ks = seq[n]
            if not young and len(vm) < 16:
                bld(len(vm))
                if len(vm) == 16: a('s_barrier')
            if young and n >= 64 - 16*PY and (64 - n) % PY == 0: bld(len(vm))
            if not young and n >= LB0 and len(vm) < 32 and n % 4 == 2: bld(len(vm))
            step(n, f' vmcnt({len(vm) - vm.index(ks) - 1})' if c == 0 else '')
        while len(vm) < 32: bld(len(vm))
    NL0, PY, LB0 = E_('NL0', 10), E_('PY', 2), E_('LB0', 40)
    a('s_cmp_ge_u32 s3, 4')
    a('s_cbranch_scc1 M_F1Y')
    half1(False)
    a('s_branch M_F1J')
    a('M_F1Y:')
    half1(True)
    a('M_F1J:')
    a('s_barrier')
    wdq = [(s_, k) for s_ in range(6) for k in range(2)]
    nd = 0
    WDN = E_('WDN', 70)
    for n in range(64, 128):
        step(n, f' vmcnt({79 - n + nd})' if n < 80 else '')
        if wdq and n >= WDN and (n - WDN) % 3 == 0: wd_dma(*wdq.pop(0)); nd += 1
        if n % 16 == 15: tail(seq[n][0])
    assert not wdq
    stamp(a, 8) if 'l' not in DIAG and 'F' not in DIAG else None
    a("""
s_lshl_b32 s12, s3, 5
s_add_u32 s12, s12, s5
s_lshl_b32 s12, s12, 2
s_add_u32 s12, s12, 1024
v_mov_b32 v6, s12
""")
    f2_setup()
    publish(a, 2, 6, 7, 's61')
    a('s_branch M_F2')
    a('M_SPARE:')
    a('s_waitcnt vmcnt(0) lgkmcnt(0)')
    a('s_barrier')
    a('''
s_sub_u32 s7, s5, 28
s_lshl_b32 s7, s7, 3
s_add_u32 s7, s7, s3
s_lshl_b32 s7, s7, 13
v_lshlrev_b32 v4, 7, v2
''')
    if '1' in os.environ.get('WB', ''):
        a('s_cmp_lg_u32 s7, 0')
        a('s_cbranch_scc1 M_NWB1')
        a('s_sleep 40')
        a('buffer_wbl2 sc1')
        a('M_NWB1:')
    for i in range(7):
        a(f'buffer_load_dword v{16+i}, v4, s[72:75], s7 offen')
        if i < 6: a('s_add_u32 s7, s7, 0x40000')
    for s_ in range(6):
        for k in range(2): wd_dma(s_, k)
    f2_setup()
    a('s_waitcnt vmcnt(0)')

    a('M_F2:')
    AC2, AF, BF, X2 = 16, 32, 64, 80
    a('s_cmp_lg_u32 s3, 0')
    a('s_cbranch_scc1 M_NP2')
    poll(a, 2, 5, 6, 's61', 2)
    a('M_NP2:')
    a('s_barrier')
    stamp(a, 9) if 'l' not in DIAG and 'F' not in DIAG else None
    vm = []
    def issue_a(s_):
        a('s_lshl_b32 s19, s39, 13')
        a('s_add_u32 s19, s19, s11')
        for k in range(2):
            a(f's_add_u32 s16, s63, {ASLOT[s_ & 3] + k*8192}')
            a('s_mov_b32 m0, s16')
            if k: a('s_add_u32 s19, s19, 0x1c000')
            a(f'buffer_load_dwordx4 v3, s[20:23], s19 offen {LD} lds')
        vm.extend([s_]*2)
        if s_ < 13: nxt_stage(39)
    for s_ in range(4): issue_a(s_)
    a(f'global_load_dwordx4 v[{X2}:{X2+3}], v12, s[56:57] {LD}')
    vm.append(3)
    for s_ in range(14):
        a(f's_waitcnt vmcnt({len(vm) - 1 - max(i for i, x in enumerate(vm) if x <= s_)})')
        a('s_barrier')
        if 's' in DIAG and s_ in (0, 3, 6, 9, 12): stamp(a, 1 + s_//3)
        wo_, ao = WSLOT[s_ % 6], ASLOT[s_ & 3]
        va = (8, 9, 13)[wo_ >> 16]; vb = (10, 11)[ao >> 16]
        for j in range(4):
            a(f'ds_read_b128 v[{BF+4*j}:{BF+4*j+3}], v{vb} offset:{(ao & 0xffff) + j*1024}')
            a(f'ds_read_b64_tr_b16 v[{AF+4*j}:{AF+4*j+1}], v{va} offset:{(wo_ & 0xffff) + j*2048}')
            a(f'ds_read_b64_tr_b16 v[{AF+4*j+2}:{AF+4*j+3}], v{va} offset:{(wo_ & 0xffff) + j*2048 + 512}')
        if s_ >= 1:
            if s_ + 3 < 14: issue_a(s_ + 3)
            if s_ + 5 < 14:
                for k in range(2): wd_dma(s_ + 5, k)
                vm.extend([s_ + 5]*2)
        if '2' in os.environ.get('WB', '') and s_ == 10:
            a('s_lshl_b32 s38, s5, 3')
            a('s_add_u32 s38, s38, s3')
            a('s_cmp_lg_u32 s38, 255')
            a('s_cbranch_scc1 M_NWB2')
            a('buffer_wbl2 sc1')
            a('M_NWB2:')
        for j in range(4):
            a(f's_waitcnt lgkmcnt({9-3*j})')
            cc = '0' if (s_ == 0 and j == 0) else f'v[{AC2}:{AC2+15}]'
            a(f'v_mfma_f32_32x32x16_bf16 v[{AC2}:{AC2+15}], v[{AF+4*j}:{AF+4*j+3}], v[{BF+4*j}:{BF+4*j+3}], {cc}')
    stamp(a, 10) if 'l' not in DIAG and 'F' not in DIAG else None
    unpack(a, 88, X2, 4)
    a('s_cmp_ge_u32 s3, 4')
    a('s_cbranch_scc1 F2_HI')
    a(f'ds_write_b128 v4, v[{AC2+8}:{AC2+11}]')
    a(f'ds_write_b128 v4, v[{AC2+12}:{AC2+15}] offset:1024')
    a('s_branch F2_X')
    a('F2_HI:')
    a('s_nop 2')
    a(f'ds_write_b128 v4, v[{AC2}:{AC2+3}]')
    a(f'ds_write_b128 v4, v[{AC2+4}:{AC2+7}] offset:1024')
    for i in range(8): a(f'v_mov_b32 v{AC2+i}, v{AC2+8+i}')
    a('F2_X:')
    a('s_waitcnt lgkmcnt(0)')
    a('s_barrier')
    a(f'ds_read_b128 v[{AF}:{AF+3}], v15')
    a(f'ds_read_b128 v[{AF+4}:{AF+7}], v15 offset:1024')
    a('s_waitcnt lgkmcnt(0)')
    for i in range(8): a(f'v_add_f32 v{AC2+i}, v{AC2+i}, v{AF+i}')
    for i in range(8): a(f'v_fmac_f32 v{88+i}, v{AC2+i}, v{GB+i}')
    for i in range(4): a(f'v_cvt_pk_bf16_f32 v{X2+i}, v{88+2*i}, v{89+2*i}')
    a(f'global_store_dwordx4 v12, v[{X2}:{X2+3}], s[56:57] {STO}')
    for off in [int(x, 0) for x in os.environ.get('XLOAD', '').split(',') if x]:
        a('s_lshl_b32 s12, s2, 7')
        a(f's_add_u32 s12, s12, {off}')
        a('v_mov_b32 v0, s12')
        a('global_load_dword v1, v0, s[30:31]')
        a('s_waitcnt vmcnt(0)')
    prof_end(a, 0, 3, 30)
    a('M_END2:')
    a('s_endpgm')

    a('M_SLOW:')
    a('v_mov_b32 v12, 0xff800000')
    a(f's_mov_b32 s12, {WS_KVF}')
    a('M_SL1:')
    a(f'buffer_load_dwordx4 v[{KK}:{KK+3}], v3, s[20:23], s12 offen sc1')
    a('s_waitcnt vmcnt(0)')
    a(f'v_mfma_f32_32x32x16_bf16 v[{S0}:{S0+15}], v[{KK}:{KK+3}], v[{Q}:{Q+3}], 0')
    for i in range(0, 16, 2): a(f'v_max3_f32 v12, v12, v{S0+i}, v{S0+i+1}')
    a('s_add_u32 s12, s12, 2048')
    a(f's_cmp_lt_u32 s12, {WS_KVF + 131072}')
    a('s_cbranch_scc1 M_SL1')
    a('''
v_mov_b32 v13, v12
v_permlane32_swap_b32 v12, v13
v_max_f32 v12, v12, v13
''')
    for i in range(16): a(f'v_sub_f32 v{C+i}, 0, v12')
    for i in range(16): a(f'v_mov_b32 v{O+i}, 0')
    for i in range(8): a(f'v_mov_b32 v{VA+i}, 0x3f803f80')
    a('''
v_lshl_add_u32 v13, v5, 4, v4
v_lshlrev_b32 v13, 4, v13
''')
    a(f's_mov_b32 s12, {WS_KVF}')
    a('M_SL2:')
    a(f'buffer_load_dwordx4 v[{KK}:{KK+3}], v3, s[20:23], s12 offen sc1')
    a('s_mov_b64 exec, s[32:33]')
    a(f'buffer_load_dwordx4 v[{VA}:{VA+3}], v13, s[20:23], s12 offen offset:1024 sc1')
    a(f'buffer_load_dwordx4 v[{VB}:{VB+3}], v13, s[20:23], s12 offen offset:1536 sc1')
    a('s_mov_b64 exec, -1')
    a('s_waitcnt vmcnt(0)')
    a(f'v_mfma_f32_32x32x16_bf16 v[{S0}:{S0+15}], v[{KK}:{KK+3}], v[{Q}:{Q+3}], v[{C}:{C+15}]')
    for i in range(16): a(f'v_exp_f32 v{S0+i}, v{S0+i}')
    for i in range(8): a(f'v_cvt_pk_bf16_f32 v{P+i}, v{S0+2*i}, v{S0+2*i+1}')
    a(f'v_mfma_f32_32x32x16_bf16 v[{O}:{O+15}], v[{VA}:{VA+3}], v[{P}:{P+3}], v[{O}:{O+15}]')
    a(f'v_mfma_f32_32x32x16_bf16 v[{O}:{O+15}], v[{VB}:{VB+3}], v[{P+4}:{P+7}], v[{O}:{O+15}]')
    a('s_add_u32 s12, s12, 2048')
    a(f's_cmp_lt_u32 s12, {WS_KVF + 131072}')
    a('s_cbranch_scc1 M_SL2')
    a('s_nop 15')
    a('s_branch M_FIN')
    a('CODE_END:')
    a('s_endpgm')
    return K
```

```python
from asmlib import Asm
import struct
NAME = "adaLN_cond__grouped_kv_mqa__geglu_ffn__prompt"
WS_MODP  = 0x000000
WS_GB    = 0x00C000
WS_FLAG  = 0x014000
WS_XCC   = 0x00D000
WS_STAT  = 0x010000
WS_WKVF  = 0x018000
WS_KVF   = 0x020000
WS_MODG  = 0x040000
WS_EPOCH = 0x00D800
WS_GFL   = 0x00E000
WS_WFL   = 0x00E400
WS_QFL   = 0x00F000
WS_MODF  = 0x180000
WS_MFL   = 0x011800
WS_KVL   = 0x060000
WS_LFL   = 0x011000
WS_XT    = 0x010000
WS_WQF   = 0x080000
WS_WOF   = 0x100000
WS_Q     = 0x200000
WS_H2F   = 0x400000
WS_WGUF  = 0x600000
WS_WDF   = 0x980000
WS_ACTF  = 0xC00000
WS_END   = 0x1300000
def f32(x): return '0x%08x' % struct.unpack('<I', struct.pack('<f', x))[0]
LOG2E = 1.4426950408889634

def dpp_reduce(a, regs):
    for ctl in ('row_shr:1 row_mask:0xf bank_mask:0xf', 'row_shr:2 row_mask:0xf bank_mask:0xf',
                'row_shr:4 row_mask:0xf bank_mask:0xf', 'row_shr:8 row_mask:0xf bank_mask:0xf',
                'row_bcast:15 row_mask:0xa bank_mask:0xf', 'row_bcast:31 row_mask:0xc bank_mask:0xf'):
        for r in regs:
            a(f'v_add_f32_dpp v{r}, v{r}, v{r} {ctl}')

def silu_bf16(a, dst, src, tmp):
    a(f'v_mul_f32 v{tmp}, {f32(-LOG2E)}, v{src}')
    a(f'v_exp_f32 v{tmp}, v{tmp}')
    a(f'v_add_f32 v{tmp}, 1.0, v{tmp}')
    a(f'v_rcp_f32 v{tmp}, v{tmp}')
    a(f'v_mul_f32 v{dst}, v{src}, v{tmp}')
    a(f'v_cvt_pk_bf16_f32 v{dst}, v{dst}, v{dst}')
    a(f'v_lshlrev_b32 v{dst}, 16, v{dst}')

def round_bf16(a, r):
    a(f'v_cvt_pk_bf16_f32 v{r}, v{r}, v{r}')
    a(f'v_lshlrev_b32 v{r}, 16, v{r}')

def unpack(a, dst, src, n):
    for i in range(n):
        a(f'v_lshlrev_b32 v{dst+2*i}, 16, v{src+i}')
        a(f'v_and_b32 v{dst+2*i+1}, 0xffff0000, v{src+i}')

def pack8(a, dst, src):
    for i in range(4):
        a(f'v_lshl_or_b32 v{dst+i}, v{src+2*i+1}, 16, v{src+2*i}')

def relay_load(a, dst, voff, sbase, stride, n=8):
    for jj in range(n):
        off = jj*stride - (4096 if stride == 1024 else 0)
        a(f'global_load_dwordx2 v[{dst+2*jj}:{dst+2*jj+1}], v{voff}, s[{sbase}:{sbase+1}] offset:{off}')

def relay_perm(a, dst, src, slo, shi):
    for c in range(4):
        for i in range(4):
            r0 = src + 2*(2*i) + (c >> 1); r1 = src + 2*(2*i+1) + (c >> 1)
            a(f'v_perm_b32 v{dst+4*c+i}, v{r1}, v{r0}, s{shi if c & 1 else slo}')

def code_touch(a, start_label, end_label, tag):
    if os.environ.get('NOCT'): return
    a(f's_getpc_b64 s[40:41]')
    a(f'CT_{tag}:')
    a(f's_sub_u32 s40, s40, CT_{tag}-{start_label}')
    a('s_subb_u32 s41, s41, 0')
    a(f's_mov_b32 s42, ({end_label}-{start_label}+4095)/4096')
    a('s_lshr_b32 s43, s2, 3')
    a('s_mul_i32 s43, s43, s42')
    a('v_add_u32 v4, s43, v0')
    a('v_lshlrev_b32 v4, 7, v4')
    a(f's_mov_b32 s44, {end_label}-{start_label}-4')
    a('v_min_u32 v4, s44, v4')
    a('v_cmp_gt_u32 vcc, s42, v0')
    a('s_and_saveexec_b64 s[44:45], vcc')
    a(f's_cbranch_execz CT_X{tag}')
    a('global_load_dword v62, v4, s[40:41]')
    a(f'CT_X{tag}:')
    a('s_mov_b64 exec, s[44:45]')

def srd(a, d, base, size):
    a(f's_mov_b32 s{d}, s{base}')
    a(f's_and_b32 s{d+1}, s{base+1}, 0xffff')
    a(f's_mov_b32 s{d+2}, {size}')
    a(f's_mov_b32 s{d+3}, 0x20000')

class Kernel:
    def __init__(self, name, grid, block, lds):
        self.name, self.grid, self.block, self.lds = name, grid, block, lds
        self.a = Asm()
        self.accum = None
    def emit(self):
        a = self.a
        a.fix()
        mv, ms, ma = a.max_regs()
        acc = (mv + 1 + 3) // 4 * 4
        acc = max(acc, 4)
        nfv = acc + ma + 1 if ma >= 0 else mv + 1
        assert acc <= 256 and nfv <= 512, (self.name, acc, nfv)
        self.nfv = nfv
        code = f'.text\n.globl {self.name}\n.p2align 8\n.type {self.name},@function\n{self.name}:\n' + a.text()
        kd = f'''.section .rodata,"a"
.p2align 6
.amdhsa_kernel {self.name}
  .amdhsa_next_free_vgpr {nfv}
  .amdhsa_next_free_sgpr {max(ms+1, 16)}
  .amdhsa_accum_offset {acc}
  .amdhsa_group_segment_fixed_size 0
  .amdhsa_kernarg_size 112
  .amdhsa_user_sgpr_count 2
  .amdhsa_user_sgpr_kernarg_segment_ptr 1
  .amdhsa_system_sgpr_workgroup_id_x 1
.end_amdhsa_kernel
'''
        return code, kd

def build(kernels, path):
    ref = open(f'cdna_kernels/{NAME}.s.ref').read().split('\n')
    head = [l for l in ref if l.startswith(';') and '@launch' not in l and 'Override launch' not in l and 'grid=ceil' not in l]
    out = '\n'.join(head) + '\n'
    for k in kernels:
        if os.environ.get('PLAIN'): out += f'; @launch grid=({k.grid},1,1) block=({k.block},1,1) lds={k.lds}\n'
        else: out += f'; @launch kernel={k.name} grid=({k.grid},1,1) block=({k.block},1,1) lds={k.lds}\n'
    out += '.amdgcn_target "amdgcn-amd-amdhsa--gfx950"\n'
    kds = ''
    seen = set()
    for k in kernels:
        if k.name in seen: continue
        seen.add(k.name)
        c, kd = k.emit()
        out += c
        kds += kd
        print(f'{k.name}: vgpr {k.nfv}, instrs {sum(1 for i in k.a.ins if i.kind!="none")}')
    out += kds
    open(path, 'w').write(out)

import os
PROF = os.environ.get('PROF', '') == '1'
WS_PROF = 0x1400000
XCC = os.environ.get('XCC', '') == '1'
NST = 12
CYC = os.environ.get('CYC', '') == '1'
def stamp(a, i):
    if PROF: a(f's_mem{"time" if CYC and 4 <= i <= 10 else "realtime"} s[{76+2*i}:{77+2*i}]')
def prof_init(a):
    if PROF:
        for i in range(NST): a(f's_mov_b32 s{76+2*i}, 0')
        a('s_memrealtime s[76:77]')
def prof_end(a, kidx, wavereg, wsbase, nwaves=8, wait_stores=True):
    if not PROF: return
    if os.environ.get('SPIN'):
        i0, i1 = [int(x) for x in os.environ['SPIN'].split(',')]
        stamp(a, NST-1)
        a('s_waitcnt lgkmcnt(0)')
        a(f's_sub_u32 s100, s{76+2*i1}, s{76+2*i0}')
        a('s_lshl_b32 s100, s100, 2')
        a(f's_add_u32 s100, s100, s{76+2*(NST-1)}')
        a('SPIN_L:')
        a('s_memrealtime s[76:77]')
        a('s_waitcnt lgkmcnt(0)')
        a('s_sub_u32 s101, s76, s100')
        a('s_cmp_lt_i32 s101, 0')
        a('s_cbranch_scc1 SPIN_L')
        return
    if wait_stores: a('s_waitcnt vmcnt(0)')
    stamp(a, NST-1)
    a('s_waitcnt lgkmcnt(0)')
    a('s_mov_b64 exec, 1')
    a(f's_mul_i32 s100, s2, {nwaves}')
    a(f's_add_u32 s100, s100, s{wavereg}')
    a('s_lshl_b32 s100, s100, 6')
    a(f's_add_u32 s100, s100, {WS_PROF + kidx*256*8*64}')
    a('v_mov_b32 v0, s100')
    for i in range(NST): a(f'v_mov_b32 v{4+i}, s{76+2*i}')
    for i in range(NST//4):
        a(f'global_store_dwordx4 v0, v[{4+4*i}:{7+4*i}], s[{wsbase}:{wsbase+1}] offset:{16*i}')
    if os.environ.get('DBGWG'):
        a(f's_cmp_lg_u32 s2, {os.environ["DBGWG"]}')
        a('s_cbranch_scc1 DBG_SKIP')
        a(f's_cmp_lg_u32 s{wavereg}, 4')
        a('s_cbranch_scc1 DBG_SKIP')
        a('s_load_dwordx2 s[100:101], s[0:1], 96')
        for i in range(NST): a(f'v_subrev_u32 v{4+i}, s76, v{4+i}')
        a('v_mov_b32 v0, 0')
        a('s_waitcnt lgkmcnt(0)')
        for i in range(NST//4):
            a(f'global_store_dwordx4 v0, v[{4+4*i}:{7+4*i}], s[100:101] offset:{16*i}')
        a('DBG_SKIP:')
```

```python
from common import *
from k3 import gelu_ops, K1C, K0C
from fphase import fphase

L_ONES = 131072
L_STAT = 131072
L_OX   = 147008
L_MODS = L_OX + 8448
L_GB   = 161792
L_END  = 163840
Q, C, S0, S1, P, O, KK, VA, VB = 16, 20, 36, 52, 68, 76, 92, 96, 100
XR, WO, NPRE = 104, 108, 36
E_ = lambda k, d: int(os.environ.get(k, str(d)))
PRIO_PERIOD, PRIO_HI = E_('PRIO_PERIOD', 8), E_('PRIO_HI', 6)
TOUCH, TSPAN, WOSTART = E_('TOUCH', 14), E_('TSPAN', 42), E_('WOSTART', 16)
FORCE_SLOW = E_('FORCE_SLOW', 0)
NP1 = E_('NP1', 2)
WD0 = E_('WD0', 8)
PRE = os.environ.get('PRE', 'h')
W1F = os.environ.get('W1F', 'nt')
STA = os.environ.get('STA', 'sc0 sc1')
STH = os.environ.get('STH', '')
STO = os.environ.get('STO', '')
TCH = os.environ.get('TCH', 'u')
ATF = os.environ.get('ATF', '')
DIAG = os.environ.get('DIAG', '')
H2B = WS_Q
LD = os.environ.get('LD', 'sc1')

def tile(a, t, side=()):
    side = list(side)
    def sd():
        if side: side.pop(0)()
    b = t & 1
    S = S1 if b else S0; SN = S0 if b else S1
    E = lambda i: a(f'v_exp_f32 v{S+i}, v{S+i}')
    Cv = lambda i: a(f'v_cvt_pk_bf16_f32 v{P+i}, v{S+2*i}, v{S+2*i+1}')
    E(0)
    a(f'v_cvt_pk_bf16_f32 v{P+7}, v{SN+14}, v{SN+15}')
    E(1); E(2); Cv(0)
    a('s_waitcnt lgkmcnt(2)')
    a(f'v_mfma_f32_32x32x16_bf16 v[{O}:{O+15}], v[{VB}:{VB+3}], v[{P+4}:{P+7}], v[{O}:{O+15}]')
    a(f'ds_read_b128 v[{VB}:{VB+3}], v9 offset:{t*2048+512}')
    E(3); E(4); Cv(1); sd(); E(5); E(6); Cv(2)
    a('s_waitcnt lgkmcnt(2)')
    a(f'v_mfma_f32_32x32x16_bf16 v[{SN}:{SN+15}], v[{KK}:{KK+3}], v[{Q}:{Q+3}], v[{C}:{C+15}]')
    a(f'ds_read_b128 v[{KK}:{KK+3}], v8 offset:{(t+2)*2048}')
    E(7); E(8); Cv(3); E(9); E(10)
    a('s_waitcnt lgkmcnt(2)')
    a(f'v_mfma_f32_32x32x16_bf16 v[{O}:{O+15}], v[{VA}:{VA+3}], v[{P}:{P+3}], v[{O}:{O+15}]')
    if t == 7:
        a('v_add_u32 v9, v9, v10')
        a(f'ds_read_b128 v[{VA}:{VA+3}], v9')
        a('v_add_u32 v8, 0x4000, v8')
    else:
        a(f'ds_read_b128 v[{VA}:{VA+3}], v9 offset:{(t+1)*2048}')
    Cv(4); E(11); E(12); Cv(5); sd(); E(13); E(14); Cv(6); E(15)
    while side: sd()

def publish(a, tag, voff, vone, soff, nyoung=0):
    a(f's_waitcnt vmcnt({nyoung})')
    a('s_mov_b64 exec, 1')
    a('s_cmp_lg_u32 s60, 0')
    a(f's_cbranch_scc1 M_PF{tag}')
    a('buffer_wbl2 sc1')
    a('s_waitcnt vmcnt(0)')
    a(f'buffer_store_dword v{vone}, v{voff}, s[20:23], {soff} offen sc0 sc1')
    a(f's_branch M_PX{tag}')
    a(f'M_PF{tag}:')
    a(f'buffer_store_dword v{vone}, v{voff}, s[20:23], {soff} offen')
    a(f'M_PX{tag}:')
    a('s_mov_b64 exec, -1')

def poll(a, tag, voff, vtmp, soff, code):
    a('s_mov_b32 s36, 0x80000')
    a(f'M_W{tag}:')
    a(f'buffer_load_dword v{vtmp}, v{voff}, s[20:23], {soff} offen sc1')
    a('s_waitcnt vmcnt(0)')
    a(f'v_cmp_eq_u32 vcc, s59, v{vtmp}')
    a('s_cmp_eq_u64 vcc, -1')
    a(f's_cbranch_scc1 M_G{tag}')
    a('s_sleep 2')
    a('s_sub_u32 s36, s36, 1')
    a('s_cmp_lg_u32 s36, 0')
    a(f's_cbranch_scc1 M_W{tag}')
    a(f'M_G{tag}:')
    a('s_cmp_lg_u32 s60, 0')
    a(f's_cbranch_scc1 M_A{tag}')
    a('buffer_inv sc1')
    a('s_waitcnt vmcnt(0)')
    a(f'M_A{tag}:')

def mega():
    K = Kernel(NAME + '_kernel', 256, 512, L_END)
    a = K.a
    a('''
s_cmp_ge_u32 s2, 256
s_cbranch_scc1 M_END2
''')
    prof_init(a)
    fphase(a)
    stamp(a, 2)
    a("""
s_lshl_b32 s6, s4, 8
s_lshl_b32 s9, s5, 3
s_add_u32 s6, s6, s9
v_and_b32 v4, 31, v2
v_lshrrev_b32 v5, 5, v2
v_lshlrev_b32 v6, 5, v4
v_lshl_add_u32 v6, v5, 4, v6
v_lshrrev_b32 v7, 1, v4
v_lshlrev_b32 v7, 11, v7
v_lshl_add_u32 v7, v5, 10, v7
v_and_b32 v8, 1, v4
v_lshl_add_u32 v7, v8, 9, v7
s_add_u32 s9, s6, s3
s_and_b32 s9, s9, 31
s_lshl_b32 s9, s9, 4
s_lshl_b32 s10, s7, 15
s_add_u32 s9, s9, s10
""")
    a(f's_add_u32 s9, s9, {WS_Q}')
    a("""
v_mov_b32 v8, v3
v_lshl_add_u32 v9, v5, 4, v4
v_lshlrev_b32 v9, 4, v9
v_add_u32 v9, 0x400, v9
v_cmp_gt_u32 s[32:33], 16, v4
""")
    a(f'v_mov_b32 v11, {L_ONES+1024}')
    a("""
v_mov_b32 v12, 0x4000
v_and_b32 v13, 27, v4
v_cmp_eq_u32 s[34:35], 16, v13
v_add_u32 v13, 16, v11
v_cndmask_b32 v13, v13, v11, s[34:35]
v_cndmask_b32 v9, v13, v9, s[32:33]
v_cndmask_b32 v10, 0, v12, s[32:33]
v_lshrrev_b32 v12, 1, v2
v_lshlrev_b32 v12, 11, v12
v_and_b32 v13, 1, v2
v_lshl_add_u32 v12, v13, 9, v12
v_add_u32 v12, v12, v11
""")
    for i in range(4): a(f'v_mov_b32 v{VA+i}, 0x3f803f80')
    for i in range(4): a(f'v_mov_b32 v{VB+i}, 0')
    for i in range(16): a(f'v_mov_b32 v{O+i}, 0')
    for i in range(4): a(f'v_mov_b32 v{P+4+i}, 0')
    a(f'v_mov_b32 v{S1+14}, 0')
    a(f'v_mov_b32 v{S1+15}, 0')
    a("""
s_lshl_b32 s63, s3, 10
s_mov_b32 s10, s63
s_lshl_b32 s11, s4, 14
s_add_u32 s11, s11, s10
s_cmp_lg_u32 s3, 7
s_cbranch_scc1 M_NP0
v_and_b32 v13, 15, v2
s_lshl_b32 s14, s7, 6
s_lshl_b32 s15, s4, 7
""")
    a(f's_add_u32 s14, s14, {WS_QFL}')
    a(f's_add_u32 s15, s15, {WS_LFL}')
    a("""
v_lshl_add_u32 v13, v13, 2, s14
v_lshl_add_u32 v14, v4, 2, s15
v_cmp_gt_u32 vcc, 32, v2
s_mov_b32 s36, 0x80000
v_cndmask_b32 v13, v13, v14, vcc
M_W0:
buffer_load_dword v24, v13, s[20:23], 0 offen sc1
s_waitcnt vmcnt(0)
v_cmp_eq_u32 vcc, s59, v24
s_cmp_eq_u64 vcc, -1
s_cbranch_scc1 M_NP0
""")
    a(f's_sleep {E_("P0S", 1)}')
    a("""
s_sub_u32 s36, s36, 1
s_cmp_lg_u32 s36, 0
s_cbranch_scc1 M_W0
M_NP0:
s_barrier
""")
    stamp(a, 3)
    a(f'buffer_load_dwordx4 v[{Q}:{Q+3}], v7, s[20:23], s9 offen sc1')
    def dma(i):
        a('s_mov_b32 m0, s10')
        a(f's_add_u32 s12, s11, {WS_KVL if i < 2 else WS_KVF}')
        a('buffer_load_dwordx4 v3, s[20:23], s12 offen sc1 lds')
        if i < 15:
            a('s_add_u32 s10, s10, 8192')
            a('s_add_u32 s11, s11, 8192')
            a('s_and_b32 s11, s11, 0x1ffff')
    for i in range(2): dma(i)
    a('s_mov_b64 exec, 0xffff')
    a(f'ds_write_b128 v12, v[{VA}:{VA+3}]')
    a(f'ds_write_b128 v12, v[{VB}:{VB+3}] offset:16')
    a('s_mov_b64 exec, -1')
    a('s_waitcnt vmcnt(0) lgkmcnt(0)')
    a('s_barrier')
    stamp(a, 4)
    a(f'ds_read_b128 v[{KK}:{KK+3}], v8')
    a('s_waitcnt lgkmcnt(0)')
    a(f'v_mfma_f32_32x32x16_bf16 v[{S0}:{S0+15}], v[{KK}:{KK+3}], v[{Q}:{Q+3}], 0')
    a(f'v_max3_f32 v12, v{S0}, v{S0+1}, v{S0+2}')
    a(f'v_max3_f32 v13, v{S0+3}, v{S0+4}, v{S0+5}')
    for i in range(6, 16, 4):
        a(f'v_max3_f32 v12, v12, v{S0+i}, v{S0+i+1}')
        if i + 2 < 16: a(f'v_max3_f32 v13, v13, v{S0+i+2}, v{S0+i+3}')
    a('''
v_max_f32 v12, v12, v13
v_mov_b32 v13, v12
v_permlane32_swap_b32 v12, v13
v_max_f32 v12, v12, v13
''')
    for i in range(16): a(f'v_sub_f32 v{C+i}, 0, v12')
    a(f'v_mfma_f32_32x32x16_bf16 v[{S0}:{S0+15}], v[{KK}:{KK+3}], v[{Q}:{Q+3}], v[{C}:{C+15}]')
    a(f'ds_read_b128 v[{KK}:{KK+3}], v8 offset:2048')
    a(f'ds_read_b128 v[{VA}:{VA+3}], v9')
    a('s_nop 7')

    nvm = [0]
    def wo_ld(f, reg):
        ks, c = f >> 2, f & 3
        a(f's_add_u32 s12, s13, {c*16384 + ks*1024}')
        a(f'buffer_load_dwordx4 v[{reg}:{reg+3}], v3, s[20:23], s12 offen sc1')
        nvm[0] += 1
    def wo_dma(f, ldsoff):
        ks, c = f >> 2, f & 3
        a(f's_add_u32 s10, s53, {ldsoff}')
        a('s_mov_b32 m0, s10')
        a(f's_add_u32 s12, s13, {c*16384 + ks*1024}')
        a('buffer_load_dwordx4 v3, s[20:23], s12 offen lds')
        nvm[0] += 1
    def ev_addr():
        a('''
v_and_b32 v13, 7, v2
v_add_u32 v13, s6, v13
v_lshlrev_b32 v14, 10, v13
v_lshrrev_b32 v15, 3, v2
v_lshl_add_u32 v14, v15, 4, v14
s_lshl_b32 s12, s3, 7
v_add_u32 v14, s12, v14
s_lshl_b32 s13, s3, 16
s_mul_i32 s62, s3, 28672
s_lshl_b32 s12, s5, 7
s_add_u32 s62, s62, s12
''')
        a(f's_add_u32 s13, s13, {WS_WOF}')
        a(f'global_load_dwordx4 v[{XR}:{XR+3}], v14, s[16:17]')
    xmark = [0]
    def ev_xld():
        a('s_getreg_b32 s58, hwreg(HW_REG_XCC_ID)')
        a('s_and_b32 s58, s58, 7')
        a('s_lshl_b32 s39, s4, 8')
        a(f's_add_u32 s39, s39, {WS_XT}')
        a('v_lshlrev_b32 v15, 3, v4')
        a('buffer_load_dwordx2 v[12:13], v15, s[20:23], s39 offen sc1')
        xmark[0] = nvm[0]
    def ev_xchk():
        a(f's_waitcnt vmcnt({nvm[0] - xmark[0]})')
        a("""
s_mov_b32 s38, 0x80000
M_XW:
v_cmp_eq_u32 vcc, s59, v13
s_cmp_eq_u64 vcc, -1
s_cbranch_scc1 M_XG
buffer_load_dwordx2 v[12:13], v15, s[20:23], s39 offen sc1
s_waitcnt vmcnt(0)
s_sub_u32 s38, s38, 1
s_cmp_lg_u32 s38, 0
s_cbranch_scc1 M_XW
M_XG:
v_cmp_eq_u32 vcc, s58, v12
s_cmp_eq_u64 vcc, -1
""")
        a(f's_cselect_b32 s60, {0 if FORCE_SLOW else 1}, 0')
        a('s_lshl_b32 s61, s4, 11')
        a(f's_add_u32 s61, s61, {WS_FLAG}')
    MW = 2
    def mod_a():
        a(f's_cmp_lg_u32 s3, {MW}')
        a('s_cbranch_scc1 M_MA')
        a('s_lshl_b32 s38, s5, 9')
        a(f's_add_u32 s38, s38, {WS_MODG + 8192}')
        mod_ld()
        a('M_MA:')
    def mod_ld():
        for p in range(4):
            a(f's_add_u32 s12, s38, {p*24576}')
            a(f'buffer_load_dwordx2 v[{240+2*p}:{241+2*p}], v12, s[20:23], s12 offen sc1')
    def mod_b():
        a(f's_cmp_lg_u32 s3, {MW}')
        a('s_cbranch_scc1 M_MB')
        a('s_mov_b32 s39, 0x40000')
        a('M_MW:')
        a('s_waitcnt vmcnt(0)')
        for p in range(4): a(f'v_xor_b32 v{241+2*p}, s59, v{241+2*p}')
        a('v_or3_b32 v241, v241, v243, v245')
        a('v_or_b32 v241, v241, v247')
        a('v_cmp_eq_u32 vcc, 0, v241')
        a('s_cmp_eq_u64 vcc, -1')
        a('s_cbranch_scc1 M_MG')
        mod_ld()
        a('s_sub_u32 s39, s39, 1')
        a('s_cmp_lg_u32 s39, 0')
        a('s_cbranch_scc1 M_MW')
        a('s_waitcnt vmcnt(0)')
        a('M_MG:')
        a('v_add_f32 v240, v240, v242')
        a('v_add_f32 v244, v244, v246')
        a('v_add_f32 v240, v240, v244')
        round_bf16(a, 240)
        a('s_lshr_b32 s12, s5, 3')
        a('s_cmp_lg_u32 s12, 2')
        a('s_cbranch_scc1 M_NOADD')
        a('v_add_f32 v240, 1.0, v240')
        round_bf16(a, 240)
        a('M_NOADD:')
        a('s_lshl_b32 s12, s4, 13')
        a('s_lshl_b32 s39, s5, 8')
        a('s_add_u32 s12, s12, s39')
        a(f's_add_u32 s12, s12, {WS_MODF}')
        a('v_lshlrev_b32 v241, 2, v2')
        a('buffer_store_dword v240, v241, s[20:23], s12 offen sc0 sc1')
        a('M_MB:')
        mk_[0] = nvm[0]
    mk_ = [0, 0, 0]
    def mod_c():
        a(f's_cmp_lg_u32 s3, {MW}')
        a('s_cbranch_scc1 M_MC')
        a('s_lshl_b32 s12, s4, 5')
        a('s_add_u32 s12, s12, s5')
        a('s_lshl_b32 s12, s12, 2')
        a(f's_add_u32 s12, s12, {WS_MFL}')
        a('v_mov_b32 v12, s59')
        a('v_mov_b32 v13, 0')
        a(f's_waitcnt vmcnt({nvm[0] - mk_[0]})')
        a('s_mov_b64 exec, 1')
        a('buffer_store_dword v12, v13, s[20:23], s12 offen sc0 sc1')
        a('s_mov_b64 exec, -1')
        a('M_MC:')
    def mod_d():
        a('s_lshl_b32 s38, s4, 7')
        a(f's_add_u32 s38, s38, {WS_MFL}')
        a('v_lshlrev_b32 v13, 2, v4')
        a('buffer_load_dword v12, v13, s[20:23], s38 offen sc1')
        mk_[1] = nvm[0]
    def mod_e():
        a(f's_waitcnt vmcnt({nvm[0] - mk_[1]})')
        a("""
s_mov_b32 s39, 0x80000
M_EW:
v_cmp_eq_u32 vcc, s59, v12
s_cmp_eq_u64 vcc, -1
s_cbranch_scc1 M_EG
s_sleep 2
buffer_load_dword v12, v13, s[20:23], s38 offen sc1
s_waitcnt vmcnt(0)
s_sub_u32 s39, s39, 1
s_cmp_lg_u32 s39, 0
s_cbranch_scc1 M_EW
M_EG:
s_cmp_ge_u32 s3, 6
""")
        a(f's_cselect_b32 s12, {L_GB - 6144}, {L_MODS}' if False else f's_mov_b32 s12, {L_MODS}')
        a(f's_cselect_b32 s12, {L_GB - 6144}, s12')
        a('s_add_u32 s12, s12, s63')
        a('s_mov_b32 m0, s12')
        a('s_lshl_b32 s12, s4, 13')
        a('s_add_u32 s12, s12, s63')
        a(f's_add_u32 s12, s12, {WS_MODF}')
        a('buffer_load_dwordx4 v3, s[20:23], s12 offen sc1 lds')
        mk_[2] = nvm[0]
    def prio(p, tag):
        def f():
            a('s_cmp_lt_u32 s3, 4')
            a(f's_cbranch_scc1 M_P{tag}')
            a(f's_setprio {p}')
            a(f'M_P{tag}:')
        return f
    def touch_setup():
        a('s_mul_i32 s54, s5, 57344')
        a('v_lshlrev_b32 v11, 7, v2')
        for r in (64, 68, 72):
            a(f's_and_b32 s{r+1}, s{r+1}, 0xffff')
            a(f's_mov_b32 s{r+2}, 1835008')
            a(f's_mov_b32 s{r+3}, 0x20000')
    def touch(u):
        def f():
            mat, k = u // 7, u % 7
            a(f's_cmp_lg_u32 s3, {u & 7}')
            a(f's_cbranch_scc1 M_T{u}')
            a(f's_add_u32 s55, s54, {k*8192}')
            a(f'buffer_load_dword v1, v11, s[{64+4*mat}:{67+4*mat}], s55 offen')
            a(f'M_T{u}:')
        return f
    side = {T: [] for T in range(64)}
    def gf_ld():
        a(f's_mov_b32 s15, {WS_GFL}')
        a('buffer_load_dwordx4 v[220:223], v3, s[20:23], s15 offen sc1')
        a(f's_mov_b32 s15, {WS_WFL}')
        a('buffer_load_dwordx2 v[216:217], v12, s[20:23], s15 offen sc1')
    def gf_chk():
        a('s_mov_b32 s36, 0x80000')
        a('M_GW:')
        a('s_waitcnt vmcnt(0)')
        for r in (216, 217, 220, 221, 222, 223): a(f'v_xor_b32 v{r}, s59, v{r}')
        a("""
v_or3_b32 v220, v220, v221, v222
v_or_b32 v216, v216, v217
v_or3_b32 v220, v220, v223, v216
v_cmp_eq_u32 vcc, 0, v220
s_cmp_eq_u64 vcc, -1
s_cbranch_scc1 M_GG
s_sleep 4
""")
        gf_ld()
        a("""
s_sub_u32 s36, s36, 1
s_cmp_lg_u32 s36, 0
s_cbranch_scc1 M_GW
s_waitcnt vmcnt(0)
M_GG:
""")
        a('s_lshl_b32 s61, s4, 11')
        a(f's_add_u32 s61, s61, {WS_FLAG}')
    a('v_lshlrev_b32 v12, 3, v2')
    gf_ld()
    side[2].append(gf_chk)
    for i in range(2, 16): side[min(2 + (i-2)//2, 8)].append(lambda i=i: dma(i))
    side[5].append('vbar6')
    side[11].append('vbar')
    A0, MODT = E_('A0', 12), E_('MODT', 17)
    side[9].append(ev_addr)
    side[10].append(touch_setup)
    side[9].append(mod_a)
    side[12].append(mod_b)
    side[15].append(mod_c)
    side[E_('B0', 34) - 8].append(mod_d)
    side[E_('B0', 34) - 5].append(mod_e)
    NREG = 37
    treg = {f: WO + 4*f for f in range(NREG)}
    WOEND = E_('WOEND', 33)
    for f in range(NREG): side[WOSTART + f*(WOEND - WOSTART)//NREG].append(lambda f=f: wo_ld(f, treg[f]))
    order = []
    def w1setup():
        a("""
v_lshrrev_b32 v7, 3, v2
v_mul_u32_u24 v0, 3584, v7
v_and_b32 v15, 7, v2
v_and_b32 v7, 2, v7
v_xor_b32 v15, v15, v7
v_lshl_add_u32 v0, v15, 4, v0
v_xor_b32 v7, 64, v0
s_mov_b32 s44, s64
s_mov_b32 s45, s65
s_mov_b32 s47, 0x20000
s_mov_b32 s48, s68
s_mov_b32 s49, s69
s_mov_b32 s51, 0x20000
s_cmp_ge_u32 s5, 28
s_cselect_b32 s46, 0, s66
s_cselect_b32 s50, 0, s70
""")
    def w1dma(mat, g, fl=''):
        a(f's_add_u32 s36, s63, {mat*65536 + g*8192}')
        a('s_mov_b32 m0, s36')
        a(f's_add_u32 s37, s62, {g*8*28672}')
        a(f'buffer_load_dwordx4 v{7 if mat else 0}, s[{44+4*mat}:{47+4*mat}], s37 offen {fl} lds')
        order.append(('d', mat, g)); nvm[0] += 1
    B0 = E_('B0', 34)
    side[B0 - 2].append(w1setup)
    side[B0 - 1].append('mbar')
    for g in range(12):
        T = B0 + g*(E_('BEND', 62) - B0)//12
        if g == 8:
            assert T >= 50
            side[T - 1].append('bar')
        side[T].append(lambda g=g: w1dma(g >> 3, g & 7, W1F))
    def tch(tag, w, srdr, base_expr):
        def f():
            a(f's_cmp_lg_u32 s3, {w}')
            a(f's_cbranch_scc1 M_T{tag}')
            for x in base_expr: a(x)
            a(f'buffer_load_dword v1, v11, s[{srdr}:{srdr+3}], s55 offen')
            a(f'M_T{tag}:')
        return f
    if 'm' in TCH:
        side[E_('TG', 20)].append(tch('g', 5, 64, ['s_mul_i32 s55, s2, 7168']))
        side[E_('TG', 20) + 3].append(tch('u', 6, 68, ['s_mul_i32 s55, s2, 7168']))
    if 'u' in TCH:
        for k in range(4):
            side[E_('TU0', 40) + E_('TUS', 6)*k].append(tch(f'v{k}', k, 68, ['s_mul_i32 s55, s5, 28672', f's_add_u32 s55, s55, {917504 + min(k*8192, 28672-8192)}']))
    if 'd' in TCH:
        for k in range(7):
            side[E_('TD0', 20) + 3*k].append(tch(f'w{k}', k, 72, [f's_add_u32 s55, s54, {k*8192}']))
    def touch_wd():
        a('s_cmp_lg_u32 s3, 7')
        a('s_cbranch_scc1 M_TD')
        a('s_mul_i32 s55, s2, 7168')
        a('buffer_load_dword v1, v11, s[72:75], s55 offen')
        a('M_TD:')
    side[E_('TWD', 37)].append(touch_wd)
    for k in range(2):
        side[E_('TO', 12)].append(tch(f'o{k}', k, 20, ['s_lshl_b32 s55, s5, 14', f's_add_u32 s55, s55, {WS_WOF + k*8192}']))
    def preown():
        a(f'global_store_dwordx4 v14, v[{Q}:{Q+3}], s[56:57]')
        nvm[0] += 1
    def preown2():
        a("""
s_lshl_b32 s36, s4, 3
s_add_u32 s36, s36, s3
s_mul_i32 s36, s36, 0x1c000
s_min_u32 s37, s5, 27
s_lshl_b32 s37, s37, 12
s_add_u32 s36, s36, s37
""")
        a(f's_add_u32 s36, s36, {WS_ACTF}')
        if 'L' in PRE:
            a('v_lshlrev_b32 v13, 6, v2')
            a(f'buffer_load_dword v1, v13, s[20:23], s36 offen')
            nvm[0] += 1
        else:
            a('s_cmp_ge_u32 s5, 28')
            a('s_cbranch_scc1 M_NPO')
            for c in range(4): a(f'buffer_store_dwordx4 v[{Q}:{Q+3}], v3, s[20:23], s36 offen offset:{c*1024}')
            a('M_NPO:')
    if 'h' in PRE: side[E_('PREH', 35)].append(preown)
    def act_touch(w):
        def f():
            a(f's_cmp_lg_u32 s3, {w}')
            a(f's_cbranch_scc1 M_AT{w}')
            a("""
s_lshl_b32 s36, s4, 3
s_add_u32 s36, s36, s3
s_mul_i32 s36, s36, 0x1c000
s_min_u32 s37, s5, 27
s_lshl_b32 s37, s37, 12
s_add_u32 s36, s36, s37
s_mov_b32 exec_hi, 0
""")
            a(f's_add_u32 s36, s36, {WS_ACTF}')
            a(f'buffer_load_dword v1, v11, s[20:23], s36 offen {ATF}')
            a('s_mov_b64 exec, -1')
            a(f'M_AT{w}:')
        return f
    if 'a' in PRE:
        for w in range(8): side[E_('AT0', 18) + w*E_('ATS', 2)].append(act_touch(w))
    for T in range(0, 64, PRIO_PERIOD):
        side[T].insert(0, prio(1, f'a{T}'))
        side[T + PRIO_HI].insert(0, prio(0, f'b{T}'))
    SK = os.environ.get('SK', '')
    def kind(f):
        if isinstance(f, str): return 'b' if f == 'bar' else ''
        q = getattr(f, '__qualname__', '')
        src = f.__code__.co_names + f.__code__.co_freevars
        if 'modld' in q or 'ev_mod' in q: return 'm'
        if 'wo_ld' in src: return 'w'
        if 'w1dma' in src: return 'd'
        if 'preown' in q: return 'p'
        if 'tch' in q or 'touch_wd' in q or 'act_touch' in q: return 't'
        return ''
    for T in side: side[T] = [f for f in side[T] if not (kind(f) and kind(f) in SK)]
    LT = [int(x) for x in os.environ.get('LT', '2,5,11,20,33').split(',')]
    for T in range(64):
        tile(a, T & 7, [x for x in side[T] if not isinstance(x, str)])
        if 'vbar' in side[T]: a('s_waitcnt vmcnt(0)')
        if 'vbar6' in side[T]: a('s_waitcnt vmcnt(6)')
        if 'mbar' in side[T]:
            a(f's_waitcnt vmcnt({nvm[0] - mk_[2]})')
            a('s_barrier')
        if 'vbar' in side[T] or 'bar' in side[T] or 'vbar6' in side[T]: a('s_barrier')
        if 'l' in DIAG and T in LT: stamp(a, 6 + LT.index(T))

    if 'F' not in DIAG: stamp(a, 5)
    a('s_setprio 0')
    a(f'v_cvt_pk_bf16_f32 v{P+7}, v{S1+14}, v{S1+15}')
    a('s_waitcnt lgkmcnt(0)')
    a(f'v_mfma_f32_32x32x16_bf16 v[{O}:{O+15}], v[{VB}:{VB+3}], v[{P+4}:{P+7}], v[{O}:{O+15}]')
    a(f'v_add_f32 v12, |v{O}|, |v{O+1}|')
    a(f'v_add_f32 v13, |v{O+2}|, |v{O+3}|')
    a(f'v_add_f32 v12, v12, |v{O+4}|')
    a(f'v_add_f32 v13, v13, |v{O+5}|')
    a(f'v_add_f32 v12, v12, |v{O+6}|')
    a(f'v_add_f32 v13, v13, |v{O+7}|')
    a(f'v_add_f32 v12, v12, v{O+8}')
    a('v_add_f32 v12, v12, v13')
    a('s_mov_b32 s12, 0x7e800000')
    a('v_cmp_gt_f32 vcc, s12, v12')
    a('s_cmp_eq_u64 vcc, -1')
    a('s_cbranch_scc0 M_SLOW')
    a('M_FIN:')
    ACC = S1
    ring = [KK, VA, VB, Q]
    a(f'v_rcp_f32 v12, v{O+8}')
    for i in range(8): a(f'v_mul_f32 v{O+i}, v{O+i}, v12')
    for i in range(4): a(f'v_cvt_pk_bf16_f32 v{P+i}, v{O+2*i}, v{O+2*i+1}')
    a('s_mul_i32 s12, s3, 1056')
    a(f's_add_u32 s12, s12, {L_OX}')
    a('v_add_u32 v12, s12, v6')
    a(f'ds_write_b128 v12, v[{P}:{P+3}]')
    late = [C, C+4, C+8, C+12, S0, S0+4, S0+8, S0+12]
    freg = dict(treg)
    nxt = NREG
    order.clear()
    for r in late:
        freg[nxt] = r; wo_ld(nxt, r); order.append(nxt); nxt += 1
    a("""
v_and_b32 v13, 7, v2
v_mul_u32_u24 v13, 1056, v13
v_lshrrev_b32 v15, 4, v2
v_lshl_add_u32 v13, v15, 4, v13
""")
    a(f'v_add_u32 v13, {L_OX}, v13')
    a('s_waitcnt lgkmcnt(0)')
    for r in (O, O+4, O+8, O+12, P, P+4):
        freg[nxt] = r; wo_ld(nxt, r); order.append(nxt); nxt += 1
    a('s_barrier')
    lg = []
    def lrd_b(ks):
        a(f'ds_read_b128 v[{ring[ks&3]}:{ring[ks&3]+3}], v13 offset:{64*ks}'); lg.append(('b', ks))
    for ks in range(4): lrd_b(ks)
    w1q = [(1, g) for g in range(4, 8)]
    for ks in range(16):
        br = ring[ks & 3]
        for c in range(4):
            f = 4*ks + c
            w = []
            if c == 0: w.append(f'lgkmcnt({len(lg) - lg.index(("b", ks)) - 1})')
            if f in order: w.append(f'vmcnt({len(order) - order.index(f) - 1})')
            elif f == 0: w.append(f'vmcnt({len(order)})')
            if w: a('s_waitcnt ' + ' '.join(w))
            r = freg[f]
            cc = '0' if ks == 0 else f'v[{ACC+4*c}:{ACC+4*c+3}]'
            a(f'v_mfma_f32_16x16x32_bf16 v[{ACC+4*c}:{ACC+4*c+3}], v[{r}:{r+3}], v[{br}:{br+3}], {cc}')
            if nxt < 64:
                freg[nxt] = r; wo_ld(nxt, r); order.append(nxt); nxt += 1
            elif w1q and f >= 30: w1dma(*w1q.pop(0))
        if ks + 4 < 16: lrd_b(ks + 4)
    G, SB, CB, X = 184, 192, 200, 208
    a('''
v_lshrrev_b32 v15, 3, v2
v_lshlrev_b32 v15, 5, v15
s_lshl_b32 s12, s3, 8
''')
    a(f's_add_u32 s12, s12, {L_MODS}')
    a('v_add_u32 v15, s12, v15')
    for i, r in enumerate((G, SB, CB)):
        a(f'ds_read_b128 v[{r}:{r+3}], v15 offset:{2048*i}')
        a(f'ds_read_b128 v[{r+4}:{r+7}], v15 offset:{2048*i+16}')
    unpack(a, X, XR, 4)
    a('v_and_b32 v12, 8, v2')
    a('v_cmp_eq_u32 s[34:35], 0, v12')
    for i in range(8): a(f'v_cndmask_b32 v{ACC+i}, v{ACC+8+i}, v{ACC+i}, s[34:35]')
    a('s_waitcnt lgkmcnt(0)')
    for i in range(8): a(f'v_fmac_f32 v{X+i}, v{ACC+i}, v{G+i}')
    for i in range(4): a(f'v_cvt_pk_bf16_f32 v{XR+i}, v{X+2*i}, v{X+2*i+1}')
    a(f'global_store_dwordx4 v14, v[{XR}:{XR+3}], s[56:57]')
    unpack(a, X, XR, 4)
    def red(r, t):
        a(f'v_add_f32_dpp v{r}, v{r}, v{r} row_ror:8 row_mask:0xf bank_mask:0xf')
        a(f'v_mov_b32 v{t}, v{r}')
        a(f'v_permlane16_swap_b32 v{r}, v{t}')
        a(f'v_add_f32 v{r}, v{r}, v{t}')
        a(f'v_mov_b32 v{t}, v{r}')
        a(f'v_permlane32_swap_b32 v{r}, v{t}')
        a(f'v_add_f32 v{r}, v{r}, v{t}')
    M, D, ST = 216, 220, 228
    a(f'v_add_f32 v{M}, v{X}, v{X+1}')
    a(f'v_add_f32 v{M+1}, v{X+2}, v{X+3}')
    a(f'v_add_f32 v{M+2}, v{X+4}, v{X+5}')
    a(f'v_add_f32 v{M+3}, v{X+6}, v{X+7}')
    a(f'v_add_f32 v{M}, v{M}, v{M+1}')
    a(f'v_add_f32 v{M+2}, v{M+2}, v{M+3}')
    a(f'v_add_f32 v{M}, v{M}, v{M+2}')
    red(M, M+2)
    a(f'v_mul_f32 v{M}, {f32(1/64)}, v{M}')
    for i in range(8): a(f'v_sub_f32 v{D+i}, v{X+i}, v{M}')
    a(f'v_mul_f32 v{M+1}, v{D}, v{D}')
    a(f'v_mul_f32 v{M+2}, v{D+1}, v{D+1}')
    for i in range(2, 8): a(f'v_fmac_f32 v{M+1+(i&1)}, v{D+i}, v{D+i}')
    a(f'v_add_f32 v{M+1}, v{M+1}, v{M+2}')
    red(M+1, M+2)
    a('''
v_and_b32 v12, 7, v2
v_lshlrev_b32 v12, 6, v12
''')
    a(f'v_add_u32 v12, {L_STAT}, v12')
    a('s_lshl_b32 s12, s3, 3')
    a('v_add_u32 v13, s12, v12')
    a('s_mov_b64 exec, 0xff')
    a(f'ds_write_b64 v13, v[{M}:{M+1}]')
    a('s_mov_b64 exec, -1')
    a('''
s_lshr_b32 s12, s6, 5
s_lshl_b32 s12, s12, 15
s_and_b32 s14, s6, 31
s_lshl_b32 s14, s14, 4
s_add_u32 s12, s12, s14
s_lshl_b32 s14, s3, 12
s_add_u32 s12, s12, s14
''')
    a(f's_add_u32 s12, s12, {H2B}')
    a('''
v_lshrrev_b32 v13, 3, v2
v_lshlrev_b32 v13, 9, v13
v_and_b32 v15, 7, v2
v_lshl_add_u32 v13, v15, 4, v13
s_waitcnt lgkmcnt(0)
s_barrier
''')
    for i in range(4): a(f'ds_read_b128 v[{ST+4*i}:{ST+4*i+3}], v12 offset:{16*i}')
    a('s_waitcnt lgkmcnt(0)')
    a(f'v_add_f32 v{M}, v{ST}, v{ST+2}')
    a(f'v_add_f32 v{M+1}, v{ST+1}, v{ST+3}')
    for i in range(2, 8):
        a(f'v_add_f32 v{M}, v{M}, v{ST+2*i}')
        a(f'v_add_f32 v{M+1}, v{M+1}, v{ST+2*i+1}')
    a(f'v_mul_f32 v{M}, {f32(1/8)}, v{M}')
    for i in range(8): a(f'v_sub_f32 v{ST+2*i}, v{ST+2*i}, v{M}')
    a(f'v_mul_f32 v{M+2}, v{ST}, v{ST}')
    for i in range(1, 8): a(f'v_fmac_f32 v{M+2}, v{ST+2*i}, v{ST+2*i}')
    a(f'v_mul_f32 v{M+1}, {f32(1/512)}, v{M+1}')
    a(f'v_fmac_f32 v{M+1}, {f32(1/8)}, v{M+2}')
    a(f'v_add_f32 v{M+1}, {f32(1e-5)}, v{M+1}')
    a(f'v_rsq_f32 v{M+1}, v{M+1}')
    for i in range(8): a(f'v_sub_f32 v{X+i}, v{X+i}, v{M}')
    for i in range(8): a(f'v_mul_f32 v{CB+i}, v{CB+i}, v{M+1}')
    for i in range(8): a(f'v_fmac_f32 v{SB+i}, v{X+i}, v{CB+i}')
    for i in range(4): a(f'v_cvt_pk_bf16_f32 v{D+i}, v{SB+2*i}, v{SB+2*i+1}')
    a(f'buffer_store_dwordx4 v[{D}:{D+3}], v13, s[20:23], s12 offen {STH}')
    stamp(a, 6) if 'l' not in DIAG and 'F' not in DIAG else None
    a('''
s_lshl_b32 s12, s5, 3
s_add_u32 s12, s12, s3
s_lshl_b32 s12, s12, 2
v_mov_b32 v6, s12
v_mov_b32 v7, s59
v_bfe_u32 v16, v2, 4, 1
v_lshlrev_b32 v12, 16, v16
v_lshrrev_b32 v17, 5, v2
v_lshl_add_u32 v12, v17, 10, v12
v_bfe_u32 v17, v2, 2, 2
v_lshl_add_u32 v12, v17, 7, v12
v_bfe_u32 v13, v2, 1, 1
v_lshl_add_u32 v12, v13, 3, v12
v_and_b32 v13, 1, v2
v_and_b32 v17, 2, v17
v_xor_b32 v13, v13, v17
v_lshlrev_b32 v16, 2, v16
v_xor_b32 v13, v13, v16
v_lshl_add_u32 v8, v13, 4, v12
v_xor_b32 v9, 32, v8
v_xor_b32 v10, 64, v8
v_xor_b32 v11, 0x60, v8
s_lshl_b32 s11, s4, 3
s_add_u32 s11, s11, s3
s_mul_i32 s14, s11, 0x1c000
s_lshl_b32 s11, s11, 15
s_lshl_b32 s13, s5, 12
s_add_u32 s14, s14, s13
v_and_b32 v12, 31, v2
s_lshl_b32 s13, s3, 7
v_lshl_add_u32 v12, v12, 2, s13
''')
    a(f'v_mov_b32 v15, {f32(K1C)}')
    a(f's_mov_b32 s42, {f32(K1C)}')
    a(f's_mov_b32 s43, {f32(K0C)}')
    a(f's_add_u32 s11, s11, {H2B}')
    a(f's_add_u32 s14, s14, {WS_ACTF}')
    publish(a, 1, 6, 7, 's61')
    GB = 56
    a("""
s_and_b32 s15, s5, 7
s_lshl_b32 s17, s15, 1
s_and_b32 s6, s3, 1
s_add_u32 s17, s17, s6
s_lshl_b32 s17, s17, 2
s_lshr_b32 s8, s3, 2
s_add_u32 s17, s17, s8
s_lshl_b32 s17, s17, 4
s_lshl_b32 s38, s17, 1
v_lshrrev_b32 v16, 5, v2
""")
    a(f's_add_u32 s38, s38, {L_GB}')
    a('v_lshl_add_u32 v16, v16, 6, s38')
    a(f'ds_read_b128 v[{GB}:{GB+3}], v16')
    a(f'ds_read_b128 v[{GB+4}:{GB+7}], v16 offset:16')
    a("""
v_lshrrev_b32 v16, 3, v2
v_and_b32 v17, 7, v2
v_and_b32 v18, 2, v16
v_lshlrev_b32 v18, 1, v18
v_xor_b32 v17, v17, v18
v_lshlrev_b32 v14, 10, v16
v_lshl_add_u32 v14, v17, 4, v14
s_lshl_b32 s10, s15, 7
s_lshl_b32 s16, s3, 13
s_add_u32 s10, s10, s16
s_lshr_b32 s9, s5, 3
s_mul_i32 s13, s9, 2
s_add_u32 s13, s13, s15
s_cmp_ge_u32 s13, 14
s_cselect_b32 s38, 14, 0
s_sub_u32 s13, s13, s38
s_mov_b32 s39, s13
""")
    WSLOT = [131072, 147456, 0, 16384, 65536, 81920]
    ASLOT = [32768, 49152, 98304, 114688]
    def nxt_stage(r):
        a(f's_add_u32 s{r}, s{r}, 1')
        a(f's_cmp_eq_u32 s{r}, 14')
        a(f's_cselect_b32 s{r}, 0, s{r}')
    def wd_dma(s, k):
        if k == 0:
            a('s_lshl_b32 s18, s13, 17')
            a('s_add_u32 s18, s18, s10')
        a(f's_add_u32 s16, s63, {WSLOT[s % 6] + k*8192}')
        a('s_mov_b32 m0, s16')
        if k: a('s_add_u32 s18, s18, 0x10000')
        a('buffer_load_dwordx4 v14, s[72:75], s18 offen lds')
        if k and s < 13: nxt_stage(13)
    a('s_cmp_ge_u32 s5, 28')
    a('s_cbranch_scc1 M_SPARE')
    poll(a, 1, 12, 13, 's61', 1)
    stamp(a, 7) if 'l' not in DIAG and 'F' not in DIAG else None

    BREG, AC1, AR, NR, LOOK = 128, 64, 32, 6, 4
    KS = E_('KS', 20)
    def rd(c, ks, reg):
        a(f'ds_read_b64_tr_b16 v[{reg}:{reg+1}], v{8+c} offset:{ks*2048}')
        a(f'ds_read_b64_tr_b16 v[{reg+2}:{reg+3}], v{8+c} offset:{ks*2048+512}')
    def store(c, reg):
        a(f'buffer_store_dwordx4 v[{reg}:{reg+3}], v3, s[20:23], s14 offen offset:{c*1024} {STA}')
    def epi(c):
        o = []
        for i in range(4): o += gelu_ops(AC1+16*c, AC1+16*c+8, 16 + 2*(i & 1), 24 + 4*(c & 1), i)
        o.append(('STORE', c))
        return o
    def emit(o):
        if isinstance(o, tuple): store(o[1], 24 + 4*(o[1] & 1))
        else: a(o)
    def f2_setup():
        a("""
s_bfe_u32 s7, s3, 0x10001
v_lshrrev_b32 v16, 5, v2
v_lshlrev_b32 v8, 10, v16
v_bfe_u32 v17, v2, 2, 2
v_lshl_add_u32 v8, v17, 7, v8
v_bfe_u32 v5, v2, 1, 1
v_lshl_add_u32 v8, v5, 3, v8
v_and_b32 v5, 1, v2
v_lshlrev_b32 v5, 1, v5
v_bfe_u32 v9, v2, 4, 1
v_add_u32 v5, v5, v9
v_and_b32 v17, 2, v17
v_lshl_add_u32 v5, v17, 1, v5
s_lshl_b32 s38, s6, 2
v_xor_b32 v5, s38, v5
v_lshl_add_u32 v8, v5, 4, v8
s_lshl_b32 s38, s8, 13
v_add_u32 v8, s38, v8
v_add_u32 v9, 0x10000, v8
v_add_u32 v13, 0x20000, v8
s_lshl_b32 s38, s7, 13
s_lshl_b32 s40, s8, 12
s_add_u32 s38, s38, s40
v_add_u32 v10, s38, v3
v_add_u32 v11, 0x10000, v10
s_lshl_b32 s40, s4, 2
s_add_u32 s40, s40, s9
s_mul_i32 s11, s40, 0x38000
s_add_u32 s11, s11, s63
""")
        a(f's_add_u32 s11, s11, {WS_ACTF}')
        a("""
s_lshl_b32 s40, s40, 1
s_add_u32 s40, s40, s7
s_lshl_b32 s40, s40, 15
s_add_u32 s40, s40, s17
v_and_b32 v12, 31, v2
v_min_u32 v5, 27, v12
v_lshlrev_b32 v12, 10, v12
v_lshl_add_u32 v12, v16, 5, v12
v_add_u32 v12, s40, v12
s_lshl_b32 s38, s3, 11
v_add_u32 v4, s38, v3
s_xor_b32 s38, s38, 0x2000
v_add_u32 v15, s38, v3
v_lshl_add_u32 v5, v16, 5, v5
s_lshl_b32 s38, s9, 8
s_add_u32 s38, s38, 1024
v_lshl_add_u32 v5, v5, 2, s38
""")
    SPAN = E_('F1SPAN', 52)
    def wd_dma4(s_, k):
        if k == 0:
            a('s_lshl_b32 s18, s13, 17')
            a('s_add_u32 s18, s18, s10')
        a(f's_add_u32 s16, s63, {WSLOT[s_ % 6] + k*4096}')
        a('s_mov_b32 m0, s16')
        if k: a('s_add_u32 s18, s18, 0x8000')
        a('buffer_load_dwordx4 v14, s[72:75], s18 offen lds')
        if k == 3: nxt_stage(13)
    def tail(c):
        A3 = AC1 + 16*c
        out = 24 + 4*(c & 1)
        if E_('PK', 0):
            G_, U_, T_ = A3, A3 + 8, 16
            pr = lambda b, i: f'v[{b+2*i}:{b+2*i+1}]'
            for i in range(4): a(f'v_pk_mul_f32 {pr(T_,i)}, {pr(G_,i)}, {pr(G_,i)}')
            for i in range(4): a(f'v_pk_fma_f32 {pr(T_,i)}, {pr(T_,i)}, s[42:43], s[42:43] op_sel:[0,0,1] op_sel_hi:[1,0,1]')
            for i in range(4): a(f'v_pk_mul_f32 {pr(T_,i)}, {pr(T_,i)}, {pr(G_,i)}')
            for i in range(8): a(f'v_exp_f32 v{T_+i}, v{T_+i}')
            for i in range(4): a(f'v_pk_mul_f32 {pr(G_,i)}, {pr(G_,i)}, {pr(U_,i)}')
            for i in range(4): a(f'v_pk_add_f32 {pr(T_,i)}, {pr(T_,i)}, 1.0 op_sel_hi:[1,0]')
            for i in range(8): a(f'v_rcp_f32 v{T_+i}, v{T_+i}')
            for i in range(4): a(f'v_pk_mul_f32 {pr(G_,i)}, {pr(G_,i)}, {pr(T_,i)}')
            for i in range(4): a(f'v_cvt_pk_bf16_f32 v{out+i}, v{G_+2*i}, v{G_+2*i+1}')
        else:
            seqs = [[o for o in gelu_ops(A3, A3+8, 16 + 2*i, out, i) if o != 's_nop 0'] for i in range(4)]
            for k in range(0, len(seqs[0]), 2):
                for s_ in seqs:
                    for o in s_[k:k+2]: a(o)
        store(c, out)
    seq = [(c, ks) for ks in range(16) for c in range(4)] + [(c, ks) for c in range(4) for ks in range(16, 32)]
    def step(n, wv=''):
        c, ks = seq[n]
        if n + LOOK < len(seq): rd(*seq[n + LOOK], AR + 4*((n + LOOK) % NR))
        a(f's_waitcnt lgkmcnt({2*(min(len(seq)-1, n+LOOK) - n)}){wv}')
        cc = '0' if ks == 0 else f'v[{AC1+16*c}:{AC1+16*c+15}]'
        r = AR + 4*(n % NR)
        a(f'v_mfma_f32_32x32x16_bf16 v[{AC1+16*c}:{AC1+16*c+15}], v[{r}:{r+3}], v[{BREG+4*ks}:{BREG+4*ks+3}], {cc}')
        if 'f' in DIAG and n in (0, 32, 63, 96, 127): stamp(a, 1 + (0, 32, 63, 96, 127).index(n))
    def half1(young):
        vm = []
        def bld(ks):
            if ks & 3 == 0 and ks: a('s_add_u32 s11, s11, 4096')
            a(f'buffer_load_dwordx4 v[{BREG+4*ks}:{BREG+4*ks+3}], v3, s[20:23], s11 offen offset:{(ks&3)*1024} {LD}')
            vm.append(ks)
        if young:
            a('s_waitcnt lgkmcnt(0)')
            a('s_barrier')
            a('s_barrier')
            for ks in range(16): bld(ks)
        else:
            for ks in range(NL0): bld(ks)
            a('s_waitcnt lgkmcnt(0)')
            a('s_barrier')
        for n in range(LOOK): rd(*seq[n], AR + 4*(n % NR))
        for n in range(64):
            c, ks = seq[n]
            if not young and len(vm) < 16:
                bld(len(vm))
                if len(vm) == 16: a('s_barrier')
            if young and n >= 64 - 16*PY and (64 - n) % PY == 0: bld(len(vm))
            if not young and n >= LB0 and len(vm) < 32 and n % 4 == 2: bld(len(vm))
            step(n, f' vmcnt({len(vm) - vm.index(ks) - 1})' if c == 0 else '')
        while len(vm) < 32: bld(len(vm))
    NL0, PY, LB0 = E_('NL0', 10), E_('PY', 2), E_('LB0', 40)
    a('s_cmp_ge_u32 s3, 4')
    a('s_cbranch_scc1 M_F1Y')
    half1(False)
    a('s_branch M_F1J')
    a('M_F1Y:')
    half1(True)
    a('M_F1J:')
    a('s_barrier')
    wdq = [(s_, k) for s_ in range(6) for k in range(2)]
    nd = 0
    WDN = E_('WDN', 70)
    for n in range(64, 128):
        step(n, f' vmcnt({79 - n + nd})' if n < 80 else '')
        if wdq and n >= WDN and (n - WDN) % 3 == 0: wd_dma(*wdq.pop(0)); nd += 1
        if n % 16 == 15: tail(seq[n][0])
    assert not wdq
    stamp(a, 8) if 'l' not in DIAG and 'F' not in DIAG else None
    a("""
s_lshl_b32 s12, s3, 5
s_add_u32 s12, s12, s5
s_lshl_b32 s12, s12, 2
s_add_u32 s12, s12, 1024
v_mov_b32 v6, s12
""")
    f2_setup()
    publish(a, 2, 6, 7, 's61')
    a('s_branch M_F2')
    a('M_SPARE:')
    a('s_waitcnt vmcnt(0) lgkmcnt(0)')
    a('s_barrier')
    a('''
s_sub_u32 s7, s5, 28
s_lshl_b32 s7, s7, 3
s_add_u32 s7, s7, s3
s_lshl_b32 s7, s7, 13
v_lshlrev_b32 v4, 7, v2
''')
    if '1' in os.environ.get('WB', ''):
        a('s_cmp_lg_u32 s7, 0')
        a('s_cbranch_scc1 M_NWB1')
        a('s_sleep 40')
        a('buffer_wbl2 sc1')
        a('M_NWB1:')
    for i in range(7):
        a(f'buffer_load_dword v{16+i}, v4, s[72:75], s7 offen')
        if i < 6: a('s_add_u32 s7, s7, 0x40000')
    for s_ in range(6):
        for k in range(2): wd_dma(s_, k)
    f2_setup()
    a('s_waitcnt vmcnt(0)')

    a('M_F2:')
    AC2, AF, BF, X2 = 16, 32, 64, 80
    a('s_cmp_lg_u32 s3, 0')
    a('s_cbranch_scc1 M_NP2')
    poll(a, 2, 5, 6, 's61', 2)
    a('M_NP2:')
    a('s_barrier')
    stamp(a, 9) if 'l' not in DIAG and 'F' not in DIAG else None
    vm = []
    def issue_a(s_):
        a('s_lshl_b32 s19, s39, 13')
        a('s_add_u32 s19, s19, s11')
        for k in range(2):
            a(f's_add_u32 s16, s63, {ASLOT[s_ & 3] + k*8192}')
            a('s_mov_b32 m0, s16')
            if k: a('s_add_u32 s19, s19, 0x1c000')
            a(f'buffer_load_dwordx4 v3, s[20:23], s19 offen {LD} lds')
        vm.extend([s_]*2)
        if s_ < 13: nxt_stage(39)
    for s_ in range(4): issue_a(s_)
    a(f'global_load_dwordx4 v[{X2}:{X2+3}], v12, s[56:57] {LD}')
    vm.append(3)
    for s_ in range(14):
        a(f's_waitcnt vmcnt({len(vm) - 1 - max(i for i, x in enumerate(vm) if x <= s_)})')
        a('s_barrier')
        if 's' in DIAG and s_ in (0, 3, 6, 9, 12): stamp(a, 1 + s_//3)
        wo_, ao = WSLOT[s_ % 6], ASLOT[s_ & 3]
        va = (8, 9, 13)[wo_ >> 16]; vb = (10, 11)[ao >> 16]
        for j in range(4):
            a(f'ds_read_b128 v[{BF+4*j}:{BF+4*j+3}], v{vb} offset:{(ao & 0xffff) + j*1024}')
            a(f'ds_read_b64_tr_b16 v[{AF+4*j}:{AF+4*j+1}], v{va} offset:{(wo_ & 0xffff) + j*2048}')
            a(f'ds_read_b64_tr_b16 v[{AF+4*j+2}:{AF+4*j+3}], v{va} offset:{(wo_ & 0xffff) + j*2048 + 512}')
        if s_ >= 1:
            if s_ + 3 < 14: issue_a(s_ + 3)
            if s_ + 5 < 14:
                for k in range(2): wd_dma(s_ + 5, k)
                vm.extend([s_ + 5]*2)
        if '2' in os.environ.get('WB', '') and s_ == 10:
            a('s_lshl_b32 s38, s5, 3')
            a('s_add_u32 s38, s38, s3')
            a('s_cmp_lg_u32 s38, 255')
            a('s_cbranch_scc1 M_NWB2')
            a('buffer_wbl2 sc1')
            a('M_NWB2:')
        for j in range(4):
            a(f's_waitcnt lgkmcnt({9-3*j})')
            cc = '0' if (s_ == 0 and j == 0) else f'v[{AC2}:{AC2+15}]'
            a(f'v_mfma_f32_32x32x16_bf16 v[{AC2}:{AC2+15}], v[{AF+4*j}:{AF+4*j+3}], v[{BF+4*j}:{BF+4*j+3}], {cc}')
    stamp(a, 10) if 'l' not in DIAG and 'F' not in DIAG else None
    unpack(a, 88, X2, 4)
    a('s_cmp_ge_u32 s3, 4')
    a('s_cbranch_scc1 F2_HI')
    a(f'ds_write_b128 v4, v[{AC2+8}:{AC2+11}]')
    a(f'ds_write_b128 v4, v[{AC2+12}:{AC2+15}] offset:1024')
    a('s_branch F2_X')
    a('F2_HI:')
    a('s_nop 2')
    a(f'ds_write_b128 v4, v[{AC2}:{AC2+3}]')
    a(f'ds_write_b128 v4, v[{AC2+4}:{AC2+7}] offset:1024')
    for i in range(8): a(f'v_mov_b32 v{AC2+i}, v{AC2+8+i}')
    a('F2_X:')
    a('s_waitcnt lgkmcnt(0)')
    a('s_barrier')
    a(f'ds_read_b128 v[{AF}:{AF+3}], v15')
    a(f'ds_read_b128 v[{AF+4}:{AF+7}], v15 offset:1024')
    a('s_waitcnt lgkmcnt(0)')
    for i in range(8): a(f'v_add_f32 v{AC2+i}, v{AC2+i}, v{AF+i}')
    for i in range(8): a(f'v_fmac_f32 v{88+i}, v{AC2+i}, v{GB+i}')
    for i in range(4): a(f'v_cvt_pk_bf16_f32 v{X2+i}, v{88+2*i}, v{89+2*i}')
    a(f'global_store_dwordx4 v12, v[{X2}:{X2+3}], s[56:57] {STO}')
    for off in [int(x, 0) for x in os.environ.get('XLOAD', '').split(',') if x]:
        a('s_lshl_b32 s12, s2, 7')
        a(f's_add_u32 s12, s12, {off}')
        a('v_mov_b32 v0, s12')
        a('global_load_dword v1, v0, s[30:31]')
        a('s_waitcnt vmcnt(0)')
    prof_end(a, 0, 3, 30)
    a('M_END2:')
    a('s_endpgm')

    a('M_SLOW:')
    a('v_mov_b32 v12, 0xff800000')
    a(f's_mov_b32 s12, {WS_KVF}')
    a('M_SL1:')
    a(f'buffer_load_dwordx4 v[{KK}:{KK+3}], v3, s[20:23], s12 offen sc1')
    a('s_waitcnt vmcnt(0)')
    a(f'v_mfma_f32_32x32x16_bf16 v[{S0}:{S0+15}], v[{KK}:{KK+3}], v[{Q}:{Q+3}], 0')
    for i in range(0, 16, 2): a(f'v_max3_f32 v12, v12, v{S0+i}, v{S0+i+1}')
    a('s_add_u32 s12, s12, 2048')
    a(f's_cmp_lt_u32 s12, {WS_KVF + 131072}')
    a('s_cbranch_scc1 M_SL1')
    a('''
v_mov_b32 v13, v12
v_permlane32_swap_b32 v12, v13
v_max_f32 v12, v12, v13
''')
    for i in range(16): a(f'v_sub_f32 v{C+i}, 0, v12')
    for i in range(16): a(f'v_mov_b32 v{O+i}, 0')
    for i in range(8): a(f'v_mov_b32 v{VA+i}, 0x3f803f80')
    a('''
v_lshl_add_u32 v13, v5, 4, v4
v_lshlrev_b32 v13, 4, v13
''')
    a(f's_mov_b32 s12, {WS_KVF}')
    a('M_SL2:')
    a(f'buffer_load_dwordx4 v[{KK}:{KK+3}], v3, s[20:23], s12 offen sc1')
    a('s_mov_b64 exec, s[32:33]')
    a(f'buffer_load_dwordx4 v[{VA}:{VA+3}], v13, s[20:23], s12 offen offset:1024 sc1')
    a(f'buffer_load_dwordx4 v[{VB}:{VB+3}], v13, s[20:23], s12 offen offset:1536 sc1')
    a('s_mov_b64 exec, -1')
    a('s_waitcnt vmcnt(0)')
    a(f'v_mfma_f32_32x32x16_bf16 v[{S0}:{S0+15}], v[{KK}:{KK+3}], v[{Q}:{Q+3}], v[{C}:{C+15}]')
    for i in range(16): a(f'v_exp_f32 v{S0+i}, v{S0+i}')
    for i in range(8): a(f'v_cvt_pk_bf16_f32 v{P+i}, v{S0+2*i}, v{S0+2*i+1}')
    a(f'v_mfma_f32_32x32x16_bf16 v[{O}:{O+15}], v[{VA}:{VA+3}], v[{P}:{P+3}], v[{O}:{O+15}]')
    a(f'v_mfma_f32_32x32x16_bf16 v[{O}:{O+15}], v[{VB}:{VB+3}], v[{P+4}:{P+7}], v[{O}:{O+15}]')
    a('s_add_u32 s12, s12, 2048')
    a(f's_cmp_lt_u32 s12, {WS_KVF + 131072}')
    a('s_cbranch_scc1 M_SL2')
    a('s_nop 15')
    a('s_branch M_FIN')
    a('CODE_END:')
    a('s_endpgm')
    return K
```

```python
from common import *
QSCALE = 0.25 * LOG2E
E_ = lambda k, d: int(os.environ.get(k, str(d)))
L_KVW = 131072
L_MOD = 147456
L_WOS = L_MOD + 4096
L_TAG = L_WOS + 4096
WT = 'sc0 sc1'

FD = 'F' in os.environ.get('DIAG', '')
def fs(a, i):
    if FD: stamp(a, i)
def fphase(a):
    a('''
s_load_dwordx4 s[16:19], s[0:1], 0
s_load_dwordx4 s[32:35], s[0:1], 72
s_load_dwordx2 s[30:31], s[0:1], 104
s_load_dwordx4 s[24:27], s[0:1], 16
s_load_dwordx2 s[28:29], s[0:1], 32
s_load_dwordx2 s[64:65], s[0:1], 48
s_load_dwordx2 s[68:69], s[0:1], 56
s_load_dwordx2 s[72:73], s[0:1], 64
s_load_dwordx2 s[56:57], s[0:1], 88
''')
    code_touch(a, NAME + '_kernel', 'CODE_END', 'a')
    a('''
v_lshrrev_b32 v1, 6, v0
v_and_b32 v2, 63, v0
v_readfirstlane_b32 s3, v1
s_and_b32 s4, s2, 7
s_lshr_b32 s5, s2, 3
s_lshr_b32 s6, s5, 2
s_lshl_b32 s7, s4, 3
s_add_u32 s7, s7, s6
s_and_b32 s8, s5, 3
v_lshlrev_b32 v3, 4, v2
''')
    a(f'v_mov_b32 v15, {L_TAG}')
    a('s_cmp_lt_u32 s3, 4')
    a('s_cbranch_scc1 F_LO')
    a("""
s_sub_u32 s9, s3, 4
v_lshrrev_b32 v6, 3, v2
v_and_b32 v7, 7, v2
v_and_b32 v5, 2, v6
v_lshlrev_b32 v5, 1, v5
v_xor_b32 v7, v7, v5
v_lshlrev_b32 v4, 10, v6
v_lshl_add_u32 v4, v7, 4, v4
v_add_u32 v14, 128, v4
s_lshl_b32 s10, s8, 8
s_lshl_b32 s11, s9, 13
s_add_u32 s10, s10, s11
s_lshl_b32 s12, s9, 10
s_lshl_b32 s13, s6, 16
s_mov_b32 s15, s12
s_mov_b32 s38, 524288
s_mov_b32 s39, 0x20000
s_waitcnt lgkmcnt(0)
""")
    fs(a, 1)
    a("""
s_mov_b32 s36, s18
s_and_b32 s37, s19, 0xffff
F_WL:
s_add_u32 s14, s13, s10
s_mov_b32 m0, s15
s_add_u32 s11, s15, 0x10000
buffer_load_dwordx4 v4, s[36:39], s14 offen lds
s_mov_b32 m0, s11
s_add_u32 s13, s13, 0x8000
buffer_load_dwordx4 v14, s[36:39], s14 offen lds
s_and_b32 s13, s13, 0x7ffff
s_add_u32 s15, s15, 4096
s_cmp_lt_u32 s15, 0x10000
s_cbranch_scc1 F_WL
s_branch F_HI
F_LO:
""")
    def get_tag():
        a('ds_read_b32 v63, v15')
        a('s_waitcnt lgkmcnt(0)')
        a('v_readfirstlane_b32 s59, v63')
    def flag(soff_reg, fl=WT, n=0):
        a('v_mov_b32 v16, s59')
        a('v_mov_b32 v17, 0')
        a(f's_waitcnt vmcnt({n})')
        a('s_mov_b64 exec, 1')
        a(f'buffer_store_dword v16, v17, s[20:23], {soff_reg} offen {fl}')
        a('s_mov_b64 exec, -1')
    def get_fast():
        a('ds_read_b32 v63, v15 offset:4')
        a('s_waitcnt lgkmcnt(0)')
        a('v_readfirstlane_b32 s60, v63')
    X, XN, MR = 64, 96, 160
    a('''
s_lshl_b32 s10, s7, 5
s_lshl_b32 s11, s3, 3
s_add_u32 s10, s10, s11
s_lshl_b32 s11, s10, 10
s_add_u32 s11, s11, 4096
v_add_u32 v4, s11, v3
v_lshlrev_b32 v14, 5, v0
s_lshr_b32 s9, s5, 3
s_and_b32 s12, s5, 7
s_lshl_b32 s13, s4, 3
s_add_u32 s12, s12, s13
s_lshl_b32 s13, s12, 1
s_add_u32 s13, s13, s3
s_add_u32 s13, s13, 63
s_cmp_eq_u32 s3, 0
s_cselect_b32 s12, s12, s13
s_lshl_b32 s13, s12, 5
s_mul_i32 s14, s9, 786432
s_add_u32 s13, s13, s14
v_lshrrev_b32 v5, 1, v2
v_mul_u32_u24 v10, 24576, v5
v_and_b32 v11, 1, v2
v_lshl_add_u32 v10, v11, 4, v10
s_lshl_b32 s14, s9, 8
v_lshl_add_u32 v5, v5, 3, s14
s_waitcnt lgkmcnt(0)
''')
    def mod_load(B):
        for r in range(4):
            a(f'buffer_load_dwordx4 v[{B+4*r}:{B+4*r+3}], v10, s[36:39], s13 offen')
            if r < 3: a('s_add_u32 s13, s13, 6144')
        a(f'global_load_dwordx2 v[{B+16}:{B+17}], v5, s[32:33]')
    def mod_calc(B):
        Sx, Ac, Tm = B+20, B+24, B+32
        unpack(a, Sx, B+16, 2)
        for r in range(4): a(f'v_mul_f32 v{Ac+r}, {f32(-LOG2E)}, v{Sx+r}')
        for r in range(4): a(f'v_exp_f32 v{Ac+r}, v{Ac+r}')
        for r in range(4): a(f'v_add_f32 v{Ac+r}, 1.0, v{Ac+r}')
        for r in range(4): a(f'v_rcp_f32 v{Ac+r}, v{Ac+r}')
        for r in range(4): a(f'v_mul_f32 v{Sx+r}, v{Sx+r}, v{Ac+r}')
        a(f'v_cvt_pk_bf16_f32 v{Ac}, v{Sx}, v{Sx+1}')
        a(f'v_cvt_pk_bf16_f32 v{Ac+1}, v{Sx+2}, v{Sx+3}')
        unpack(a, Sx, Ac, 2)
        for r in range(4):
            unpack(a, Tm, B + 4*r, 4)
            for i in range(8):
                a(f'v_mul_f32 v{Ac+i}, v{Tm+i}, v{Sx}' if r == 0 else f'v_fmac_f32 v{Ac+i}, v{Tm+i}, v{Sx+r}')
        for i in range(4): a(f'v_permlane32_swap_b32 v{Ac+i}, v{Ac+4+i}')
        for i in range(4): a(f'v_add_f32 v{Ac+i}, v{Ac+i}, v{Ac+4+i}')
        for i in range(2): a(f'v_permlane16_swap_b32 v{Ac+i}, v{Ac+2+i}')
        for i in range(2): a(f'v_add_f32 v{Ac+i}, v{Ac+i}, v{Ac+2+i}')
        for sh in (8, 4, 2):
            for i in range(2): a(f'v_add_f32_dpp v{Ac+i}, v{Ac+i}, v{Ac+i} row_ror:{sh} row_mask:0xf bank_mask:0xf')
        a(f'v_mov_b32 v{Ac+2}, v{Ac+1}')
        a(f'v_mov_b32 v{Ac+1}, s59')
        a(f'v_mov_b32 v{Ac+3}, s59')
        a('s_mov_b32 exec_lo, 0x00030003')
        a('s_mov_b32 exec_hi, 0x00030003')
        a(f'buffer_store_dwordx4 v[{Ac}:{Ac+3}], v11, s[20:23], s14 offen {WT}')
        a('s_mov_b64 exec, -1')
    fs(a, 1)
    srd(a, 36, 34, 3145728)
    a('s_cmp_lg_u32 s3, 0')
    a('s_cbranch_scc1 F_X')
    a(f's_load_dword s59, s[30:31], {WS_EPOCH}')
    mod_load(16)
    a('F_X:')
    for t in range(8):
        a(f'global_load_dwordx4 v[{X+4*t}:{X+4*t+3}], v4, s[16:17] offset:{t*1024-4096}')
    srd(a, 20, 30, WS_END)
    a('''
v_lshlrev_b32 v11, 6, v11
v_lshrrev_b32 v8, 5, v2
v_lshl_add_u32 v11, v8, 5, v11
v_bfe_u32 v8, v2, 4, 1
v_lshl_add_u32 v11, v8, 4, v11
s_mul_i32 s14, s9, 24576
s_lshl_b32 s15, s12, 7
s_add_u32 s14, s14, s15
''')
    a(f's_add_u32 s14, s14, {WS_MODG}')
    a('''
s_lshl_b32 s15, s6, 12
v_lshlrev_b32 v6, 9, v2
v_subrev_u32 v6, s15, v6
v_and_b32 v6, 0x7fff, v6
v_and_b32 v7, 7, v2
v_lshl_add_u32 v6, v7, 4, v6
s_lshl_b32 s15, s3, 7
v_add_u32 v6, s15, v6
v_lshlrev_b32 v12, 5, v2
''')
    a(f'v_add_u32 v12, {L_MOD}, v12')
    a('s_cmp_lg_u32 s3, 0')
    a('s_cbranch_scc1 F_LN0')
    a('s_waitcnt vmcnt(8) lgkmcnt(0)')
    a('s_add_u32 s59, s59, 1')
    mod_calc(16)
    a('ds_write_b32 v15, v41')
    a('''
s_getreg_b32 s15, hwreg(HW_REG_XCC_ID)
s_and_b32 s15, s15, 7
v_mov_b32 v42, s15
s_lshl_b32 s15, s4, 5
s_add_u32 s15, s15, s5
s_lshl_b32 s15, s15, 3
v_mov_b32 v44, 0
''')
    a(f's_add_u32 s15, s15, {WS_XT}')
    a('s_mov_b64 exec, 1')
    a(f'buffer_store_dwordx2 v[42:43], v44, s[20:23], s15 offen {WT}')
    a('s_mov_b64 exec, -1')
    a('s_waitcnt vmcnt(2)')
    a('s_branch F_LN')
    a('F_LN0:')
    a('s_waitcnt vmcnt(0)')
    a('F_LN:')
    fs(a, 5)
    SM = 48
    for t in range(8): unpack(a, XN + 8*t, X + 4*t, 4)
    for t in range(8):
        b = XN + 8*t
        a(f'v_add_f32 v{SM+t}, v{b}, v{b+1}')
        a(f'v_add_f32 v56, v{b+2}, v{b+3}')
        a(f'v_add_f32 v57, v{b+4}, v{b+5}')
        a(f'v_add_f32 v58, v{b+6}, v{b+7}')
        a(f'v_add_f32 v{SM+t}, v{SM+t}, v56')
        a('v_add_f32 v57, v57, v58')
        a(f'v_add_f32 v{SM+t}, v{SM+t}, v57')
    for t in range(8): a(f'v_mul_f32 v{SM+t}, {f32(-1/512)}, v{SM+t}')
    dpp_reduce(a, [SM+t for t in range(8)])
    for t in range(8): a(f'v_readlane_b32 s{48+t}, v{SM+t}, 63')
    for t in range(8):
        for i in range(8): a(f'v_add_f32 v{XN+8*t+i}, s{48+t}, v{XN+8*t+i}')
    for t in range(8):
        b = XN + 8*t
        a(f'v_mul_f32 v{SM+t}, v{b}, v{b}')
        for i in range(1, 8): a(f'v_fmac_f32 v{SM+t}, v{b+i}, v{b+i}')
    dpp_reduce(a, [SM+t for t in range(8)])
    def sweep_issue():
        for p in range(4):
            a(f's_mov_b32 s61, {WS_MODG + p*24576}')
            a(f'buffer_load_dwordx4 v[{16+8*p}:{19+8*p}], v14, s[20:23], s61 offen sc1')
            a(f'buffer_load_dwordx4 v[{20+8*p}:{23+8*p}], v14, s[20:23], s61 offen offset:16 sc1')
        a('buffer_load_dwordx2 v[60:61], v59, s[20:23], s63 offen sc1')
    a(f'v_mov_b32 v56, {f32(1e-5)}')
    a('v_and_b32 v59, 31, v2')
    a('v_lshlrev_b32 v59, 3, v59')
    a('s_lshl_b32 s63, s4, 8')
    a(f's_add_u32 s63, s63, {WS_XT}')
    a('s_getreg_b32 s58, hwreg(HW_REG_XCC_ID)')
    a('s_and_b32 s58, s58, 7')
    for t in range(8): a(f'v_fmamk_f32 v{SM+t}, v{SM+t}, {f32(1/512)}, v56')
    for t in range(8): a(f'v_rsq_f32 v{SM+t}, v{SM+t}')
    for t in range(8): a(f'v_readlane_b32 s{48+t}, v{SM+t}, 63')
    for t in range(8):
        for i in range(8): a(f'v_mul_f32 v{XN+8*t+i}, s{48+t}, v{XN+8*t+i}')
    fs(a, 6)
    a('s_waitcnt lgkmcnt(0)')
    a('s_barrier')
    fs(a, 7)
    sweep_issue()
    get_tag()
    a('s_mov_b32 s62, 0x40000')
    a('F_SW:')
    a('s_waitcnt vmcnt(0)')
    a('v_xor_b32 v48, s59, v61')
    for r in range(17, 48, 2):
        a(f'v_xor_b32 v49, s59, v{r}')
        a('v_or_b32 v48, v48, v49')
    a('v_cmp_ne_u32 vcc, 0, v48')
    a('s_cmp_eq_u64 vcc, 0')
    a('s_cbranch_scc1 F_SG')
    a('s_mov_b64 exec, vcc')
    a(f's_sleep {E_("SWS", 2)}')
    sweep_issue()
    a('s_mov_b64 exec, -1')
    a('s_sub_u32 s62, s62, 1')
    a('s_cmp_lg_u32 s62, 0')
    a('s_cbranch_scc1 F_SW')
    a('s_waitcnt vmcnt(0)')
    a('F_SG:')
    fs(a, 8)
    a('v_cmp_eq_u32 vcc, s58, v60')
    a('s_cmp_eq_u64 vcc, -1')
    a(f's_cselect_b32 s60, {0 if E_("FORCE_SLOW", 0) else 1}, 0')
    a('v_mov_b32 v60, s60')
    a('ds_write_b32 v15, v60 offset:4')
    for i in range(4):
        a(f'v_add_f32 v{16+2*i}, v{16+2*i}, v{24+2*i}')
        a(f'v_add_f32 v{32+2*i}, v{32+2*i}, v{40+2*i}')
    for i in range(4): a(f'v_add_f32 v{16+i}, v{16+2*i}, v{32+2*i}')
    a('v_cvt_pk_bf16_f32 v20, v16, v17')
    a('v_cvt_pk_bf16_f32 v21, v18, v19')
    unpack(a, 16, 20, 2)
    a('s_cmp_lt_u32 s3, 2')
    a('s_cbranch_scc1 F_NOADD')
    for i in range(4): a(f'v_add_f32 v{16+i}, 1.0, v{16+i}')
    a('v_cvt_pk_bf16_f32 v20, v16, v17')
    a('v_cvt_pk_bf16_f32 v21, v18, v19')
    unpack(a, 16, 20, 2)
    a('F_NOADD:')
    a('v_lshrrev_b32 v20, 1, v14')
    a(f'v_add_u32 v20, {L_MOD}, v20')
    a('ds_write_b128 v20, v[16:19]')
    KW = 160
    a('s_cmp_eq_u32 s3, 0')
    a('s_cbranch_scc1 F_SL0')
    a('s_cmp_eq_u32 s3, 3')
    a('s_cbranch_scc1 F_SL3')
    mod_load(MR)
    a('s_branch F_SLX')
    a('F_SL3:')
    a('''
s_cmp_ge_u32 s2, 128
s_cbranch_scc1 F_SLX
v_lshrrev_b32 v9, 3, v2
v_lshlrev_b32 v10, 10, v9
v_and_b32 v9, 7, v2
v_lshl_add_u32 v10, v9, 4, v10
s_lshl_b32 s13, s5, 15
s_lshl_b32 s15, s4, 7
s_add_u32 s13, s13, s15
''')
    srd(a, 36, 28, 524288)
    for k in range(4):
        a(f's_mov_b32 m0, {L_WOS + k*1024}')
        if k: a('s_add_u32 s13, s13, 8192')
        a('buffer_load_dwordx4 v10, s[36:39], s13 offen lds')
    a('s_branch F_SLX')
    a('F_SL0:')
    a('''
s_and_b32 s12, s8, 1
v_and_b32 v8, 3, v2
v_lshrrev_b32 v9, 1, v8
v_and_b32 v10, 1, v8
v_lshl_add_u32 v9, v10, 1, v9
s_cmp_lg_u32 s12, 0
s_cselect_b64 s[40:41], -1, 0
v_cndmask_b32 v8, v8, v9, s[40:41]
v_lshlrev_b32 v8, 3, v8
v_bfe_u32 v9, v2, 2, 2
v_lshl_add_u32 v8, v9, 5, v8
v_lshrrev_b32 v9, 4, v2
v_lshl_add_u32 v8, v9, 8, v8
''')
    a(f'v_add_u32 v8, {L_KVW}, v8')
    a('F_SLX:')
    a('s_waitcnt lgkmcnt(0)')
    if not FD: stamp(a, 1)
    a('s_barrier')
    fs(a, 9)
    a('ds_read_b128 v[16:19], v12')
    a('ds_read_b128 v[20:23], v12 offset:16')
    a('ds_read_b128 v[24:27], v12 offset:2048')
    a('ds_read_b128 v[28:31], v12 offset:2064')
    a('s_waitcnt lgkmcnt(0)')
    for t in range(8):
        T = XN + 8*t; x = X + 4*t
        for i in range(4):
            a(f'v_pk_fma_f32 v[{T+2*i}:{T+2*i+1}], v[{T+2*i}:{T+2*i+1}], v[{24+2*i}:{25+2*i}], v[{16+2*i}:{17+2*i}]')
        for i in range(4): a(f'v_cvt_pk_bf16_f32 v{x+i}, v{T+2*i}, v{T+2*i+1}')
        if t: a(f'v_xor_b32 v13, {16*t}, v6')
        a(f'ds_write_b128 v{13 if t else 6}, v[{x}:{x+3}]')
    a('s_waitcnt lgkmcnt(0)')
    a('s_barrier')
    fs(a, 10)
    a('s_cmp_eq_u32 s3, 0')
    a('s_cbranch_scc1 F_KV')
    a('s_waitcnt vmcnt(0)')
    a('s_cmp_eq_u32 s3, 3')
    a('s_cbranch_scc1 F_S3')
    mod_calc(MR)
    a('''
s_cmp_lg_u32 s3, 1
s_cbranch_scc1 F_END
s_cmp_lg_u32 s2, 0
s_cbranch_scc1 F_END
v_mov_b32 v16, s59
v_mov_b32 v17, 0
s_mov_b64 exec, 1
''')
    a(f's_mov_b32 s13, {WS_EPOCH}')
    a('buffer_store_dword v16, v17, s[20:23], s13 offen')
    a('s_mov_b64 exec, -1')
    a('s_branch F_END')
    a('F_S3:')
    a('''
s_cmp_ge_u32 s2, 128
s_cbranch_scc1 F_END
v_lshrrev_b32 v9, 4, v2
v_lshlrev_b32 v8, 10, v9
v_bfe_u32 v9, v2, 2, 2
v_lshl_add_u32 v8, v9, 7, v8
v_and_b32 v9, 3, v2
v_lshl_add_u32 v8, v9, 5, v8
s_lshl_b32 s13, s4, 16
s_lshl_b32 s15, s5, 10
s_add_u32 s13, s13, s15
''')
    a(f'v_add_u32 v8, {L_WOS}, v8')
    a(f's_add_u32 s13, s13, {WS_WOF}')
    for c in range(4):
        a(f'ds_read_b64_tr_b16 v[{MR+4*c}:{MR+4*c+1}], v8 offset:{8*c}')
        a(f'ds_read_b64_tr_b16 v[{MR+4*c+2}:{MR+4*c+3}], v8 offset:{8*c+512}')
    a('s_waitcnt lgkmcnt(0)')
    for c in range(4):
        a(f'buffer_store_dwordx4 v[{MR+4*c}:{MR+4*c+3}], v3, s[20:23], s13 offen {WT}')
        if c < 3: a('s_add_u32 s13, s13, 16384')
    a('s_branch F_END')
    a('F_KV:')
    for n in range(16):
        a(f'ds_read_b64_tr_b16 v[{KW+4*n}:{KW+4*n+1}], v8 offset:{n*1024}')
        a(f'ds_read_b64_tr_b16 v[{KW+4*n+2}:{KW+4*n+3}], v8 offset:{n*1024+128}')
    a('''
s_lshr_b32 s13, s8, 1
s_lshl_b32 s13, s13, 4
v_and_b32 v10, 15, v2
v_add_u32 v10, s13, v10
v_bfe_u32 v11, v2, 4, 1
v_lshrrev_b32 v12, 5, v2
v_lshl_add_u32 v15, v11, 5, v10
v_lshl_add_u32 v14, v12, 1, v11
v_xor_b32 v7, v15, v14
v_lshlrev_b32 v7, 4, v7
v_lshl_add_u32 v7, v12, 10, v7
v_xor_b32 v9, 64, v7
v_add_u32 v9, 2048, v9
''')
    H = 96
    for n in range(16):
        a(f'ds_read_b128 v[{H+4*n}:{H+4*n+3}], v{9 if n & 1 else 7} offset:{(n>>1)*4096}')
    a('''
v_lshrrev_b32 v11, 4, v2
v_and_b32 v12, 1, v11
v_lshrrev_b32 v11, 1, v11
s_lshl_b32 s14, s7, 11
''')
    a(f's_add_u32 s14, s14, {WS_KVF}')
    a('s_cmp_lg_u32 s12, 0')
    a('s_cbranch_scc1 F_V')
    for n in range(16):
        a(f's_waitcnt lgkmcnt({15-n})')
        c = '0' if n == 0 else 'v[16:19]'
        a(f'v_mfma_f32_16x16x32_bf16 v[16:19], v[{KW+4*n}:{KW+4*n+3}], v[{H+4*n}:{H+4*n+3}], {c}')
    a('''
v_lshlrev_b32 v15, 9, v11
v_lshl_add_u32 v15, v10, 4, v15
v_lshl_add_u32 v15, v12, 3, v15
s_branch F_KVST
F_V:
''')
    for n in range(16):
        a(f's_waitcnt lgkmcnt({15-n})')
        c = '0' if n == 0 else 'v[16:19]'
        a(f'v_mfma_f32_16x16x32_bf16 v[16:19], v[{H+4*n}:{H+4*n+3}], v[{KW+4*n}:{KW+4*n+3}], {c}')
    a('''
v_and_b32 v15, 15, v2
v_lshl_add_u32 v15, v12, 4, v15
v_lshlrev_b32 v15, 4, v15
v_lshl_add_u32 v15, v11, 3, v15
s_lshl_b32 s13, s13, 5
s_add_u32 s13, s13, 1024
v_add_u32 v15, s13, v15
F_KVST:
s_nop 4
v_cvt_pk_bf16_f32 v20, v16, v17
v_cvt_pk_bf16_f32 v21, v18, v19
''')
    a(f's_add_u32 s15, s14, {WS_KVL - WS_KVF}')
    a('s_lshl_b32 s13, s4, 5')
    a('s_add_u32 s13, s13, s5')
    a('s_lshl_b32 s13, s13, 2')
    a(f's_add_u32 s12, s13, {WS_LFL}')
    a(f's_add_u32 s13, s13, {WS_GFL}')
    a('s_cmp_lg_u32 s60, 0')
    a('s_cbranch_scc0 F_KVS')
    a('buffer_store_dwordx2 v[20:21], v15, s[20:23], s15 offen')
    a(f'buffer_store_dwordx2 v[20:21], v15, s[20:23], s14 offen {WT}')
    flag('s12', '', 1)
    flag('s13', WT, 1)
    a('s_branch F_END')
    a('F_KVS:')
    a(f'buffer_store_dwordx2 v[20:21], v15, s[20:23], s15 offen {WT}')
    a(f'buffer_store_dwordx2 v[20:21], v15, s[20:23], s14 offen {WT}')
    flag('s12')
    flag('s13', WT, 1)
    a('s_branch F_END')

    a('F_HI:')
    W = 64
    a("""
s_and_b32 s15, s8, 1
s_cmp_lg_u32 s15, 0
s_cselect_b32 s44, s26, s24
s_cselect_b32 s45, s27, s25
s_and_b32 s45, s45, 0xffff
s_mov_b32 s46, 16384
s_mov_b32 s47, 0x20000
s_lshl_b32 s13, s6, 11
s_add_u32 s13, s13, s12
""")
    for k in range(4):
        a('s_and_b32 s13, s13, 0x3fff')
        a(f's_add_u32 s15, s12, {L_KVW + k*4096}')
        a('s_mov_b32 m0, s15')
        a('s_nop 0')
        a('buffer_load_dwordx4 v3, s[44:47], s13 offen lds')
        if k < 3: a('s_add_u32 s13, s13, 4096')
    a("""
v_lshrrev_b32 v7, 5, v2
v_lshlrev_b32 v8, 10, v7
v_bfe_u32 v6, v2, 2, 2
v_lshl_add_u32 v8, v6, 7, v8
v_bfe_u32 v5, v2, 1, 1
v_lshl_add_u32 v8, v5, 3, v8
v_and_b32 v5, 1, v2
v_lshlrev_b32 v5, 1, v5
v_bfe_u32 v9, v2, 4, 1
v_add_u32 v5, v5, v9
v_and_b32 v6, 2, v6
v_lshl_add_u32 v5, v6, 1, v5
s_and_b32 s52, s9, 1
s_lshl_b32 s52, s52, 2
v_xor_b32 v5, s52, v5
v_lshl_add_u32 v8, v5, 4, v8
s_lshr_b32 s52, s9, 1
s_lshl_b32 s52, s52, 16
v_add_u32 v13, s52, v8
""")
    fs(a, 5)
    a('s_waitcnt vmcnt(20)')
    a('s_barrier')
    fs(a, 7)
    def wrd(n):
        a(f'ds_read_b64_tr_b16 v[{W+4*n}:{W+4*n+1}], v13 offset:{n*2048}')
        a(f'ds_read_b64_tr_b16 v[{W+4*n+2}:{W+4*n+3}], v13 offset:{n*2048+512}')
    for n in range(16): wrd(n)
    for q in range(4):
        a(f'v_add_u32 v{8+q}, {2*q}, v7')
        a(f'v_xor_b32 v{8+q}, v{8+q}, v2')
        a(f'v_lshlrev_b32 v{8+q}, 4, v{8+q}')
        if q: a(f'v_add_u32 v{8+q}, {1024*q}, v{8+q}')
    a("""
s_lshl_b32 s53, s7, 2
s_add_u32 s53, s53, s8
s_lshl_b32 s53, s53, 2
s_add_u32 s53, s53, s9
s_lshl_b32 s54, s53, 2
s_lshl_b32 s53, s53, 11
""")
    a(f's_add_u32 s53, s53, {WS_Q}')
    a(f's_add_u32 s54, s54, {WS_QFL}')
    a(f's_mov_b32 s55, {f32(QSCALE)}')
    srd(a, 20, 30, WS_END)
    if E_('QPRE', 1):
        a('''
v_and_b32 v14, 15, v2
v_lshlrev_b32 v14, 7, v14
v_add_u32 v12, s53, v14
s_lshl_b32 s14, s7, 11
''')
        a(f's_add_u32 s14, s14, {WS_KVL}')
        a('v_add_u32 v14, s14, v14')
        a('v_cmp_gt_u32 vcc, 16, v2')
        a('s_lshl_b32 s14, s4, 7')
        a(f's_add_u32 s14, s14, {WS_LFL}')
        a('v_cndmask_b32 v12, v14, v12, vcc')
        a('v_writelane_b32 v12, s14, 32')
        a('v_writelane_b32 v12, s54, 33')
    get_tag()
    a('s_waitcnt vmcnt(0)')
    if E_('QPRE', 1):
        a('s_mov_b32 exec_hi, 3')
        a('buffer_load_dword v1, v12, s[20:23], 0 offen')
        a('s_mov_b64 exec, -1')
    fs(a, 8)
    if not FD: stamp(a, 1)
    a('s_barrier')
    for n in range(16, 32): wrd(n)
    get_fast()
    a('s_barrier')
    fs(a, 9)
    ACC = 16
    def rd(n):
        r = 32 + 4*(n & 7)
        a(f'ds_read_b128 v[{r}:{r+3}], v{8+(n&3)} offset:{(n>>2)*4096}')
    for n in range(8): rd(n)
    for n in range(32):
        a(f's_waitcnt lgkmcnt({min(32, n + 8) - n - 1})')
        r = 32 + 4*(n & 7); w = W + 4*n
        c = '0' if n == 0 else f'v[{ACC}:{ACC+15}]'
        a(f'v_mfma_f32_32x32x16_bf16 v[{ACC}:{ACC+15}], v[{w}:{w+3}], v[{r}:{r+3}], {c}')
        if n + 8 < 32: rd(n + 8)
    fs(a, 10)
    for i in range(16): a(f'v_mul_f32 v{ACC+i}, s55, v{ACC+i}')
    for i in range(8): a(f'v_cvt_pk_bf16_f32 v{32+i}, v{ACC+2*i}, v{ACC+2*i+1}')
    a('s_cmp_lg_u32 s60, 0')
    a('s_cbranch_scc1 F_QF')
    a(f'buffer_store_dwordx4 v[32:35], v3, s[20:23], s53 offen {WT}')
    a(f'buffer_store_dwordx4 v[36:39], v3, s[20:23], s53 offen offset:1024 {WT}')
    flag('s54')
    a('s_branch F_END')
    a('F_QF:')
    a('buffer_store_dwordx4 v[32:35], v3, s[20:23], s53 offen')
    a('buffer_store_dwordx4 v[36:39], v3, s[20:23], s53 offen offset:1024')
    flag('s54', '')
    a('F_END:')
```

```python
from common import *
from k3 import gelu_ops, K1C, K0C
from fphase import fphase

L_ONES = 131072
L_STAT = 131072
L_OX   = 147072
L_MODS = L_OX + 8448
L_GB   = 161792
L_END  = 163840
Q, C, S0, S1, P, O, KK, VA, VB = 16, 20, 36, 52, 68, 76, 92, 96, 100
XR, WO, NPRE = 104, 108, 36
E_ = lambda k, d: int(os.environ.get(k, str(d)))
PRIO_PERIOD, PRIO_HI = E_('PRIO_PERIOD', 8), E_('PRIO_HI', 6)
TOUCH, TSPAN, WOSTART = E_('TOUCH', 14), E_('TSPAN', 42), E_('WOSTART', 16)
FORCE_SLOW = E_('FORCE_SLOW', 0)
NP1 = E_('NP1', 2)
WD0 = E_('WD0', 8)
PRE = os.environ.get('PRE', 'h')
W1F = os.environ.get('W1F', 'nt')
STA = os.environ.get('STA', 'sc0 sc1')
STH = os.environ.get('STH', '')
STO = os.environ.get('STO', '')
TCH = os.environ.get('TCH', 'u')
ATF = os.environ.get('ATF', '')
DIAG = os.environ.get('DIAG', '')
H2B = WS_Q
LD = os.environ.get('LD', 'sc1')

def tile(a, t, side=()):
    side = list(side)
    def sd():
        if side: side.pop(0)()
    b = t & 1
    S = S1 if b else S0; SN = S0 if b else S1
    E = lambda i: a(f'v_exp_f32 v{S+i}, v{S+i}')
    Cv = lambda i: a(f'v_cvt_pk_bf16_f32 v{P+i}, v{S+2*i}, v{S+2*i+1}')
    E(0)
    a(f'v_cvt_pk_bf16_f32 v{P+7}, v{SN+14}, v{SN+15}')
    E(1); E(2); Cv(0)
    a('s_waitcnt lgkmcnt(2)')
    a(f'v_mfma_f32_32x32x16_bf16 v[{O}:{O+15}], v[{VB}:{VB+3}], v[{P+4}:{P+7}], v[{O}:{O+15}]')
    a(f'ds_read_b128 v[{VB}:{VB+3}], v9 offset:{t*2048+512}')
    E(3); E(4); Cv(1); sd(); E(5); E(6); Cv(2)
    a('s_waitcnt lgkmcnt(2)')
    a(f'v_mfma_f32_32x32x16_bf16 v[{SN}:{SN+15}], v[{KK}:{KK+3}], v[{Q}:{Q+3}], v[{C}:{C+15}]')
    a(f'ds_read_b128 v[{KK}:{KK+3}], v8 offset:{(t+2)*2048}')
    E(7); E(8); Cv(3); E(9); E(10)
    a('s_waitcnt lgkmcnt(2)')
    a(f'v_mfma_f32_32x32x16_bf16 v[{O}:{O+15}], v[{VA}:{VA+3}], v[{P}:{P+3}], v[{O}:{O+15}]')
    if t == 7:
        a('v_add_u32 v9, v9, v10')
        a(f'ds_read_b128 v[{VA}:{VA+3}], v9')
        a('v_add_u32 v8, 0x4000, v8')
    else:
        a(f'ds_read_b128 v[{VA}:{VA+3}], v9 offset:{(t+1)*2048}')
    Cv(4); E(11); E(12); Cv(5); sd(); E(13); E(14); Cv(6); E(15)
    while side: sd()

def publish(a, tag, voff, vone, soff, nyoung=0):
    a(f's_waitcnt vmcnt({nyoung})')
    a('s_mov_b64 exec, 1')
    a('s_cmp_lg_u32 s60, 0')
    a(f's_cbranch_scc1 M_PF{tag}')
    a('buffer_wbl2 sc1')
    a('s_waitcnt vmcnt(0)')
    a(f'buffer_store_dword v{vone}, v{voff}, s[20:23], {soff} offen sc0 sc1')
    a(f's_branch M_PX{tag}')
    a(f'M_PF{tag}:')
    a(f'buffer_store_dword v{vone}, v{voff}, s[20:23], {soff} offen')
    a(f'M_PX{tag}:')
    a('s_mov_b64 exec, -1')

def poll(a, tag, voff, vtmp, soff, code):
    a('s_mov_b32 s36, 0x80000')
    a(f'M_W{tag}:')
    a(f'buffer_load_dword v{vtmp}, v{voff}, s[20:23], {soff} offen sc1')
    a('s_waitcnt vmcnt(0)')
    a(f'v_cmp_eq_u32 vcc, s59, v{vtmp}')
    a('s_cmp_eq_u64 vcc, -1')
    a(f's_cbranch_scc1 M_G{tag}')
    a('s_sleep 2')
    a('s_sub_u32 s36, s36, 1')
    a('s_cmp_lg_u32 s36, 0')
    a(f's_cbranch_scc1 M_W{tag}')
    a(f'M_G{tag}:')
    a('s_cmp_lg_u32 s60, 0')
    a(f's_cbranch_scc1 M_A{tag}')
    a('buffer_inv sc1')
    a('s_waitcnt vmcnt(0)')
    a(f'M_A{tag}:')

def mega():
    K = Kernel(NAME + '_kernel', 256, 512, L_END)
    a = K.a
    a('''
s_cmp_ge_u32 s2, 256
s_cbranch_scc1 M_END2
''')
    prof_init(a)
    fphase(a)
    stamp(a, 2)
    a("""
s_lshl_b32 s6, s4, 8
s_lshl_b32 s9, s5, 3
s_add_u32 s6, s6, s9
v_and_b32 v4, 31, v2
v_lshrrev_b32 v5, 5, v2
v_lshlrev_b32 v6, 5, v4
v_lshl_add_u32 v6, v5, 4, v6
v_lshrrev_b32 v7, 1, v4
v_lshlrev_b32 v7, 11, v7
v_lshl_add_u32 v7, v5, 10, v7
v_and_b32 v8, 1, v4
v_lshl_add_u32 v7, v8, 9, v7
s_add_u32 s9, s6, s3
s_and_b32 s9, s9, 31
s_lshl_b32 s9, s9, 4
s_lshl_b32 s10, s7, 15
s_add_u32 s9, s9, s10
""")
    a(f's_add_u32 s9, s9, {WS_Q}')
    a("""
v_mov_b32 v8, v3
v_lshl_add_u32 v9, v5, 4, v4
v_lshlrev_b32 v9, 4, v9
v_add_u32 v9, 0x400, v9
v_cmp_gt_u32 s[32:33], 16, v4
""")
    a(f'v_mov_b32 v11, {L_ONES+1024}')
    a("""
v_mov_b32 v12, 0x4000
v_and_b32 v13, 27, v4
v_cmp_eq_u32 s[34:35], 16, v13
v_add_u32 v13, 16, v11
v_cndmask_b32 v13, v13, v11, s[34:35]
v_add_u32 v14, 4, v4
v_and_b32 v14, 8, v14
v_lshl_add_u32 v13, v14, 3, v13
v_cndmask_b32 v9, v13, v9, s[32:33]
v_cndmask_b32 v10, 0, v12, s[32:33]
v_lshrrev_b32 v12, 1, v2
v_lshlrev_b32 v12, 11, v12
v_and_b32 v13, 1, v2
v_lshl_add_u32 v12, v13, 9, v12
v_add_u32 v12, v12, v11
""")
    for i in range(4): a(f'v_mov_b32 v{VA+i}, 0x3f803f80')
    for i in range(4): a(f'v_mov_b32 v{VB+i}, 0')
    for i in range(16): a(f'v_mov_b32 v{O+i}, 0')
    for i in range(4): a(f'v_mov_b32 v{P+4+i}, 0')
    a(f'v_mov_b32 v{S1+14}, 0')
    a(f'v_mov_b32 v{S1+15}, 0')
    a("""
s_lshl_b32 s63, s3, 10
s_mov_b32 s10, s63
s_lshl_b32 s11, s4, 14
s_add_u32 s11, s11, s10
s_cmp_lg_u32 s3, 7
s_cbranch_scc1 M_NP0
v_and_b32 v13, 15, v2
s_lshl_b32 s14, s7, 6
s_lshl_b32 s15, s4, 7
""")
    a(f's_add_u32 s14, s14, {WS_QFL}')
    a(f's_add_u32 s15, s15, {WS_LFL}')
    a("""
v_lshl_add_u32 v13, v13, 2, s14
v_lshl_add_u32 v14, v4, 2, s15
v_cmp_gt_u32 vcc, 32, v2
s_mov_b32 s36, 0x80000
v_cndmask_b32 v13, v13, v14, vcc
M_W0:
buffer_load_dword v24, v13, s[20:23], 0 offen sc1
s_waitcnt vmcnt(0)
v_cmp_eq_u32 vcc, s59, v24
s_cmp_eq_u64 vcc, -1
s_cbranch_scc1 M_NP0
""")
    a(f's_sleep {E_("P0S", 1)}')
    a("""
s_sub_u32 s36, s36, 1
s_cmp_lg_u32 s36, 0
s_cbranch_scc1 M_W0
M_NP0:
s_barrier
""")
    stamp(a, 3)
    a(f'buffer_load_dwordx4 v[{Q}:{Q+3}], v7, s[20:23], s9 offen sc1')
    def dma(i):
        a('s_mov_b32 m0, s10')
        a(f's_add_u32 s12, s11, {WS_KVL if i < 2 else WS_KVF}')
        a('buffer_load_dwordx4 v3, s[20:23], s12 offen sc1 lds')
        if i < 15:
            a('s_add_u32 s10, s10, 8192')
            a('s_add_u32 s11, s11, 8192')
            a('s_and_b32 s11, s11, 0x1ffff')
    for i in range(2): dma(i)
    a('s_mov_b64 exec, 0xffff')
    a(f'ds_write_b128 v12, v[{VA}:{VA+3}]')
    a(f'ds_write_b128 v12, v[{VB}:{VB+3}] offset:16')
    a(f'ds_write_b128 v12, v[{VA}:{VA+3}] offset:64')
    a(f'ds_write_b128 v12, v[{VB}:{VB+3}] offset:80')
    a('s_mov_b64 exec, -1')
    a('s_waitcnt vmcnt(0) lgkmcnt(0)')
    a('s_barrier')
    stamp(a, 4)
    a('s_cmp_lg_u32 s3, 3')
    a('s_cbranch_scc1 M_NWF')
    a('s_cmp_ge_u32 s2, 128')
    a('s_cbranch_scc1 M_NWF')
    a('s_lshl_b32 s12, s2, 2')
    a(f's_add_u32 s12, s12, {WS_WFL}')
    a('v_mov_b32 v14, s59')
    a('v_mov_b32 v15, 0')
    a('s_mov_b64 exec, 1')
    a('buffer_store_dword v14, v15, s[20:23], s12 offen sc0 sc1')
    a('s_mov_b64 exec, -1')
    a('M_NWF:')
    a(f'ds_read_b128 v[{KK}:{KK+3}], v8')
    a('s_waitcnt lgkmcnt(0)')
    a(f'v_mfma_f32_32x32x16_bf16 v[{S0}:{S0+15}], v[{KK}:{KK+3}], v[{Q}:{Q+3}], 0')
    a(f'v_max3_f32 v12, v{S0}, v{S0+1}, v{S0+2}')
    a(f'v_max3_f32 v13, v{S0+3}, v{S0+4}, v{S0+5}')
    for i in range(6, 16, 4):
        a(f'v_max3_f32 v12, v12, v{S0+i}, v{S0+i+1}')
        if i + 2 < 16: a(f'v_max3_f32 v13, v13, v{S0+i+2}, v{S0+i+3}')
    a('''
v_max_f32 v12, v12, v13
v_mov_b32 v13, v12
v_permlane32_swap_b32 v12, v13
v_max_f32 v12, v12, v13
''')
    for i in range(16): a(f'v_sub_f32 v{C+i}, 0, v12')
    a(f'v_mfma_f32_32x32x16_bf16 v[{S0}:{S0+15}], v[{KK}:{KK+3}], v[{Q}:{Q+3}], v[{C}:{C+15}]')
    a(f'ds_read_b128 v[{KK}:{KK+3}], v8 offset:2048')
    a(f'ds_read_b128 v[{VA}:{VA+3}], v9')
    a('s_nop 7')

    nvm = [0]
    def wo_ld(f, reg):
        ks, c = f >> 2, f & 3
        a(f's_add_u32 s12, s13, {c*16384 + ks*1024}')
        a(f'buffer_load_dwordx4 v[{reg}:{reg+3}], v3, s[20:23], s12 offen sc1')
        nvm[0] += 1
    def wo_dma(f, ldsoff):
        ks, c = f >> 2, f & 3
        a(f's_add_u32 s10, s53, {ldsoff}')
        a('s_mov_b32 m0, s10')
        a(f's_add_u32 s12, s13, {c*16384 + ks*1024}')
        a('buffer_load_dwordx4 v3, s[20:23], s12 offen lds')
        nvm[0] += 1
    def ev_addr():
        a('''
v_and_b32 v13, 7, v2
v_add_u32 v13, s6, v13
v_lshlrev_b32 v14, 10, v13
v_lshrrev_b32 v15, 3, v2
v_lshl_add_u32 v14, v15, 4, v14
s_lshl_b32 s12, s3, 7
v_add_u32 v14, s12, v14
s_lshl_b32 s13, s3, 16
s_mul_i32 s62, s3, 28672
s_lshl_b32 s12, s5, 7
s_add_u32 s62, s62, s12
''')
        a(f's_add_u32 s13, s13, {WS_WOF}')
        a(f'global_load_dwordx4 v[{XR}:{XR+3}], v14, s[16:17]')
    xmark = [0]
    def ev_xld():
        a('s_getreg_b32 s58, hwreg(HW_REG_XCC_ID)')
        a('s_and_b32 s58, s58, 7')
        a('s_lshl_b32 s39, s4, 8')
        a(f's_add_u32 s39, s39, {WS_XT}')
        a('v_lshlrev_b32 v15, 3, v4')
        a('buffer_load_dwordx2 v[12:13], v15, s[20:23], s39 offen sc1')
        xmark[0] = nvm[0]
    def ev_xchk():
        a(f's_waitcnt vmcnt({nvm[0] - xmark[0]})')
        a("""
s_mov_b32 s38, 0x80000
M_XW:
v_cmp_eq_u32 vcc, s59, v13
s_cmp_eq_u64 vcc, -1
s_cbranch_scc1 M_XG
buffer_load_dwordx2 v[12:13], v15, s[20:23], s39 offen sc1
s_waitcnt vmcnt(0)
s_sub_u32 s38, s38, 1
s_cmp_lg_u32 s38, 0
s_cbranch_scc1 M_XW
M_XG:
v_cmp_eq_u32 vcc, s58, v12
s_cmp_eq_u64 vcc, -1
""")
        a(f's_cselect_b32 s60, {0 if FORCE_SLOW else 1}, 0')
        a('s_lshl_b32 s61, s4, 11')
        a(f's_add_u32 s61, s61, {WS_FLAG}')
    MW = 2
    def mod_a():
        a(f's_cmp_lg_u32 s3, {MW}')
        a('s_cbranch_scc1 M_MA')
        a('s_lshl_b32 s38, s5, 9')
        a(f's_add_u32 s38, s38, {WS_MODG + 8192}')
        mod_ld()
        a('M_MA:')
    def mod_ld():
        for p in range(4):
            a(f's_add_u32 s12, s38, {p*24576}')
            a(f'buffer_load_dwordx2 v[{240+2*p}:{241+2*p}], v12, s[20:23], s12 offen sc1')
    def mod_b():
        a(f's_cmp_lg_u32 s3, {MW}')
        a('s_cbranch_scc1 M_MB')
        a('s_mov_b32 s39, 0x40000')
        a('M_MW:')
        a('s_waitcnt vmcnt(0)')
        for p in range(4): a(f'v_xor_b32 v{241+2*p}, s59, v{241+2*p}')
        a('v_or3_b32 v241, v241, v243, v245')
        a('v_or_b32 v241, v241, v247')
        a('v_cmp_eq_u32 vcc, 0, v241')
        a('s_cmp_eq_u64 vcc, -1')
        a('s_cbranch_scc1 M_MG')
        mod_ld()
        a('s_sub_u32 s39, s39, 1')
        a('s_cmp_lg_u32 s39, 0')
        a('s_cbranch_scc1 M_MW')
        a('s_waitcnt vmcnt(0)')
        a('M_MG:')
        a('v_add_f32 v240, v240, v242')
        a('v_add_f32 v244, v244, v246')
        a('v_add_f32 v240, v240, v244')
        round_bf16(a, 240)
        a('s_lshr_b32 s12, s5, 3')
        a('s_cmp_lg_u32 s12, 2')
        a('s_cbranch_scc1 M_NOADD')
        a('v_add_f32 v240, 1.0, v240')
        round_bf16(a, 240)
        a('M_NOADD:')
        a('s_lshl_b32 s12, s4, 13')
        a('s_lshl_b32 s39, s5, 8')
        a('s_add_u32 s12, s12, s39')
        a(f's_add_u32 s12, s12, {WS_MODF}')
        a('v_lshlrev_b32 v241, 2, v2')
        a('buffer_store_dword v240, v241, s[20:23], s12 offen sc0 sc1')
        a('M_MB:')
        mk_[0] = nvm[0]
    mk_ = [0, 0, 0]
    def mod_c():
        a(f's_cmp_lg_u32 s3, {MW}')
        a('s_cbranch_scc1 M_MC')
        a('s_lshl_b32 s12, s4, 5')
        a('s_add_u32 s12, s12, s5')
        a('s_lshl_b32 s12, s12, 2')
        a(f's_add_u32 s12, s12, {WS_MFL}')
        a('v_mov_b32 v12, s59')
        a('v_mov_b32 v13, 0')
        a(f's_waitcnt vmcnt({nvm[0] - mk_[0]})')
        a('s_mov_b64 exec, 1')
        a('buffer_store_dword v12, v13, s[20:23], s12 offen sc0 sc1')
        a('s_mov_b64 exec, -1')
        a('M_MC:')
    def mod_d():
        a('s_lshl_b32 s38, s4, 7')
        a(f's_add_u32 s38, s38, {WS_MFL}')
        a('v_lshlrev_b32 v13, 2, v4')
        a('buffer_load_dword v12, v13, s[20:23], s38 offen sc1')
        mk_[1] = nvm[0]
    def mod_e():
        a(f's_waitcnt vmcnt({nvm[0] - mk_[1]})')
        a("""
s_mov_b32 s39, 0x80000
M_EW:
v_cmp_eq_u32 vcc, s59, v12
s_cmp_eq_u64 vcc, -1
s_cbranch_scc1 M_EG
s_sleep 2
buffer_load_dword v12, v13, s[20:23], s38 offen sc1
s_waitcnt vmcnt(0)
s_sub_u32 s39, s39, 1
s_cmp_lg_u32 s39, 0
s_cbranch_scc1 M_EW
M_EG:
s_cmp_ge_u32 s3, 6
""")
        a(f's_cselect_b32 s12, {L_GB - 6144}, {L_MODS}' if False else f's_mov_b32 s12, {L_MODS}')
        a(f's_cselect_b32 s12, {L_GB - 6144}, s12')
        a('s_add_u32 s12, s12, s63')
        a('s_mov_b32 m0, s12')
        a('s_lshl_b32 s12, s4, 13')
        a('s_add_u32 s12, s12, s63')
        a(f's_add_u32 s12, s12, {WS_MODF}')
        a('buffer_load_dwordx4 v3, s[20:23], s12 offen sc1 lds')
        mk_[2] = nvm[0]
    def prio(p, tag):
        def f():
            a('s_cmp_lt_u32 s3, 4')
            a(f's_cbranch_scc1 M_P{tag}')
            a(f's_setprio {p}')
            a(f'M_P{tag}:')
        return f
    def touch_setup():
        a('s_mul_i32 s54, s5, 57344')
        a('v_lshlrev_b32 v11, 7, v2')
        for r in (64, 68, 72):
            a(f's_and_b32 s{r+1}, s{r+1}, 0xffff')
            a(f's_mov_b32 s{r+2}, 1835008')
            a(f's_mov_b32 s{r+3}, 0x20000')
    def touch(u):
        def f():
            mat, k = u // 7, u % 7
            a(f's_cmp_lg_u32 s3, {u & 7}')
            a(f's_cbranch_scc1 M_T{u}')
            a(f's_add_u32 s55, s54, {k*8192}')
            a(f'buffer_load_dword v1, v11, s[{64+4*mat}:{67+4*mat}], s55 offen')
            a(f'M_T{u}:')
        return f
    side = {T: [] for T in range(64)}
    def gf_ld():
        a(f's_mov_b32 s15, {WS_GFL}')
        a('buffer_load_dwordx4 v[220:223], v3, s[20:23], s15 offen sc1')
    def gf_chk():
        a('s_mov_b32 s36, 0x80000')
        a('M_GW:')
        a('s_waitcnt vmcnt(0)')
        for r in (220, 221, 222, 223): a(f'v_xor_b32 v{r}, s59, v{r}')
        a("""
v_or3_b32 v220, v220, v221, v222
v_or_b32 v220, v220, v223
v_cmp_eq_u32 vcc, 0, v220
s_cmp_eq_u64 vcc, -1
s_cbranch_scc1 M_GG
s_sleep 4
""")
        gf_ld()
        a("""
s_sub_u32 s36, s36, 1
s_cmp_lg_u32 s36, 0
s_cbranch_scc1 M_GW
s_waitcnt vmcnt(0)
M_GG:
""")
        a('s_lshl_b32 s61, s4, 11')
        a(f's_add_u32 s61, s61, {WS_FLAG}')
    a('v_lshlrev_b32 v12, 3, v2')
    gf_ld()
    side[2].append(gf_chk)
    for i in range(2, 16): side[min(2 + (i-2)//2, 8)].append(lambda i=i: dma(i))
    side[5].append('vbar6')
    side[11].append('vbar')
    A0, MODT = E_('A0', 12), E_('MODT', 17)
    side[9].append(ev_addr)
    side[10].append(touch_setup)
    def wf_ld():
        a(f's_mov_b32 s15, {WS_WFL}')
        a('buffer_load_dwordx2 v[216:217], v12, s[20:23], s15 offen sc1')
    def wf_chk():
        a("""
s_mov_b32 s36, 0x80000
M_WW:
v_cmp_eq_u32 vcc, s59, v216
v_cmp_eq_u32 s[34:35], s59, v217
s_and_b64 vcc, vcc, s[34:35]
s_cmp_eq_u64 vcc, -1
s_cbranch_scc1 M_WG
s_sleep 4
buffer_load_dwordx2 v[216:217], v12, s[20:23], s15 offen sc1
s_waitcnt vmcnt(0)
s_sub_u32 s36, s36, 1
s_cmp_lg_u32 s36, 0
s_cbranch_scc1 M_WW
M_WG:
""")
    side[9].append(wf_ld)
    side[12].append(wf_chk)
    side[9].append(mod_a)
    side[12].append(mod_b)
    side[15].append(mod_c)
    side[E_('B0', 34) - 8].append(mod_d)
    side[E_('B0', 34) - 5].append(mod_e)
    NREG = 37
    treg = {f: WO + 4*f for f in range(NREG)}
    WOEND = E_('WOEND', 33)
    for f in range(NREG): side[WOSTART + f*(WOEND - WOSTART)//NREG].append(lambda f=f: wo_ld(f, treg[f]))
    order = []
    def w1setup():
        a("""
v_lshrrev_b32 v7, 3, v2
v_mul_u32_u24 v0, 3584, v7
v_and_b32 v15, 7, v2
v_and_b32 v7, 2, v7
v_xor_b32 v15, v15, v7
v_lshl_add_u32 v0, v15, 4, v0
v_xor_b32 v7, 64, v0
s_mov_b32 s44, s64
s_mov_b32 s45, s65
s_mov_b32 s47, 0x20000
s_mov_b32 s48, s68
s_mov_b32 s49, s69
s_mov_b32 s51, 0x20000
s_cmp_ge_u32 s5, 28
s_cselect_b32 s46, 0, s66
s_cselect_b32 s50, 0, s70
""")
    def w1dma(mat, g, fl=''):
        a(f's_add_u32 s36, s63, {mat*65536 + g*8192}')
        a('s_mov_b32 m0, s36')
        a(f's_add_u32 s37, s62, {g*8*28672}')
        a(f'buffer_load_dwordx4 v{7 if mat else 0}, s[{44+4*mat}:{47+4*mat}], s37 offen {fl} lds')
        order.append(('d', mat, g)); nvm[0] += 1
    B0 = E_('B0', 34)
    side[B0 - 2].append(w1setup)
    side[B0 - 1].append('mbar')
    for g in range(12):
        T = B0 + g*(E_('BEND', 62) - B0)//12
        if g == 8:
            assert T >= 50
            side[T - 1].append('bar')
        side[T].append(lambda g=g: w1dma(g >> 3, g & 7, W1F))
    def tch(tag, w, srdr, base_expr):
        def f():
            a(f's_cmp_lg_u32 s3, {w}')
            a(f's_cbranch_scc1 M_T{tag}')
            for x in base_expr: a(x)
            a(f'buffer_load_dword v1, v11, s[{srdr}:{srdr+3}], s55 offen')
            a(f'M_T{tag}:')
        return f
    if 'm' in TCH:
        side[E_('TG', 20)].append(tch('g', 5, 64, ['s_mul_i32 s55, s2, 7168']))
        side[E_('TG', 20) + 3].append(tch('u', 6, 68, ['s_mul_i32 s55, s2, 7168']))
    if 'u' in TCH:
        for k in range(4):
            side[E_('TU0', 40) + E_('TUS', 6)*k].append(tch(f'v{k}', k, 68, ['s_mul_i32 s55, s5, 28672', f's_add_u32 s55, s55, {917504 + min(k*8192, 28672-8192)}']))
    if 'd' in TCH:
        for k in range(7):
            side[E_('TD0', 20) + 3*k].append(tch(f'w{k}', k, 72, [f's_add_u32 s55, s54, {k*8192}']))
    def touch_wd():
        a('s_cmp_lg_u32 s3, 7')
        a('s_cbranch_scc1 M_TD')
        a('s_mul_i32 s55, s2, 7168')
        a('buffer_load_dword v1, v11, s[72:75], s55 offen')
        a('M_TD:')
    side[E_('TWD', 37)].append(touch_wd)
    for k in range(2):
        side[E_('TO', 12)].append(tch(f'o{k}', k, 20, ['s_lshl_b32 s55, s5, 14', f's_add_u32 s55, s55, {WS_WOF + k*8192}']))
    def preown():
        a(f'global_store_dwordx4 v14, v[{Q}:{Q+3}], s[56:57]')
        nvm[0] += 1
    def preown2():
        a("""
s_lshl_b32 s36, s4, 3
s_add_u32 s36, s36, s3
s_mul_i32 s36, s36, 0x1c000
s_min_u32 s37, s5, 27
s_lshl_b32 s37, s37, 12
s_add_u32 s36, s36, s37
""")
        a(f's_add_u32 s36, s36, {WS_ACTF}')
        if 'L' in PRE:
            a('v_lshlrev_b32 v13, 6, v2')
            a(f'buffer_load_dword v1, v13, s[20:23], s36 offen')
            nvm[0] += 1
        else:
            a('s_cmp_ge_u32 s5, 28')
            a('s_cbranch_scc1 M_NPO')
            for c in range(4): a(f'buffer_store_dwordx4 v[{Q}:{Q+3}], v3, s[20:23], s36 offen offset:{c*1024}')
            a('M_NPO:')
    if 'h' in PRE: side[E_('PREH', 35)].append(preown)
    def act_touch(w):
        def f():
            a(f's_cmp_lg_u32 s3, {w}')
            a(f's_cbranch_scc1 M_AT{w}')
            a("""
s_lshl_b32 s36, s4, 3
s_add_u32 s36, s36, s3
s_mul_i32 s36, s36, 0x1c000
s_min_u32 s37, s5, 27
s_lshl_b32 s37, s37, 12
s_add_u32 s36, s36, s37
s_mov_b32 exec_hi, 0
""")
            a(f's_add_u32 s36, s36, {WS_ACTF}')
            a(f'buffer_load_dword v1, v11, s[20:23], s36 offen {ATF}')
            a('s_mov_b64 exec, -1')
            a(f'M_AT{w}:')
        return f
    if 'a' in PRE:
        for w in range(8): side[E_('AT0', 18) + w*E_('ATS', 2)].append(act_touch(w))
    for T in range(0, 64, PRIO_PERIOD):
        side[T].insert(0, prio(1, f'a{T}'))
        side[T + PRIO_HI].insert(0, prio(0, f'b{T}'))
    SK = os.environ.get('SK', '')
    def kind(f):
        if isinstance(f, str): return 'b' if f == 'bar' else ''
        q = getattr(f, '__qualname__', '')
        src = f.__code__.co_names + f.__code__.co_freevars
        if 'modld' in q or 'ev_mod' in q: return 'm'
        if 'wo_ld' in src: return 'w'
        if 'w1dma' in src: return 'd'
        if 'preown' in q: return 'p'
        if 'tch' in q or 'touch_wd' in q or 'act_touch' in q: return 't'
        return ''
    for T in side: side[T] = [f for f in side[T] if not (kind(f) and kind(f) in SK)]
    LT = [int(x) for x in os.environ.get('LT', '2,5,11,20,33').split(',')]
    for T in range(64):
        tile(a, T & 7, [x for x in side[T] if not isinstance(x, str)])
        if 'vbar' in side[T]: a('s_waitcnt vmcnt(0)')
        if 'vbar6' in side[T]: a('s_waitcnt vmcnt(6)')
        if 'mbar' in side[T]:
            a(f's_waitcnt vmcnt({nvm[0] - mk_[2]})')
            a('s_barrier')
        if 'vbar' in side[T] or 'bar' in side[T] or 'vbar6' in side[T]: a('s_barrier')
        if 'l' in DIAG and T in LT: stamp(a, 6 + LT.index(T))

    if 'F' not in DIAG: stamp(a, 5)
    a('s_setprio 0')
    a(f'v_cvt_pk_bf16_f32 v{P+7}, v{S1+14}, v{S1+15}')
    a('s_waitcnt lgkmcnt(0)')
    a(f'v_mfma_f32_32x32x16_bf16 v[{O}:{O+15}], v[{VB}:{VB+3}], v[{P+4}:{P+7}], v[{O}:{O+15}]')
    a(f'v_add_f32 v12, |v{O}|, |v{O+1}|')
    a(f'v_add_f32 v13, |v{O+2}|, |v{O+3}|')
    a(f'v_add_f32 v12, v12, |v{O+4}|')
    a(f'v_add_f32 v13, v13, |v{O+5}|')
    a(f'v_add_f32 v12, v12, |v{O+6}|')
    a(f'v_add_f32 v13, v13, |v{O+7}|')
    a(f'v_add_f32 v12, v12, v{O+8}')
    a('v_add_f32 v12, v12, v13')
    a('s_mov_b32 s12, 0x7e800000')
    a('v_cmp_gt_f32 vcc, s12, v12')
    a('s_cmp_eq_u64 vcc, -1')
    a('s_cbranch_scc0 M_SLOW')
    a('M_FIN:')
    ACC = S1
    ring = [KK, VA, VB, Q]
    a(f'v_rcp_f32 v12, v{O+8}')
    for i in range(8): a(f'v_mul_f32 v{O+i}, v{O+i}, v12')
    for i in range(4): a(f'v_cvt_pk_bf16_f32 v{P+i}, v{O+2*i}, v{O+2*i+1}')
    a('s_mul_i32 s12, s3, 1056')
    a(f's_add_u32 s12, s12, {L_OX}')
    a('v_add_u32 v12, s12, v6')
    a(f'ds_write_b128 v12, v[{P}:{P+3}]')
    late = [C, C+4, C+8, C+12, S0, S0+4, S0+8, S0+12]
    freg = dict(treg)
    nxt = NREG
    order.clear()
    for r in late:
        freg[nxt] = r; wo_ld(nxt, r); order.append(nxt); nxt += 1
    a("""
v_and_b32 v13, 7, v2
v_mul_u32_u24 v13, 1056, v13
v_lshrrev_b32 v15, 4, v2
v_lshl_add_u32 v13, v15, 4, v13
""")
    a(f'v_add_u32 v13, {L_OX}, v13')
    a('s_waitcnt lgkmcnt(0)')
    for r in (O, O+4, O+8, O+12, P, P+4):
        freg[nxt] = r; wo_ld(nxt, r); order.append(nxt); nxt += 1
    a('s_barrier')
    if 'e' in DIAG: stamp(a, 1)
    lg = []
    def lrd_b(ks):
        a(f'ds_read_b128 v[{ring[ks&3]}:{ring[ks&3]+3}], v13 offset:{64*ks}'); lg.append(('b', ks))
    for ks in range(4): lrd_b(ks)
    w1q = [(1, g) for g in range(4, 8)]
    for ks in range(16):
        br = ring[ks & 3]
        for c in range(4):
            f = 4*ks + c
            w = []
            if c == 0: w.append(f'lgkmcnt({len(lg) - lg.index(("b", ks)) - 1})')
            if f in order: w.append(f'vmcnt({len(order) - order.index(f) - 1})')
            elif f == 0: w.append(f'vmcnt({len(order)})')
            if w: a('s_waitcnt ' + ' '.join(w))
            r = freg[f]
            cc = '0' if ks == 0 else f'v[{ACC+4*c}:{ACC+4*c+3}]'
            a(f'v_mfma_f32_16x16x32_bf16 v[{ACC+4*c}:{ACC+4*c+3}], v[{r}:{r+3}], v[{br}:{br+3}], {cc}')
            if nxt < 64:
                freg[nxt] = r; wo_ld(nxt, r); order.append(nxt); nxt += 1
            elif w1q and f >= 30: w1dma(*w1q.pop(0))
        if ks + 4 < 16: lrd_b(ks + 4)
    if 'e' in DIAG: stamp(a, 2)
    G, SB, CB, X = 184, 192, 200, 208
    a('''
v_lshrrev_b32 v15, 3, v2
v_lshlrev_b32 v15, 5, v15
s_lshl_b32 s12, s3, 8
''')
    a(f's_add_u32 s12, s12, {L_MODS}')
    a('v_add_u32 v15, s12, v15')
    for i, r in enumerate((G, SB, CB)):
        a(f'ds_read_b128 v[{r}:{r+3}], v15 offset:{2048*i}')
        a(f'ds_read_b128 v[{r+4}:{r+7}], v15 offset:{2048*i+16}')
    unpack(a, X, XR, 4)
    a('v_and_b32 v12, 8, v2')
    a('v_cmp_eq_u32 s[34:35], 0, v12')
    for i in range(8): a(f'v_cndmask_b32 v{ACC+i}, v{ACC+8+i}, v{ACC+i}, s[34:35]')
    a('s_waitcnt lgkmcnt(0)')
    for i in range(8): a(f'v_fmac_f32 v{X+i}, v{ACC+i}, v{G+i}')
    for i in range(4): a(f'v_cvt_pk_bf16_f32 v{XR+i}, v{X+2*i}, v{X+2*i+1}')
    a(f'global_store_dwordx4 v14, v[{XR}:{XR+3}], s[56:57]')
    unpack(a, X, XR, 4)
    def red(r, t):
        a(f'v_add_f32_dpp v{r}, v{r}, v{r} row_ror:8 row_mask:0xf bank_mask:0xf')
        a(f'v_mov_b32 v{t}, v{r}')
        a(f'v_permlane16_swap_b32 v{r}, v{t}')
        a(f'v_add_f32 v{r}, v{r}, v{t}')
        a(f'v_mov_b32 v{t}, v{r}')
        a(f'v_permlane32_swap_b32 v{r}, v{t}')
        a(f'v_add_f32 v{r}, v{r}, v{t}')
    M, D, ST = 216, 220, 228
    a(f'v_add_f32 v{M}, v{X}, v{X+1}')
    a(f'v_add_f32 v{M+1}, v{X+2}, v{X+3}')
    a(f'v_add_f32 v{M+2}, v{X+4}, v{X+5}')
    a(f'v_add_f32 v{M+3}, v{X+6}, v{X+7}')
    a(f'v_add_f32 v{M}, v{M}, v{M+1}')
    a(f'v_add_f32 v{M+2}, v{M+2}, v{M+3}')
    a(f'v_add_f32 v{M}, v{M}, v{M+2}')
    red(M, M+2)
    a(f'v_mul_f32 v{M}, {f32(1/64)}, v{M}')
    for i in range(8): a(f'v_sub_f32 v{D+i}, v{X+i}, v{M}')
    a(f'v_mul_f32 v{M+1}, v{D}, v{D}')
    a(f'v_mul_f32 v{M+2}, v{D+1}, v{D+1}')
    for i in range(2, 8): a(f'v_fmac_f32 v{M+1+(i&1)}, v{D+i}, v{D+i}')
    a(f'v_add_f32 v{M+1}, v{M+1}, v{M+2}')
    red(M+1, M+2)
    a('''
v_and_b32 v12, 7, v2
v_lshlrev_b32 v12, 6, v12
''')
    a(f'v_add_u32 v12, {L_STAT}, v12')
    a('s_lshl_b32 s12, s3, 3')
    a('v_add_u32 v13, s12, v12')
    a('s_mov_b64 exec, 0xff')
    a(f'ds_write_b64 v13, v[{M}:{M+1}]')
    a('s_mov_b64 exec, -1')
    a('''
s_lshr_b32 s12, s6, 5
s_lshl_b32 s12, s12, 15
s_and_b32 s14, s6, 31
s_lshl_b32 s14, s14, 4
s_add_u32 s12, s12, s14
s_lshl_b32 s14, s3, 12
s_add_u32 s12, s12, s14
''')
    a(f's_add_u32 s12, s12, {H2B}')
    a('''
v_lshrrev_b32 v13, 3, v2
v_lshlrev_b32 v13, 9, v13
v_and_b32 v15, 7, v2
v_lshl_add_u32 v13, v15, 4, v13
s_waitcnt lgkmcnt(0)
s_barrier
''')
    for i in range(4): a(f'ds_read_b128 v[{ST+4*i}:{ST+4*i+3}], v12 offset:{16*i}')
    a('s_waitcnt lgkmcnt(0)')
    a(f'v_add_f32 v{M}, v{ST}, v{ST+2}')
    a(f'v_add_f32 v{M+1}, v{ST+1}, v{ST+3}')
    for i in range(2, 8):
        a(f'v_add_f32 v{M}, v{M}, v{ST+2*i}')
        a(f'v_add_f32 v{M+1}, v{M+1}, v{ST+2*i+1}')
    a(f'v_mul_f32 v{M}, {f32(1/8)}, v{M}')
    for i in range(8): a(f'v_sub_f32 v{ST+2*i}, v{ST+2*i}, v{M}')
    a(f'v_mul_f32 v{M+2}, v{ST}, v{ST}')
    for i in range(1, 8): a(f'v_fmac_f32 v{M+2}, v{ST+2*i}, v{ST+2*i}')
    a(f'v_mul_f32 v{M+1}, {f32(1/512)}, v{M+1}')
    a(f'v_fmac_f32 v{M+1}, {f32(1/8)}, v{M+2}')
    a(f'v_add_f32 v{M+1}, {f32(1e-5)}, v{M+1}')
    a(f'v_rsq_f32 v{M+1}, v{M+1}')
    for i in range(8): a(f'v_sub_f32 v{X+i}, v{X+i}, v{M}')
    for i in range(8): a(f'v_mul_f32 v{CB+i}, v{CB+i}, v{M+1}')
    for i in range(8): a(f'v_fmac_f32 v{SB+i}, v{X+i}, v{CB+i}')
    for i in range(4): a(f'v_cvt_pk_bf16_f32 v{D+i}, v{SB+2*i}, v{SB+2*i+1}')
    a(f'buffer_store_dwordx4 v[{D}:{D+3}], v13, s[20:23], s12 offen {STH}')
    stamp(a, 6) if 'l' not in DIAG and 'F' not in DIAG else None
    a('''
s_lshl_b32 s12, s5, 3
s_add_u32 s12, s12, s3
s_lshl_b32 s12, s12, 2
v_mov_b32 v6, s12
v_mov_b32 v7, s59
v_bfe_u32 v16, v2, 4, 1
v_lshlrev_b32 v12, 16, v16
v_lshrrev_b32 v17, 5, v2
v_lshl_add_u32 v12, v17, 10, v12
v_bfe_u32 v17, v2, 2, 2
v_lshl_add_u32 v12, v17, 7, v12
v_bfe_u32 v13, v2, 1, 1
v_lshl_add_u32 v12, v13, 3, v12
v_and_b32 v13, 1, v2
v_and_b32 v17, 2, v17
v_xor_b32 v13, v13, v17
v_lshlrev_b32 v16, 2, v16
v_xor_b32 v13, v13, v16
v_lshl_add_u32 v8, v13, 4, v12
v_xor_b32 v9, 32, v8
v_xor_b32 v10, 64, v8
v_xor_b32 v11, 0x60, v8
s_lshl_b32 s11, s4, 3
s_add_u32 s11, s11, s3
s_mul_i32 s14, s11, 0x1c000
s_lshl_b32 s11, s11, 15
s_lshl_b32 s13, s5, 12
s_add_u32 s14, s14, s13
v_and_b32 v12, 31, v2
s_lshl_b32 s13, s3, 7
v_lshl_add_u32 v12, v12, 2, s13
''')
    a(f'v_mov_b32 v15, {f32(K1C)}')
    a(f's_mov_b32 s42, {f32(K1C)}')
    a(f's_mov_b32 s43, {f32(K0C)}')
    a(f's_add_u32 s11, s11, {H2B}')
    a(f's_add_u32 s14, s14, {WS_ACTF}')
    publish(a, 1, 6, 7, 's61')
    GB = 56
    a("""
s_and_b32 s15, s5, 7
s_lshl_b32 s17, s15, 1
s_and_b32 s6, s3, 1
s_add_u32 s17, s17, s6
s_lshl_b32 s17, s17, 2
s_lshr_b32 s8, s3, 2
s_add_u32 s17, s17, s8
s_lshl_b32 s17, s17, 4
s_lshl_b32 s38, s17, 1
v_lshrrev_b32 v16, 5, v2
""")
    a(f's_add_u32 s38, s38, {L_GB}')
    a('v_lshl_add_u32 v16, v16, 6, s38')
    a(f'ds_read_b128 v[{GB}:{GB+3}], v16')
    a(f'ds_read_b128 v[{GB+4}:{GB+7}], v16 offset:16')
    a("""
v_lshrrev_b32 v16, 3, v2
v_and_b32 v17, 7, v2
v_and_b32 v18, 2, v16
v_lshlrev_b32 v18, 1, v18
v_xor_b32 v17, v17, v18
v_lshlrev_b32 v14, 10, v16
v_lshl_add_u32 v14, v17, 4, v14
s_lshl_b32 s10, s15, 7
s_lshl_b32 s16, s3, 13
s_add_u32 s10, s10, s16
s_lshr_b32 s9, s5, 3
s_mul_i32 s13, s9, 2
s_add_u32 s13, s13, s15
s_cmp_ge_u32 s13, 14
s_cselect_b32 s38, 14, 0
s_sub_u32 s13, s13, s38
s_mov_b32 s39, s13
""")
    WSLOT = [131072, 147456, 0, 16384, 65536, 81920]
    ASLOT = [32768, 49152, 98304, 114688]
    def nxt_stage(r):
        a(f's_add_u32 s{r}, s{r}, 1')
        a(f's_cmp_eq_u32 s{r}, 14')
        a(f's_cselect_b32 s{r}, 0, s{r}')
    def wd_dma(s, k):
        if k == 0:
            a('s_lshl_b32 s18, s13, 17')
            a('s_add_u32 s18, s18, s10')
        a(f's_add_u32 s16, s63, {WSLOT[s % 6] + k*8192}')
        a('s_mov_b32 m0, s16')
        if k: a('s_add_u32 s18, s18, 0x10000')
        a('buffer_load_dwordx4 v14, s[72:75], s18 offen lds')
        if k and s < 13: nxt_stage(13)
    a('s_cmp_ge_u32 s5, 28')
    a('s_cbranch_scc1 M_SPARE')
    poll(a, 1, 12, 13, 's61', 1)
    stamp(a, 7) if 'l' not in DIAG and 'F' not in DIAG else None

    BREG, AC1, AR, NR, LOOK = 128, 64, 32, 6, 4
    KS = E_('KS', 20)
    def rd(c, ks, reg):
        a(f'ds_read_b64_tr_b16 v[{reg}:{reg+1}], v{8+c} offset:{ks*2048}')
        a(f'ds_read_b64_tr_b16 v[{reg+2}:{reg+3}], v{8+c} offset:{ks*2048+512}')
    def store(c, reg):
        a(f'buffer_store_dwordx4 v[{reg}:{reg+3}], v3, s[20:23], s14 offen offset:{c*1024} {STA}')
    def epi(c):
        o = []
        for i in range(4): o += gelu_ops(AC1+16*c, AC1+16*c+8, 16 + 2*(i & 1), 24 + 4*(c & 1), i)
        o.append(('STORE', c))
        return o
    def emit(o):
        if isinstance(o, tuple): store(o[1], 24 + 4*(o[1] & 1))
        else: a(o)
    def f2_setup():
        a("""
s_bfe_u32 s7, s3, 0x10001
v_lshrrev_b32 v16, 5, v2
v_lshlrev_b32 v8, 10, v16
v_bfe_u32 v17, v2, 2, 2
v_lshl_add_u32 v8, v17, 7, v8
v_bfe_u32 v5, v2, 1, 1
v_lshl_add_u32 v8, v5, 3, v8
v_and_b32 v5, 1, v2
v_lshlrev_b32 v5, 1, v5
v_bfe_u32 v9, v2, 4, 1
v_add_u32 v5, v5, v9
v_and_b32 v17, 2, v17
v_lshl_add_u32 v5, v17, 1, v5
s_lshl_b32 s38, s6, 2
v_xor_b32 v5, s38, v5
v_lshl_add_u32 v8, v5, 4, v8
s_lshl_b32 s38, s8, 13
v_add_u32 v8, s38, v8
v_add_u32 v9, 0x10000, v8
v_add_u32 v13, 0x20000, v8
s_lshl_b32 s38, s7, 13
s_lshl_b32 s40, s8, 12
s_add_u32 s38, s38, s40
v_add_u32 v10, s38, v3
v_add_u32 v11, 0x10000, v10
s_lshl_b32 s40, s4, 2
s_add_u32 s40, s40, s9
s_mul_i32 s11, s40, 0x38000
s_add_u32 s11, s11, s63
""")
        a(f's_add_u32 s11, s11, {WS_ACTF}')
        a("""
s_lshl_b32 s40, s40, 1
s_add_u32 s40, s40, s7
s_lshl_b32 s40, s40, 15
s_add_u32 s40, s40, s17
v_and_b32 v12, 31, v2
v_min_u32 v5, 27, v12
v_lshlrev_b32 v12, 10, v12
v_lshl_add_u32 v12, v16, 5, v12
v_add_u32 v12, s40, v12
s_lshl_b32 s38, s3, 11
v_add_u32 v4, s38, v3
s_xor_b32 s38, s38, 0x2000
v_add_u32 v15, s38, v3
v_lshl_add_u32 v5, v16, 5, v5
s_lshl_b32 s38, s9, 8
s_add_u32 s38, s38, 1024
v_lshl_add_u32 v5, v5, 2, s38
""")
    SPAN = E_('F1SPAN', 52)
    def wd_dma4(s_, k):
        if k == 0:
            a('s_lshl_b32 s18, s13, 17')
            a('s_add_u32 s18, s18, s10')
        a(f's_add_u32 s16, s63, {WSLOT[s_ % 6] + k*4096}')
        a('s_mov_b32 m0, s16')
        if k: a('s_add_u32 s18, s18, 0x8000')
        a('buffer_load_dwordx4 v14, s[72:75], s18 offen lds')
        if k == 3: nxt_stage(13)
    def tail(c):
        A3 = AC1 + 16*c
        out = 24 + 4*(c & 1)
        if E_('PK', 0):
            G_, U_, T_ = A3, A3 + 8, 16
            pr = lambda b, i: f'v[{b+2*i}:{b+2*i+1}]'
            for i in range(4): a(f'v_pk_mul_f32 {pr(T_,i)}, {pr(G_,i)}, {pr(G_,i)}')
            for i in range(4): a(f'v_pk_fma_f32 {pr(T_,i)}, {pr(T_,i)}, s[42:43], s[42:43] op_sel:[0,0,1] op_sel_hi:[1,0,1]')
            for i in range(4): a(f'v_pk_mul_f32 {pr(T_,i)}, {pr(T_,i)}, {pr(G_,i)}')
            for i in range(8): a(f'v_exp_f32 v{T_+i}, v{T_+i}')
            for i in range(4): a(f'v_pk_mul_f32 {pr(G_,i)}, {pr(G_,i)}, {pr(U_,i)}')
            for i in range(4): a(f'v_pk_add_f32 {pr(T_,i)}, {pr(T_,i)}, 1.0 op_sel_hi:[1,0]')
            for i in range(8): a(f'v_rcp_f32 v{T_+i}, v{T_+i}')
            for i in range(4): a(f'v_pk_mul_f32 {pr(G_,i)}, {pr(G_,i)}, {pr(T_,i)}')
            for i in range(4): a(f'v_cvt_pk_bf16_f32 v{out+i}, v{G_+2*i}, v{G_+2*i+1}')
        else:
            seqs = [[o for o in gelu_ops(A3, A3+8, 16 + 2*i, out, i) if o != 's_nop 0'] for i in range(4)]
            for k in range(0, len(seqs[0]), 2):
                for s_ in seqs:
                    for o in s_[k:k+2]: a(o)
        store(c, out)
    seq = [(c, ks) for ks in range(16) for c in range(4)] + [(c, ks) for c in range(4) for ks in range(16, 32)]
    def step(n, wv=''):
        c, ks = seq[n]
        if n + LOOK < len(seq): rd(*seq[n + LOOK], AR + 4*((n + LOOK) % NR))
        a(f's_waitcnt lgkmcnt({2*(min(len(seq)-1, n+LOOK) - n)}){wv}')
        cc = '0' if ks == 0 else f'v[{AC1+16*c}:{AC1+16*c+15}]'
        r = AR + 4*(n % NR)
        a(f'v_mfma_f32_32x32x16_bf16 v[{AC1+16*c}:{AC1+16*c+15}], v[{r}:{r+3}], v[{BREG+4*ks}:{BREG+4*ks+3}], {cc}')
        if 'f' in DIAG and n in (0, 32, 63, 96, 127): stamp(a, 1 + (0, 32, 63, 96, 127).index(n))
    def half1(young):
        vm = []
        def bld(ks):
            if ks & 3 == 0 and ks: a('s_add_u32 s11, s11, 4096')
            a(f'buffer_load_dwordx4 v[{BREG+4*ks}:{BREG+4*ks+3}], v3, s[20:23], s11 offen offset:{(ks&3)*1024} {LD}')
            vm.append(ks)
        if young:
            a('s_waitcnt lgkmcnt(0)')
            a('s_barrier')
            a('s_barrier')
            for ks in range(16): bld(ks)
        else:
            for ks in range(NL0): bld(ks)
            a('s_waitcnt lgkmcnt(0)')
            a('s_barrier')
        for n in range(LOOK): rd(*seq[n], AR + 4*(n % NR))
        for n in range(64):
            c, ks = seq[n]
            if not young and len(vm) < 16:
                bld(len(vm))
                if len(vm) == 16: a('s_barrier')
            if young and n >= 64 - 16*PY and (64 - n) % PY == 0: bld(len(vm))
            if not young and n >= LB0 and len(vm) < 32 and n % 4 == 2: bld(len(vm))
            step(n, f' vmcnt({len(vm) - vm.index(ks) - 1})' if c == 0 else '')
        while len(vm) < 32: bld(len(vm))
    NL0, PY, LB0 = E_('NL0', 10), E_('PY', 2), E_('LB0', 40)
    a('s_cmp_ge_u32 s3, 4')
    a('s_cbranch_scc1 M_F1Y')
    half1(False)
    a('s_branch M_F1J')
    a('M_F1Y:')
    half1(True)
    a('M_F1J:')
    a('s_barrier')
    if 'e' in DIAG: stamp(a, 3)
    wdq = [(s_, k) for s_ in range(6) for k in range(2)]
    nd = 0
    WDN = E_('WDN', 70)
    gops = []
    for n in range(64, 128):
        step(n, f' vmcnt({79 - n + nd})' if n < 80 else '')
        if wdq and n >= WDN and (n - WDN) % 3 == 0: wd_dma(*wdq.pop(0)); nd += 1
        GI = E_('GI', 0)
        if GI == 0:
            if n % 16 == 15: tail(seq[n][0])
        else:
            if n % 16 == 2 and n > 80:
                c_ = seq[n][0] - 1
                A3 = AC1 + 16*c_; out = 24 + 4*(c_ & 1)
                sq = [[o for o in gelu_ops(A3, A3+8, 16 + 2*i, out, i) if o != 's_nop 0'] for i in range(4)]
                for k in range(0, len(sq[0]), 2):
                    for s2 in sq: gops.extend(s2[k:k+2])
                gops.append(('STORE', c_))
            for _ in range(E_('GPER', 5)):
                if gops: emit(gops.pop(0))
            if n == 127:
                while gops: emit(gops.pop(0))
                tail(3)
    assert not wdq
    stamp(a, 8) if 'l' not in DIAG and 'F' not in DIAG else None
    a("""
s_lshl_b32 s12, s3, 5
s_add_u32 s12, s12, s5
s_lshl_b32 s12, s12, 2
s_add_u32 s12, s12, 1024
v_mov_b32 v6, s12
""")
    f2_setup()
    publish(a, 2, 6, 7, 's61')
    a('s_branch M_F2')
    a('M_SPARE:')
    a('s_waitcnt vmcnt(0) lgkmcnt(0)')
    a('s_barrier')
    a('''
s_sub_u32 s7, s5, 28
s_lshl_b32 s7, s7, 3
s_add_u32 s7, s7, s3
s_lshl_b32 s7, s7, 13
v_lshlrev_b32 v4, 7, v2
''')
    if '1' in os.environ.get('WB', ''):
        a('s_cmp_lg_u32 s7, 0')
        a('s_cbranch_scc1 M_NWB1')
        a('s_sleep 40')
        a('buffer_wbl2 sc1')
        a('M_NWB1:')
    for i in range(7):
        a(f'buffer_load_dword v{16+i}, v4, s[72:75], s7 offen')
        if i < 6: a('s_add_u32 s7, s7, 0x40000')
    for s_ in range(6):
        for k in range(2): wd_dma(s_, k)
    f2_setup()
    a('s_waitcnt vmcnt(0)')

    a('M_F2:')
    AC2, AF, BF, X2 = 16, 32, 64, 80
    a('s_cmp_lg_u32 s3, 0')
    a('s_cbranch_scc1 M_NP2')
    poll(a, 2, 5, 6, 's61', 2)
    a('M_NP2:')
    a('s_barrier')
    stamp(a, 9) if 'l' not in DIAG and 'F' not in DIAG else None
    vm = []
    def issue_a(s_):
        a('s_lshl_b32 s19, s39, 13')
        a('s_add_u32 s19, s19, s11')
        for k in range(2):
            a(f's_add_u32 s16, s63, {ASLOT[s_ & 3] + k*8192}')
            a('s_mov_b32 m0, s16')
            if k: a('s_add_u32 s19, s19, 0x1c000')
            a(f'buffer_load_dwordx4 v3, s[20:23], s19 offen {LD} lds')
        vm.extend([s_]*2)
        if s_ < 13: nxt_stage(39)
    for s_ in range(4): issue_a(s_)
    a(f'global_load_dwordx4 v[{X2}:{X2+3}], v12, s[56:57] {LD}')
    vm.append(3)
    for s_ in range(14):
        a(f's_waitcnt vmcnt({len(vm) - 1 - max(i for i, x in enumerate(vm) if x <= s_)})')
        a('s_barrier')
        if 's' in DIAG and s_ in (0, 3, 6, 9, 12): stamp(a, 1 + s_//3)
        if 'e' in DIAG and s_ == 0: stamp(a, 4)
        wo_, ao = WSLOT[s_ % 6], ASLOT[s_ & 3]
        va = (8, 9, 13)[wo_ >> 16]; vb = (10, 11)[ao >> 16]
        for j in range(4):
            a(f'ds_read_b128 v[{BF+4*j}:{BF+4*j+3}], v{vb} offset:{(ao & 0xffff) + j*1024}')
            a(f'ds_read_b64_tr_b16 v[{AF+4*j}:{AF+4*j+1}], v{va} offset:{(wo_ & 0xffff) + j*2048}')
            a(f'ds_read_b64_tr_b16 v[{AF+4*j+2}:{AF+4*j+3}], v{va} offset:{(wo_ & 0xffff) + j*2048 + 512}')
        if s_ >= 1:
            if s_ + 3 < 14: issue_a(s_ + 3)
            if s_ + 5 < 14:
                for k in range(2): wd_dma(s_ + 5, k)
                vm.extend([s_ + 5]*2)
        if '2' in os.environ.get('WB', '') and s_ == 10:
            a('s_lshl_b32 s38, s5, 3')
            a('s_add_u32 s38, s38, s3')
            a('s_cmp_lg_u32 s38, 255')
            a('s_cbranch_scc1 M_NWB2')
            a('buffer_wbl2 sc1')
            a('M_NWB2:')
        for j in range(4):
            a(f's_waitcnt lgkmcnt({9-3*j})')
            cc = '0' if (s_ == 0 and j == 0) else f'v[{AC2}:{AC2+15}]'
            a(f'v_mfma_f32_32x32x16_bf16 v[{AC2}:{AC2+15}], v[{AF+4*j}:{AF+4*j+3}], v[{BF+4*j}:{BF+4*j+3}], {cc}')
    stamp(a, 10) if 'l' not in DIAG and 'F' not in DIAG else None
    unpack(a, 88, X2, 4)
    a('s_cmp_ge_u32 s3, 4')
    a('s_cbranch_scc1 F2_HI')
    a(f'ds_write_b128 v4, v[{AC2+8}:{AC2+11}]')
    a(f'ds_write_b128 v4, v[{AC2+12}:{AC2+15}] offset:1024')
    a('s_branch F2_X')
    a('F2_HI:')
    a('s_nop 2')
    a(f'ds_write_b128 v4, v[{AC2}:{AC2+3}]')
    a(f'ds_write_b128 v4, v[{AC2+4}:{AC2+7}] offset:1024')
    for i in range(8): a(f'v_mov_b32 v{AC2+i}, v{AC2+8+i}')
    a('F2_X:')
    a('s_waitcnt lgkmcnt(0)')
    a('s_barrier')
    a(f'ds_read_b128 v[{AF}:{AF+3}], v15')
    a(f'ds_read_b128 v[{AF+4}:{AF+7}], v15 offset:1024')
    a('s_waitcnt lgkmcnt(0)')
    for i in range(8): a(f'v_add_f32 v{AC2+i}, v{AC2+i}, v{AF+i}')
    for i in range(8): a(f'v_fmac_f32 v{88+i}, v{AC2+i}, v{GB+i}')
    for i in range(4): a(f'v_cvt_pk_bf16_f32 v{X2+i}, v{88+2*i}, v{89+2*i}')
    a(f'global_store_dwordx4 v12, v[{X2}:{X2+3}], s[56:57] {STO}')
    for off in [int(x, 0) for x in os.environ.get('XLOAD', '').split(',') if x]:
        a('s_lshl_b32 s12, s2, 7')
        a(f's_add_u32 s12, s12, {off}')
        a('v_mov_b32 v0, s12')
        a('global_load_dword v1, v0, s[30:31]')
        a('s_waitcnt vmcnt(0)')
    prof_end(a, 0, 3, 30)
    a('M_END2:')
    a('s_endpgm')

    a('M_SLOW:')
    a('v_mov_b32 v12, 0xff800000')
    a(f's_mov_b32 s12, {WS_KVF}')
    a('M_SL1:')
    a(f'buffer_load_dwordx4 v[{KK}:{KK+3}], v3, s[20:23], s12 offen sc1')
    a('s_waitcnt vmcnt(0)')
    a(f'v_mfma_f32_32x32x16_bf16 v[{S0}:{S0+15}], v[{KK}:{KK+3}], v[{Q}:{Q+3}], 0')
    for i in range(0, 16, 2): a(f'v_max3_f32 v12, v12, v{S0+i}, v{S0+i+1}')
    a('s_add_u32 s12, s12, 2048')
    a(f's_cmp_lt_u32 s12, {WS_KVF + 131072}')
    a('s_cbranch_scc1 M_SL1')
    a('''
v_mov_b32 v13, v12
v_permlane32_swap_b32 v12, v13
v_max_f32 v12, v12, v13
''')
    for i in range(16): a(f'v_sub_f32 v{C+i}, 0, v12')
    for i in range(16): a(f'v_mov_b32 v{O+i}, 0')
    for i in range(8): a(f'v_mov_b32 v{VA+i}, 0x3f803f80')
    a('''
v_lshl_add_u32 v13, v5, 4, v4
v_lshlrev_b32 v13, 4, v13
''')
    a(f's_mov_b32 s12, {WS_KVF}')
    a('M_SL2:')
    a(f'buffer_load_dwordx4 v[{KK}:{KK+3}], v3, s[20:23], s12 offen sc1')
    a('s_mov_b64 exec, s[32:33]')
    a(f'buffer_load_dwordx4 v[{VA}:{VA+3}], v13, s[20:23], s12 offen offset:1024 sc1')
    a(f'buffer_load_dwordx4 v[{VB}:{VB+3}], v13, s[20:23], s12 offen offset:1536 sc1')
    a('s_mov_b64 exec, -1')
    a('s_waitcnt vmcnt(0)')
    a(f'v_mfma_f32_32x32x16_bf16 v[{S0}:{S0+15}], v[{KK}:{KK+3}], v[{Q}:{Q+3}], v[{C}:{C+15}]')
    for i in range(16): a(f'v_exp_f32 v{S0+i}, v{S0+i}')
    for i in range(8): a(f'v_cvt_pk_bf16_f32 v{P+i}, v{S0+2*i}, v{S0+2*i+1}')
    a(f'v_mfma_f32_32x32x16_bf16 v[{O}:{O+15}], v[{VA}:{VA+3}], v[{P}:{P+3}], v[{O}:{O+15}]')
    a(f'v_mfma_f32_32x32x16_bf16 v[{O}:{O+15}], v[{VB}:{VB+3}], v[{P+4}:{P+7}], v[{O}:{O+15}]')
    a('s_add_u32 s12, s12, 2048')
    a(f's_cmp_lt_u32 s12, {WS_KVF + 131072}')
    a('s_cbranch_scc1 M_SL2')
    a('s_nop 15')
    a('s_branch M_FIN')
    a('CODE_END:')
    a('s_endpgm')
    return K
```

```python
from common import *
QSCALE = 0.25 * LOG2E
E_ = lambda k, d: int(os.environ.get(k, str(d)))
L_KVW = 131072
L_MOD = 147456
L_WOS = L_MOD + 4096
L_TAG = L_WOS + 4096
NW1 = E_('NW1', 16)
WT = 'sc0 sc1'

FD = 'F' in os.environ.get('DIAG', '')
def fs(a, i):
    if FD: stamp(a, i)
def fphase(a):
    a('''
s_load_dwordx4 s[16:19], s[0:1], 0
s_load_dwordx4 s[32:35], s[0:1], 72
s_load_dwordx2 s[30:31], s[0:1], 104
s_load_dwordx4 s[24:27], s[0:1], 16
s_load_dwordx2 s[28:29], s[0:1], 32
s_load_dwordx2 s[64:65], s[0:1], 48
s_load_dwordx2 s[68:69], s[0:1], 56
s_load_dwordx2 s[72:73], s[0:1], 64
s_load_dwordx2 s[56:57], s[0:1], 88
''')
    code_touch(a, NAME + '_kernel', 'CODE_END', 'a')
    a('''
v_lshrrev_b32 v1, 6, v0
v_and_b32 v2, 63, v0
v_readfirstlane_b32 s3, v1
s_and_b32 s4, s2, 7
s_lshr_b32 s5, s2, 3
s_lshr_b32 s6, s5, 2
s_lshl_b32 s7, s4, 3
s_add_u32 s7, s7, s6
s_and_b32 s8, s5, 3
v_lshlrev_b32 v3, 4, v2
''')
    a(f'v_mov_b32 v15, {L_TAG}')
    a('s_cmp_lt_u32 s3, 4')
    a('s_cbranch_scc1 F_LO')
    a("""
s_sub_u32 s9, s3, 4
v_lshrrev_b32 v6, 3, v2
v_and_b32 v7, 7, v2
v_and_b32 v5, 2, v6
v_lshlrev_b32 v5, 1, v5
v_xor_b32 v7, v7, v5
v_lshlrev_b32 v4, 10, v6
v_lshl_add_u32 v4, v7, 4, v4
v_add_u32 v14, 128, v4
s_lshl_b32 s10, s8, 8
s_lshl_b32 s11, s9, 13
s_add_u32 s10, s10, s11
s_lshl_b32 s12, s9, 10
s_lshl_b32 s13, s6, 16
s_mov_b32 s15, s12
s_mov_b32 s38, 524288
s_mov_b32 s39, 0x20000
s_waitcnt lgkmcnt(0)
""")
    fs(a, 1)
    a("""
s_mov_b32 s36, s18
s_and_b32 s37, s19, 0xffff
""")
    if E_('HW', 0):
        a(f's_load_dword s59, s[30:31], {WS_EPOCH}')
        a('s_waitcnt lgkmcnt(0)')
    a("""
F_WL:
s_add_u32 s14, s13, s10
s_mov_b32 m0, s15
s_add_u32 s11, s15, 0x10000
buffer_load_dwordx4 v4, s[36:39], s14 offen lds
s_mov_b32 m0, s11
s_add_u32 s13, s13, 0x8000
buffer_load_dwordx4 v14, s[36:39], s14 offen lds
s_and_b32 s13, s13, 0x7ffff
s_add_u32 s15, s15, 4096
""")
    a(f's_cmp_lt_u32 s15, {NW1*4096}')
    a('s_cbranch_scc1 F_WL')
    a('s_branch F_HI')
    a('F_LO:')
    def get_tag():
        a('ds_read_b32 v63, v15')
        a('s_waitcnt lgkmcnt(0)')
        a('v_readfirstlane_b32 s59, v63')
    def flag(soff_reg, fl=WT, n=0):
        a('v_mov_b32 v16, s59')
        a('v_mov_b32 v17, 0')
        a(f's_waitcnt vmcnt({n})')
        a('s_mov_b64 exec, 1')
        a(f'buffer_store_dword v16, v17, s[20:23], {soff_reg} offen {fl}')
        a('s_mov_b64 exec, -1')
    def get_fast():
        a('ds_read_b32 v63, v15 offset:4')
        a('s_waitcnt lgkmcnt(0)')
        a('v_readfirstlane_b32 s60, v63')
    X, XN, MR = 64, 96, 160
    a('''
s_lshl_b32 s10, s7, 5
s_lshl_b32 s11, s3, 3
s_add_u32 s10, s10, s11
s_lshl_b32 s11, s10, 10
s_add_u32 s11, s11, 4096
v_add_u32 v4, s11, v3
v_lshlrev_b32 v14, 5, v0
s_lshr_b32 s9, s5, 3
s_and_b32 s12, s5, 7
s_lshl_b32 s13, s4, 3
s_add_u32 s12, s12, s13
s_lshl_b32 s13, s12, 1
s_add_u32 s13, s13, s3
s_add_u32 s13, s13, 63
s_cmp_eq_u32 s3, 0
s_cselect_b32 s12, s12, s13
s_lshl_b32 s13, s12, 5
s_mul_i32 s14, s9, 786432
s_add_u32 s13, s13, s14
v_lshrrev_b32 v5, 1, v2
v_mul_u32_u24 v10, 24576, v5
v_and_b32 v11, 1, v2
v_lshl_add_u32 v10, v11, 4, v10
s_lshl_b32 s14, s9, 8
v_lshl_add_u32 v5, v5, 3, s14
s_waitcnt lgkmcnt(0)
''')
    def mod_load(B):
        for r in range(4):
            a(f'buffer_load_dwordx4 v[{B+4*r}:{B+4*r+3}], v10, s[36:39], s13 offen')
            if r < 3: a('s_add_u32 s13, s13, 6144')
        a(f'global_load_dwordx2 v[{B+16}:{B+17}], v5, s[32:33]')
    def mod_calc(B):
        Sx, Ac, Tm = B+20, B+24, B+32
        unpack(a, Sx, B+16, 2)
        for r in range(4): a(f'v_mul_f32 v{Ac+r}, {f32(-LOG2E)}, v{Sx+r}')
        for r in range(4): a(f'v_exp_f32 v{Ac+r}, v{Ac+r}')
        for r in range(4): a(f'v_add_f32 v{Ac+r}, 1.0, v{Ac+r}')
        for r in range(4): a(f'v_rcp_f32 v{Ac+r}, v{Ac+r}')
        for r in range(4): a(f'v_mul_f32 v{Sx+r}, v{Sx+r}, v{Ac+r}')
        a(f'v_cvt_pk_bf16_f32 v{Ac}, v{Sx}, v{Sx+1}')
        a(f'v_cvt_pk_bf16_f32 v{Ac+1}, v{Sx+2}, v{Sx+3}')
        unpack(a, Sx, Ac, 2)
        for r in range(4):
            unpack(a, Tm, B + 4*r, 4)
            for i in range(8):
                a(f'v_mul_f32 v{Ac+i}, v{Tm+i}, v{Sx}' if r == 0 else f'v_fmac_f32 v{Ac+i}, v{Tm+i}, v{Sx+r}')
        for i in range(4): a(f'v_permlane32_swap_b32 v{Ac+i}, v{Ac+4+i}')
        for i in range(4): a(f'v_add_f32 v{Ac+i}, v{Ac+i}, v{Ac+4+i}')
        for i in range(2): a(f'v_permlane16_swap_b32 v{Ac+i}, v{Ac+2+i}')
        for i in range(2): a(f'v_add_f32 v{Ac+i}, v{Ac+i}, v{Ac+2+i}')
        for sh in (8, 4, 2):
            for i in range(2): a(f'v_add_f32_dpp v{Ac+i}, v{Ac+i}, v{Ac+i} row_ror:{sh} row_mask:0xf bank_mask:0xf')
        a(f'v_mov_b32 v{Ac+2}, v{Ac+1}')
        a(f'v_mov_b32 v{Ac+1}, s59')
        a(f'v_mov_b32 v{Ac+3}, s59')
        a('s_mov_b32 exec_lo, 0x00030003')
        a('s_mov_b32 exec_hi, 0x00030003')
        a(f'buffer_store_dwordx4 v[{Ac}:{Ac+3}], v11, s[20:23], s14 offen {WT}')
        a('s_mov_b64 exec, -1')
    fs(a, 1)
    srd(a, 36, 34, 3145728)
    a('s_cmp_lg_u32 s3, 0')
    a('s_cbranch_scc1 F_X')
    mod_load(16)
    a('F_X:')
    a(f's_load_dword s59, s[30:31], {WS_EPOCH}')
    srd(a, 20, 30, WS_END)
    a('''
v_lshlrev_b32 v11, 6, v11
v_lshrrev_b32 v8, 5, v2
v_lshl_add_u32 v11, v8, 5, v11
v_bfe_u32 v8, v2, 4, 1
v_lshl_add_u32 v11, v8, 4, v11
s_mul_i32 s14, s9, 24576
s_lshl_b32 s15, s12, 7
s_add_u32 s14, s14, s15
''')
    a(f's_add_u32 s14, s14, {WS_MODG}')
    a('''
s_lshl_b32 s15, s6, 12
v_lshlrev_b32 v6, 9, v2
v_subrev_u32 v6, s15, v6
v_and_b32 v6, 0x7fff, v6
v_and_b32 v7, 7, v2
v_lshl_add_u32 v6, v7, 4, v6
s_lshl_b32 s15, s3, 7
v_add_u32 v6, s15, v6
v_lshlrev_b32 v12, 5, v2
''')
    a(f'v_add_u32 v12, {L_MOD}, v12')
    a('v_and_b32 v59, 31, v2')
    a('v_lshlrev_b32 v59, 3, v59')
    a('s_lshl_b32 s63, s4, 8')
    a(f's_add_u32 s63, s63, {WS_XT}')
    a('s_getreg_b32 s58, hwreg(HW_REG_XCC_ID)')
    a('s_and_b32 s58, s58, 7')
    if E_('XW', 0): a('s_waitcnt lgkmcnt(0)')
    for t in range(8):
        a(f'global_load_dwordx4 v[{X+4*t}:{X+4*t+3}], v4, s[16:17] offset:{t*1024-4096}')
    a('s_waitcnt lgkmcnt(0)')
    a('s_mul_i32 s59, s59, 1664525')
    a('s_add_u32 s59, s59, 1013904223')
    a('s_cmp_lg_u32 s3, 0')
    a('s_cbranch_scc1 F_LN0')
    a('s_waitcnt vmcnt(8)')
    mod_calc(16)
    a('ds_write_b32 v15, v41')
    a('''
s_getreg_b32 s15, hwreg(HW_REG_XCC_ID)
s_and_b32 s15, s15, 7
v_mov_b32 v42, s15
s_lshl_b32 s15, s4, 5
s_add_u32 s15, s15, s5
s_lshl_b32 s15, s15, 3
v_mov_b32 v44, 0
''')
    a(f's_add_u32 s15, s15, {WS_XT}')
    a('s_mov_b64 exec, 1')
    a(f'buffer_store_dwordx2 v[42:43], v44, s[20:23], s15 offen {WT}')
    a('s_mov_b64 exec, -1')
    a('s_waitcnt vmcnt(2)')
    a('s_branch F_LN')
    a('F_LN0:')
    a('s_waitcnt vmcnt(0)')
    a('F_LN:')
    fs(a, 5)
    SM = 48
    for t in range(8): unpack(a, XN + 8*t, X + 4*t, 4)
    pr = lambda r: f'v[{r}:{r+1}]'
    TT = 16
    for t in range(8):
        b = XN + 8*t
        a(f'v_pk_add_f32 {pr(TT+4*t)}, {pr(b)}, {pr(b+2)}')
        a(f'v_pk_add_f32 {pr(TT+4*t+2)}, {pr(b+4)}, {pr(b+6)}')
    for t in range(8): a(f'v_pk_add_f32 {pr(TT+4*t)}, {pr(TT+4*t)}, {pr(TT+4*t+2)}')
    for t in range(8): a(f'v_add_f32 v{SM+t}, v{TT+4*t}, v{TT+4*t+1}')
    dpp_reduce(a, [SM+t for t in range(8)])
    for t in range(8): a(f'v_mul_f32 v{SM+t}, {f32(-1/512)}, v{SM+t}')
    for t in range(8): a(f'v_readlane_b32 s{40+2*t}, v{SM+t}, 63')
    for t in range(8):
        for i in range(4): a(f'v_pk_add_f32 {pr(XN+8*t+2*i)}, {pr(XN+8*t+2*i)}, s[{40+2*t}:{41+2*t}] op_sel_hi:[1,0]')
    for i in range(4):
        for t in range(8):
            b = XN + 8*t + 2*i
            if i == 0: a(f'v_pk_mul_f32 {pr(TT+2*t)}, {pr(b)}, {pr(b)}')
            else: a(f'v_pk_fma_f32 {pr(TT+2*t)}, {pr(b)}, {pr(b)}, {pr(TT+2*t)}')
    for t in range(8): a(f'v_add_f32 v{SM+t}, v{TT+2*t}, v{TT+2*t+1}')
    dpp_reduce(a, [SM+t for t in range(8)])
    KW = 160
    def side_code(early):
        a('s_cmp_eq_u32 s3, 0')
        a('s_cbranch_scc1 F_SL0')
        a('s_cmp_eq_u32 s3, 3')
        a('s_cbranch_scc1 F_SL3')
        mod_load(MR)
        if early: a('s_waitcnt vmcnt(5)')
        a('s_branch F_SLY' if early else 's_branch F_SLX')
        a('F_SL3:')
        a('''
s_cmp_ge_u32 s2, 128
s_cbranch_scc1 F_SLX
v_lshrrev_b32 v9, 3, v2
v_lshlrev_b32 v10, 10, v9
v_and_b32 v9, 7, v2
v_lshl_add_u32 v10, v9, 4, v10
s_lshl_b32 s13, s5, 15
s_lshl_b32 s15, s4, 7
s_add_u32 s13, s13, s15
''')
        srd(a, 36, 28, 524288)
        for k in range(4):
            a(f's_mov_b32 m0, {L_WOS + k*1024}')
            if k: a('s_add_u32 s13, s13, 8192')
            a('buffer_load_dwordx4 v10, s[36:39], s13 offen lds')
        if early: a('s_waitcnt vmcnt(4)')
        a('s_branch F_SLY' if early else 's_branch F_SLX')
        a('F_SL0:')
        a('''
s_and_b32 s12, s8, 1
v_and_b32 v8, 3, v2
v_lshrrev_b32 v9, 1, v8
v_and_b32 v10, 1, v8
v_lshl_add_u32 v9, v10, 1, v9
s_cmp_lg_u32 s12, 0
s_cselect_b64 s[40:41], -1, 0
v_cndmask_b32 v8, v8, v9, s[40:41]
v_lshlrev_b32 v8, 3, v8
v_bfe_u32 v9, v2, 2, 2
v_lshl_add_u32 v8, v9, 5, v8
v_lshrrev_b32 v9, 4, v2
v_lshl_add_u32 v8, v9, 8, v8
''')
        a(f'v_add_u32 v8, {L_KVW}, v8')
        a('F_SLX:')

    def sweep_issue():
        for p in range(4):
            a(f's_mov_b32 s61, {WS_MODG + p*24576}')
            a(f'buffer_load_dwordx4 v[{16+8*p}:{19+8*p}], v14, s[20:23], s61 offen sc1')
            a(f'buffer_load_dwordx4 v[{20+8*p}:{23+8*p}], v14, s[20:23], s61 offen offset:16 sc1')
        a('buffer_load_dwordx2 v[60:61], v59, s[20:23], s63 offen sc1')
    a(f'v_mov_b32 v56, {f32(1e-5)}')
    for t in range(8): a(f'v_fmamk_f32 v{SM+t}, v{SM+t}, {f32(1/512)}, v56')
    for t in range(8): a(f'v_rsq_f32 v{SM+t}, v{SM+t}')
    for t in range(8): a(f'v_readlane_b32 s{40+2*t}, v{SM+t}, 63')
    for t in range(8):
        for i in range(4): a(f'v_pk_mul_f32 {pr(XN+8*t+2*i)}, {pr(XN+8*t+2*i)}, s[{40+2*t}:{41+2*t}] op_sel_hi:[1,0]')
    fs(a, 6)
    if E_('SWE', 0): sweep_issue()
    a('s_waitcnt lgkmcnt(0)')
    a('s_barrier')
    fs(a, 7)
    if not E_('SWE', 0): sweep_issue()
    a('s_mov_b32 s62, 0x40000')
    if E_('SE', 0): side_code(True)
    a('F_SW:')
    a('s_waitcnt vmcnt(0)')
    a('F_SLY:')
    a('v_xor_b32 v48, s59, v61')
    for r in range(17, 48, 2):
        a(f'v_xor_b32 v49, s59, v{r}')
        a('v_or_b32 v48, v48, v49')
    a('v_cmp_ne_u32 vcc, 0, v48')
    a('s_cmp_eq_u64 vcc, 0')
    a('s_cbranch_scc1 F_SG')
    a('s_mov_b64 exec, vcc')
    a(f's_sleep {E_("SWS", 2)}')
    sweep_issue()
    a('s_mov_b64 exec, -1')
    a('s_sub_u32 s62, s62, 1')
    a('s_cmp_lg_u32 s62, 0')
    a('s_cbranch_scc1 F_SW')
    a('s_waitcnt vmcnt(0)')
    a('F_SG:')
    fs(a, 8)
    a('v_cmp_eq_u32 vcc, s58, v60')
    a('s_cmp_eq_u64 vcc, -1')
    a(f's_cselect_b32 s60, {0 if E_("FORCE_SLOW", 0) else 1}, 0')
    a('v_mov_b32 v60, s60')
    a('ds_write_b32 v15, v60 offset:4')
    for i in range(4):
        a(f'v_add_f32 v{16+2*i}, v{16+2*i}, v{24+2*i}')
        a(f'v_add_f32 v{32+2*i}, v{32+2*i}, v{40+2*i}')
    for i in range(4): a(f'v_add_f32 v{16+i}, v{16+2*i}, v{32+2*i}')
    a('v_cvt_pk_bf16_f32 v20, v16, v17')
    a('v_cvt_pk_bf16_f32 v21, v18, v19')
    unpack(a, 16, 20, 2)
    a('s_cmp_lt_u32 s3, 2')
    a('s_cbranch_scc1 F_NOADD')
    for i in range(4): a(f'v_add_f32 v{16+i}, 1.0, v{16+i}')
    a('v_cvt_pk_bf16_f32 v20, v16, v17')
    a('v_cvt_pk_bf16_f32 v21, v18, v19')
    unpack(a, 16, 20, 2)
    a('F_NOADD:')
    a('v_lshrrev_b32 v20, 1, v14')
    a(f'v_add_u32 v20, {L_MOD}, v20')
    a('ds_write_b128 v20, v[16:19]')
    if not E_('SE', 0): side_code(False)
    a('s_waitcnt lgkmcnt(0)')
    if not FD: stamp(a, 1)
    a('s_barrier')
    fs(a, 9)
    a('ds_read_b128 v[16:19], v12')
    a('ds_read_b128 v[20:23], v12 offset:16')
    a('ds_read_b128 v[24:27], v12 offset:2048')
    a('ds_read_b128 v[28:31], v12 offset:2064')
    a('s_waitcnt lgkmcnt(0)')
    for t in range(8):
        T = XN + 8*t; x = X + 4*t
        for i in range(4):
            a(f'v_pk_fma_f32 v[{T+2*i}:{T+2*i+1}], v[{T+2*i}:{T+2*i+1}], v[{24+2*i}:{25+2*i}], v[{16+2*i}:{17+2*i}]')
        for i in range(4): a(f'v_cvt_pk_bf16_f32 v{x+i}, v{T+2*i}, v{T+2*i+1}')
        if t: a(f'v_xor_b32 v13, {16*t}, v6')
        a(f'ds_write_b128 v{13 if t else 6}, v[{x}:{x+3}]')
    a('s_waitcnt lgkmcnt(0)')
    a('s_barrier')
    fs(a, 10)
    a('s_cmp_eq_u32 s3, 0')
    a('s_cbranch_scc1 F_KV')
    a('s_waitcnt vmcnt(0)')
    a('s_cmp_eq_u32 s3, 3')
    a('s_cbranch_scc1 F_S3')
    mod_calc(MR)
    a('s_branch F_END')
    a('F_S3:')
    a('''
s_cmp_ge_u32 s2, 128
s_cbranch_scc1 F_END
v_lshrrev_b32 v9, 4, v2
v_lshlrev_b32 v8, 10, v9
v_bfe_u32 v9, v2, 2, 2
v_lshl_add_u32 v8, v9, 7, v8
v_and_b32 v9, 3, v2
v_lshl_add_u32 v8, v9, 5, v8
s_lshl_b32 s13, s4, 16
s_lshl_b32 s15, s5, 10
s_add_u32 s13, s13, s15
''')
    a(f'v_add_u32 v8, {L_WOS}, v8')
    a(f's_add_u32 s13, s13, {WS_WOF}')
    for c in range(4):
        a(f'ds_read_b64_tr_b16 v[{MR+4*c}:{MR+4*c+1}], v8 offset:{8*c}')
        a(f'ds_read_b64_tr_b16 v[{MR+4*c+2}:{MR+4*c+3}], v8 offset:{8*c+512}')
    a('s_waitcnt lgkmcnt(0)')
    for c in range(4):
        a(f'buffer_store_dwordx4 v[{MR+4*c}:{MR+4*c+3}], v3, s[20:23], s13 offen {WT}')
        if c < 3: a('s_add_u32 s13, s13, 16384')
    a('s_branch F_END')
    a('F_KV:')
    for n in range(16):
        a(f'ds_read_b64_tr_b16 v[{KW+4*n}:{KW+4*n+1}], v8 offset:{n*1024}')
        a(f'ds_read_b64_tr_b16 v[{KW+4*n+2}:{KW+4*n+3}], v8 offset:{n*1024+128}')
    a('''
s_lshr_b32 s13, s8, 1
s_lshl_b32 s13, s13, 4
v_and_b32 v10, 15, v2
v_add_u32 v10, s13, v10
v_bfe_u32 v11, v2, 4, 1
v_lshrrev_b32 v12, 5, v2
v_lshl_add_u32 v15, v11, 5, v10
v_lshl_add_u32 v14, v12, 1, v11
v_xor_b32 v7, v15, v14
v_lshlrev_b32 v7, 4, v7
v_lshl_add_u32 v7, v12, 10, v7
v_xor_b32 v9, 64, v7
v_add_u32 v9, 2048, v9
''')
    H = 96
    for n in range(16):
        a(f'ds_read_b128 v[{H+4*n}:{H+4*n+3}], v{9 if n & 1 else 7} offset:{(n>>1)*4096}')
    a('''
v_lshrrev_b32 v11, 4, v2
v_and_b32 v12, 1, v11
v_lshrrev_b32 v11, 1, v11
s_lshl_b32 s14, s7, 11
''')
    a(f's_add_u32 s14, s14, {WS_KVF}')
    a('s_cmp_lg_u32 s12, 0')
    a('s_cbranch_scc1 F_V')
    for n in range(16):
        a(f's_waitcnt lgkmcnt({15-n})')
        c = '0' if n == 0 else 'v[16:19]'
        a(f'v_mfma_f32_16x16x32_bf16 v[16:19], v[{KW+4*n}:{KW+4*n+3}], v[{H+4*n}:{H+4*n+3}], {c}')
    a('''
v_lshlrev_b32 v15, 9, v11
v_lshl_add_u32 v15, v10, 4, v15
v_lshl_add_u32 v15, v12, 3, v15
s_branch F_KVST
F_V:
''')
    for n in range(16):
        a(f's_waitcnt lgkmcnt({15-n})')
        c = '0' if n == 0 else 'v[16:19]'
        a(f'v_mfma_f32_16x16x32_bf16 v[16:19], v[{H+4*n}:{H+4*n+3}], v[{KW+4*n}:{KW+4*n+3}], {c}')
    a('''
v_and_b32 v15, 15, v2
v_lshl_add_u32 v15, v12, 4, v15
v_lshlrev_b32 v15, 4, v15
v_lshl_add_u32 v15, v11, 3, v15
s_lshl_b32 s13, s13, 5
s_add_u32 s13, s13, 1024
v_add_u32 v15, s13, v15
F_KVST:
s_nop 4
v_cvt_pk_bf16_f32 v20, v16, v17
v_cvt_pk_bf16_f32 v21, v18, v19
''')
    a(f's_add_u32 s15, s14, {WS_KVL - WS_KVF}')
    a('s_lshl_b32 s13, s4, 5')
    a('s_add_u32 s13, s13, s5')
    a('s_lshl_b32 s13, s13, 2')
    a(f's_add_u32 s12, s13, {WS_LFL}')
    a(f's_add_u32 s13, s13, {WS_GFL}')
    a('s_cmp_lg_u32 s60, 0')
    a('s_cbranch_scc0 F_KVS')
    a('buffer_store_dwordx2 v[20:21], v15, s[20:23], s15 offen')
    a(f'buffer_store_dwordx2 v[20:21], v15, s[20:23], s14 offen {WT}')
    flag('s12', '', 1)
    flag('s13', WT, 1)
    a('s_branch F_END')
    a('F_KVS:')
    a(f'buffer_store_dwordx2 v[20:21], v15, s[20:23], s15 offen {WT}')
    a(f'buffer_store_dwordx2 v[20:21], v15, s[20:23], s14 offen {WT}')
    flag('s12')
    flag('s13', WT, 1)
    a('s_branch F_END')

    a('F_HI:')
    W = 64
    a("""
v_lshrrev_b32 v7, 5, v2
v_lshlrev_b32 v8, 10, v7
v_bfe_u32 v6, v2, 2, 2
v_lshl_add_u32 v8, v6, 7, v8
v_bfe_u32 v5, v2, 1, 1
v_lshl_add_u32 v8, v5, 3, v8
v_and_b32 v5, 1, v2
v_lshlrev_b32 v5, 1, v5
v_bfe_u32 v9, v2, 4, 1
v_add_u32 v5, v5, v9
v_and_b32 v6, 2, v6
v_lshl_add_u32 v5, v6, 1, v5
s_and_b32 s52, s9, 1
s_lshl_b32 s52, s52, 2
v_xor_b32 v5, s52, v5
v_lshl_add_u32 v8, v5, 4, v8
s_lshr_b32 s52, s9, 1
s_lshl_b32 s52, s52, 16
v_add_u32 v13, s52, v8
""")
    fs(a, 5)
    a(f's_waitcnt vmcnt({2*NW1 - 16})')
    a('s_barrier')
    fs(a, 7)
    def wrd(n):
        a(f'ds_read_b64_tr_b16 v[{W+4*n}:{W+4*n+1}], v13 offset:{n*2048}')
        a(f'ds_read_b64_tr_b16 v[{W+4*n+2}:{W+4*n+3}], v13 offset:{n*2048+512}')
    for n in range(16): wrd(n)
    for n in range(NW1, 16):
        a("""
s_add_u32 s14, s13, s10
s_mov_b32 m0, s15
s_add_u32 s11, s15, 0x10000
buffer_load_dwordx4 v4, s[36:39], s14 offen lds
s_mov_b32 m0, s11
s_add_u32 s13, s13, 0x8000
buffer_load_dwordx4 v14, s[36:39], s14 offen lds
s_and_b32 s13, s13, 0x7ffff
s_add_u32 s15, s15, 4096
""")
    a("""
s_and_b32 s15, s8, 1
s_cmp_lg_u32 s15, 0
s_cselect_b32 s44, s26, s24
s_cselect_b32 s45, s27, s25
s_and_b32 s45, s45, 0xffff
s_mov_b32 s46, 16384
s_mov_b32 s47, 0x20000
s_lshl_b32 s13, s6, 11
s_add_u32 s13, s13, s12
""")
    for k in range(4):
        a('s_and_b32 s13, s13, 0x3fff')
        a(f's_add_u32 s15, s12, {L_KVW + k*4096}')
        a('s_mov_b32 m0, s15')
        a('s_nop 0')
        a('buffer_load_dwordx4 v3, s[44:47], s13 offen lds')
        if k < 3: a('s_add_u32 s13, s13, 4096')
    for q in range(4):
        a(f'v_add_u32 v{8+q}, {2*q}, v7')
        a(f'v_xor_b32 v{8+q}, v{8+q}, v2')
        a(f'v_lshlrev_b32 v{8+q}, 4, v{8+q}')
        if q: a(f'v_add_u32 v{8+q}, {1024*q}, v{8+q}')
    a("""
s_lshl_b32 s53, s7, 2
s_add_u32 s53, s53, s8
s_lshl_b32 s53, s53, 2
s_add_u32 s53, s53, s9
s_lshl_b32 s54, s53, 2
s_lshl_b32 s53, s53, 11
""")
    a(f's_add_u32 s53, s53, {WS_Q}')
    a(f's_add_u32 s54, s54, {WS_QFL}')
    a(f's_mov_b32 s55, {f32(QSCALE)}')
    srd(a, 20, 30, WS_END)
    a("""
v_and_b32 v14, 15, v2
v_lshlrev_b32 v14, 7, v14
v_add_u32 v12, s53, v14
s_lshl_b32 s14, s7, 11
""")
    a(f's_add_u32 s14, s14, {WS_KVL}')
    a('v_add_u32 v14, s14, v14')
    a('v_cmp_gt_u32 vcc, 16, v2')
    a('s_lshl_b32 s14, s4, 7')
    a(f's_add_u32 s14, s14, {WS_LFL}')
    a('v_cndmask_b32 v12, v14, v12, vcc')
    a('v_writelane_b32 v12, s14, 32')
    a('v_writelane_b32 v12, s54, 33')
    get_tag()
    fs(a, 8)
    if not FD: stamp(a, 1)
    a('s_barrier')
    a('s_mov_b32 exec_hi, 3')
    a('buffer_load_dword v1, v12, s[20:23], 0 offen')
    a('s_mov_b64 exec, -1')
    get_fast()
    a('s_waitcnt vmcnt(1)')
    a('s_barrier')
    fs(a, 9)
    ACC = 16
    lg = []
    def rd(n):
        r = 32 + 4*(n & 7)
        a(f'ds_read_b128 v[{r}:{r+3}], v{8+(n&3)} offset:{(n>>2)*4096}'); lg.append(('h', n))
    for n in range(6): rd(n)
    for n in range(32):
        need = max(lg.index(('h', n)), lg.index(('w', n)) if n >= 16 else 0)
        a(f's_waitcnt lgkmcnt({min(15, len(lg) - need - 1)})')
        r = 32 + 4*(n & 7); w = W + 4*n
        c = '0' if n == 0 else f'v[{ACC}:{ACC+15}]'
        a(f'v_mfma_f32_32x32x16_bf16 v[{ACC}:{ACC+15}], v[{w}:{w+3}], v[{r}:{r+3}], {c}')
        if n + 6 < 32: rd(n + 6)
        if n < 16: wrd(16 + n); lg += [('w0', 16+n), ('w', 16+n)]
    fs(a, 10)
    for i in range(16): a(f'v_mul_f32 v{ACC+i}, s55, v{ACC+i}')
    for i in range(8): a(f'v_cvt_pk_bf16_f32 v{32+i}, v{ACC+2*i}, v{ACC+2*i+1}')
    a('s_cmp_lg_u32 s60, 0')
    a('s_cbranch_scc1 F_QF')
    a(f'buffer_store_dwordx4 v[32:35], v3, s[20:23], s53 offen {WT}')
    a(f'buffer_store_dwordx4 v[36:39], v3, s[20:23], s53 offen offset:1024 {WT}')
    flag('s54')
    a('s_branch F_END')
    a('F_QF:')
    a('buffer_store_dwordx4 v[32:35], v3, s[20:23], s53 offen')
    a('buffer_store_dwordx4 v[36:39], v3, s[20:23], s53 offen offset:1024')
    flag('s54', '')
    a('F_END:')
```

```python
from common import *
from k3 import gelu_ops, K1C, K0C
from fphase import fphase

L_ONES = 131072
L_STAT = 131072 + 1024
L_OX   = 147072
L_MODS = L_OX + 8448
L_GB   = 161792
L_END  = 163840
Q, C, S0, S1, P, O, KK, VA, VB = 16, 20, 36, 52, 68, 76, 92, 96, 100
XR, WO, NPRE = 104, 108, 36
E_ = lambda k, d: int(os.environ.get(k, str(d)))
PRIO_PERIOD, PRIO_HI = E_('PRIO_PERIOD', 8), E_('PRIO_HI', 6)
TOUCH, TSPAN, WOSTART = E_('TOUCH', 14), E_('TSPAN', 42), E_('WOSTART', 16)
FORCE_SLOW = E_('FORCE_SLOW', 0)
NP1 = E_('NP1', 2)
WD0 = E_('WD0', 8)
PRE = os.environ.get('PRE', 'h')
W1F = os.environ.get('W1F', 'nt')
STA = os.environ.get('STA', 'sc0 sc1')
STH = os.environ.get('STH', '')
STO = os.environ.get('STO', '')
TCH = os.environ.get('TCH', 'u')
ATF = os.environ.get('ATF', '')
DIAG = os.environ.get('DIAG', '')
H2B = WS_Q
LD = os.environ.get('LD', 'sc1')

def tile(a, t, side=()):
    side = list(side)
    def sd():
        if side: side.pop(0)()
    b = t & 1
    S = S1 if b else S0; SN = S0 if b else S1
    E = lambda i: a(f'v_exp_f32 v{S+i}, v{S+i}')
    Cv = lambda i: a(f'v_cvt_pk_bf16_f32 v{S+i}, v{S+2*i}, v{S+2*i+1}')
    E(0)
    a(f'v_cvt_pk_bf16_f32 v{SN+7}, v{SN+14}, v{SN+15}')
    E(1); E(2); Cv(0)
    a('s_waitcnt lgkmcnt(2)')
    a(f'v_mfma_f32_32x32x16_bf16 v[{O}:{O+15}], v[{VB}:{VB+3}], v[{SN+4}:{SN+7}], v[{O}:{O+15}]')
    a(f'ds_read_b128 v[{VB}:{VB+3}], v9 offset:{t*2048+512}')
    E(3); E(4); Cv(1); sd(); E(5); E(6); Cv(2)
    a('s_waitcnt lgkmcnt(2)')
    a(f'v_mfma_f32_32x32x16_bf16 v[{SN}:{SN+15}], v[{KK}:{KK+3}], v[{Q}:{Q+3}], v[{C}:{C+15}]')
    a(f'ds_read_b128 v[{KK}:{KK+3}], v8 offset:{(t+2)*2048}')
    E(7); E(8); Cv(3); E(9); E(10)
    a('s_waitcnt lgkmcnt(2)')
    a(f'v_mfma_f32_32x32x16_bf16 v[{O}:{O+15}], v[{VA}:{VA+3}], v[{S}:{S+3}], v[{O}:{O+15}]')
    if t == 7:
        a('v_add_u32 v9, v9, v10')
        a(f'ds_read_b128 v[{VA}:{VA+3}], v9')
        a('v_add_u32 v8, 0x4000, v8')
    else:
        a(f'ds_read_b128 v[{VA}:{VA+3}], v9 offset:{(t+1)*2048}')
    Cv(4); E(11); E(12); Cv(5); sd(); E(13); E(14); Cv(6); E(15)
    while side: sd()

def publish(a, tag, voff, vone, soff, nyoung=0):
    a(f's_waitcnt vmcnt({nyoung})')
    a('s_mov_b64 exec, 1')
    a('s_cmp_lg_u32 s60, 0')
    a(f's_cbranch_scc1 M_PF{tag}')
    a('buffer_wbl2 sc1')
    a('s_waitcnt vmcnt(0)')
    a(f'buffer_store_dword v{vone}, v{voff}, s[20:23], {soff} offen sc0 sc1')
    a(f's_branch M_PX{tag}')
    a(f'M_PF{tag}:')
    a(f'buffer_store_dword v{vone}, v{voff}, s[20:23], {soff} offen')
    a(f'M_PX{tag}:')
    a('s_mov_b64 exec, -1')

def flag_only(a, tag, voff, vone, soff, off, n=0):
    a(f's_waitcnt vmcnt({n})')
    a('s_mov_b64 exec, 1')
    a('s_cmp_lg_u32 s60, 0')
    a(f's_cbranch_scc1 M_PF{tag}')
    a(f'buffer_store_dword v{vone}, v{voff}, s[20:23], {soff} offen offset:{off} sc0 sc1')
    a(f's_branch M_PX{tag}')
    a(f'M_PF{tag}:')
    a(f'buffer_store_dword v{vone}, v{voff}, s[20:23], {soff} offen offset:{off}')
    a(f'M_PX{tag}:')
    a('s_mov_b64 exec, -1')

def poll(a, tag, voff, vtmp, soff, code):
    a('s_mov_b32 s36, 0x80000')
    a(f'M_W{tag}:')
    a(f'buffer_load_dword v{vtmp}, v{voff}, s[20:23], {soff} offen offset:{1024 if code == 2 else 0} sc1')
    a('s_waitcnt vmcnt(0)')
    a(f'v_cmp_eq_u32 vcc, s59, v{vtmp}')
    a('s_cmp_eq_u64 vcc, -1')
    a(f's_cbranch_scc1 M_G{tag}')
    a('s_sleep 2')
    a('s_sub_u32 s36, s36, 1')
    a('s_cmp_lg_u32 s36, 0')
    a(f's_cbranch_scc1 M_W{tag}')
    a(f'M_G{tag}:')
    a('s_cmp_lg_u32 s60, 0')
    a(f's_cbranch_scc1 M_A{tag}')
    a('buffer_inv sc1')
    a('s_waitcnt vmcnt(0)')
    a(f'M_A{tag}:')

def mega():
    K = Kernel(NAME + '_kernel', 256, 512, L_END)
    a = K.a
    a('''
s_cmp_ge_u32 s2, 256
s_cbranch_scc1 M_END2
''')
    prof_init(a)
    fphase(a)
    stamp(a, 2)
    a("""
s_lshl_b32 s6, s4, 8
s_lshl_b32 s9, s5, 3
s_add_u32 s6, s6, s9
v_and_b32 v4, 31, v2
v_lshrrev_b32 v5, 5, v2
v_lshlrev_b32 v6, 5, v4
v_lshl_add_u32 v6, v5, 4, v6
v_lshrrev_b32 v7, 1, v4
v_lshlrev_b32 v7, 11, v7
v_lshl_add_u32 v7, v5, 10, v7
v_and_b32 v8, 1, v4
v_lshl_add_u32 v7, v8, 9, v7
s_add_u32 s9, s6, s3
s_and_b32 s9, s9, 31
s_lshl_b32 s9, s9, 4
s_lshl_b32 s10, s7, 15
s_add_u32 s9, s9, s10
""")
    a(f's_add_u32 s9, s9, {WS_Q}')
    a("""
v_mov_b32 v8, v3
v_lshl_add_u32 v9, v5, 4, v4
v_lshlrev_b32 v9, 4, v9
v_add_u32 v9, 0x400, v9
v_cmp_gt_u32 s[32:33], 16, v4
""")
    a(f'v_mov_b32 v11, {L_ONES+1024}')
    a("""
v_mov_b32 v12, 0x4000
v_and_b32 v13, 27, v4
v_cmp_eq_u32 s[34:35], 16, v13
v_add_u32 v13, 16, v11
v_cndmask_b32 v13, v13, v11, s[34:35]
v_add_u32 v14, 4, v4
v_and_b32 v14, 8, v14
v_lshl_add_u32 v13, v14, 3, v13
v_cndmask_b32 v9, v13, v9, s[32:33]
v_cndmask_b32 v10, 0, v12, s[32:33]
v_lshrrev_b32 v12, 1, v2
v_lshlrev_b32 v12, 11, v12
v_and_b32 v13, 1, v2
v_lshl_add_u32 v12, v13, 9, v12
v_add_u32 v12, v12, v11
""")
    for i in range(4): a(f'v_mov_b32 v{VA+i}, 0x3f803f80')
    for i in range(4): a(f'v_mov_b32 v{VB+i}, 0')
    for i in range(16): a(f'v_mov_b32 v{O+i}, 0')
    for i in range(4): a(f'v_mov_b32 v{S1+4+i}, 0')
    a(f'v_mov_b32 v{S1+14}, 0')
    a(f'v_mov_b32 v{S1+15}, 0')
    a("""
s_lshl_b32 s63, s3, 10
s_mov_b32 s10, s63
s_lshl_b32 s11, s4, 14
s_add_u32 s11, s11, s10
s_cmp_lg_u32 s3, 7
s_cbranch_scc1 M_NP0
v_and_b32 v13, 15, v2
s_lshl_b32 s14, s7, 6
s_lshl_b32 s15, s4, 7
""")
    a(f's_add_u32 s14, s14, {WS_QFL}')
    a(f's_add_u32 s15, s15, {WS_LFL}')
    a("""
v_lshl_add_u32 v13, v13, 2, s14
v_lshl_add_u32 v14, v4, 2, s15
v_cmp_gt_u32 vcc, 32, v2
s_mov_b32 s36, 0x80000
v_cndmask_b32 v13, v13, v14, vcc
M_W0:
buffer_load_dword v24, v13, s[20:23], 0 offen sc1
s_waitcnt vmcnt(0)
v_cmp_eq_u32 vcc, s59, v24
s_cmp_eq_u64 vcc, -1
s_cbranch_scc1 M_NP0
""")
    a(f's_sleep {E_("P0S", 1)}')
    a("""
s_sub_u32 s36, s36, 1
s_cmp_lg_u32 s36, 0
s_cbranch_scc1 M_W0
M_NP0:
s_barrier
""")
    stamp(a, 3)
    a(f'buffer_load_dwordx4 v[{Q}:{Q+3}], v7, s[20:23], s9 offen sc1')
    def dma(i):
        a('s_mov_b32 m0, s10')
        a(f's_add_u32 s12, s11, {WS_KVL if i < 2 else WS_KVF}')
        a('buffer_load_dwordx4 v3, s[20:23], s12 offen sc1 lds')
        if i < 15:
            a('s_add_u32 s10, s10, 8192')
            a('s_add_u32 s11, s11, 8192')
            a('s_and_b32 s11, s11, 0x1ffff')
    for i in range(2): dma(i)
    a('s_mov_b64 exec, 0xffff')
    a(f'ds_write_b128 v12, v[{VA}:{VA+3}]')
    a(f'ds_write_b128 v12, v[{VB}:{VB+3}] offset:16')
    a(f'ds_write_b128 v12, v[{VA}:{VA+3}] offset:64')
    a(f'ds_write_b128 v12, v[{VB}:{VB+3}] offset:80')
    a('s_mov_b64 exec, -1')
    a('s_waitcnt vmcnt(0) lgkmcnt(0)')
    a('s_barrier')
    stamp(a, 4)
    a('s_cmp_lg_u32 s3, 3')
    a('s_cbranch_scc1 M_NWF')
    a('s_cmp_ge_u32 s2, 128')
    a('s_cbranch_scc1 M_NWF')
    a('s_lshl_b32 s12, s2, 2')
    a(f's_add_u32 s12, s12, {WS_WFL}')
    a('v_mov_b32 v14, s59')
    a('v_mov_b32 v15, 0')
    a('s_mov_b64 exec, 1')
    a('buffer_store_dword v14, v15, s[20:23], s12 offen sc0 sc1')
    a('s_mov_b64 exec, -1')
    a('M_NWF:')
    a(f'ds_read_b128 v[{KK}:{KK+3}], v8')
    a('s_waitcnt lgkmcnt(0)')
    a(f'v_mfma_f32_32x32x16_bf16 v[{S0}:{S0+15}], v[{KK}:{KK+3}], v[{Q}:{Q+3}], 0')
    a(f'v_max3_f32 v12, v{S0}, v{S0+1}, v{S0+2}')
    a(f'v_max3_f32 v13, v{S0+3}, v{S0+4}, v{S0+5}')
    for i in range(6, 16, 4):
        a(f'v_max3_f32 v12, v12, v{S0+i}, v{S0+i+1}')
        if i + 2 < 16: a(f'v_max3_f32 v13, v13, v{S0+i+2}, v{S0+i+3}')
    a('''
v_max_f32 v12, v12, v13
v_mov_b32 v13, v12
v_permlane32_swap_b32 v12, v13
v_max_f32 v12, v12, v13
''')
    for i in range(16): a(f'v_sub_f32 v{C+i}, 0, v12')
    a(f'v_mfma_f32_32x32x16_bf16 v[{S0}:{S0+15}], v[{KK}:{KK+3}], v[{Q}:{Q+3}], v[{C}:{C+15}]')
    a(f'ds_read_b128 v[{KK}:{KK+3}], v8 offset:2048')
    a(f'ds_read_b128 v[{VA}:{VA+3}], v9')
    a('s_nop 7')

    nvm = [0]
    def wo_ld(f, reg):
        ks, c = f >> 2, f & 3
        a(f's_add_u32 s12, s13, {c*16384 + ks*1024}')
        a(f'buffer_load_dwordx4 v[{reg}:{reg+3}], v3, s[20:23], s12 offen sc1')
        nvm[0] += 1
    def wo_dma(f, ldsoff):
        ks, c = f >> 2, f & 3
        a(f's_add_u32 s10, s53, {ldsoff}')
        a('s_mov_b32 m0, s10')
        a(f's_add_u32 s12, s13, {c*16384 + ks*1024}')
        a('buffer_load_dwordx4 v3, s[20:23], s12 offen lds')
        nvm[0] += 1
    def ev_addr():
        a('''
v_and_b32 v13, 7, v2
v_add_u32 v13, s6, v13
v_lshlrev_b32 v14, 10, v13
v_lshrrev_b32 v15, 3, v2
v_lshl_add_u32 v14, v15, 4, v14
s_lshl_b32 s12, s3, 7
v_add_u32 v14, s12, v14
s_lshl_b32 s13, s3, 16
s_mul_i32 s62, s3, 28672
s_lshl_b32 s12, s5, 7
s_add_u32 s62, s62, s12
''')
        a(f's_add_u32 s13, s13, {WS_WOF}')
        a(f'global_load_dwordx4 v[{XR}:{XR+3}], v14, s[16:17]')
    xmark = [0]
    def ev_xld():
        a('s_getreg_b32 s58, hwreg(HW_REG_XCC_ID)')
        a('s_and_b32 s58, s58, 7')
        a('s_lshl_b32 s39, s4, 8')
        a(f's_add_u32 s39, s39, {WS_XT}')
        a('v_lshlrev_b32 v15, 3, v4')
        a('buffer_load_dwordx2 v[12:13], v15, s[20:23], s39 offen sc1')
        xmark[0] = nvm[0]
    def ev_xchk():
        a(f's_waitcnt vmcnt({nvm[0] - xmark[0]})')
        a("""
s_mov_b32 s38, 0x80000
M_XW:
v_cmp_eq_u32 vcc, s59, v13
s_cmp_eq_u64 vcc, -1
s_cbranch_scc1 M_XG
buffer_load_dwordx2 v[12:13], v15, s[20:23], s39 offen sc1
s_waitcnt vmcnt(0)
s_sub_u32 s38, s38, 1
s_cmp_lg_u32 s38, 0
s_cbranch_scc1 M_XW
M_XG:
v_cmp_eq_u32 vcc, s58, v12
s_cmp_eq_u64 vcc, -1
""")
        a(f's_cselect_b32 s60, {0 if FORCE_SLOW else 1}, 0')
        a('s_lshl_b32 s61, s4, 12')
        a(f's_add_u32 s61, s61, {WS_FLAG}')
    MW = 2
    def mod_a():
        a(f's_cmp_lg_u32 s3, {MW}')
        a('s_cbranch_scc1 M_MA')
        a('s_lshl_b32 s38, s5, 9')
        a(f's_add_u32 s38, s38, {WS_MODG + 8192}')
        mod_ld()
        a('M_MA:')
    def mod_ld():
        for p in range(4):
            a(f's_add_u32 s12, s38, {p*24576}')
            a(f'buffer_load_dwordx2 v[{240+2*p}:{241+2*p}], v12, s[20:23], s12 offen sc1')
    def mod_b():
        a(f's_cmp_lg_u32 s3, {MW}')
        a('s_cbranch_scc1 M_MB')
        a('s_mov_b32 s39, 0x40000')
        a('M_MW:')
        a('s_waitcnt vmcnt(0)')
        for p in range(4): a(f'v_xor_b32 v{241+2*p}, s59, v{241+2*p}')
        a('v_or3_b32 v241, v241, v243, v245')
        a('v_or_b32 v241, v241, v247')
        a('v_cmp_eq_u32 vcc, 0, v241')
        a('s_cmp_eq_u64 vcc, -1')
        a('s_cbranch_scc1 M_MG')
        mod_ld()
        a('s_sub_u32 s39, s39, 1')
        a('s_cmp_lg_u32 s39, 0')
        a('s_cbranch_scc1 M_MW')
        a('s_waitcnt vmcnt(0)')
        a('M_MG:')
        a('v_add_f32 v240, v240, v242')
        a('v_add_f32 v244, v244, v246')
        a('v_add_f32 v240, v240, v244')
        round_bf16(a, 240)
        a('s_lshr_b32 s12, s5, 3')
        a('s_cmp_lg_u32 s12, 2')
        a('s_cbranch_scc1 M_NOADD')
        a('v_add_f32 v240, 1.0, v240')
        round_bf16(a, 240)
        a('M_NOADD:')
        a('s_lshl_b32 s12, s4, 13')
        a('s_lshl_b32 s39, s5, 8')
        a('s_add_u32 s12, s12, s39')
        a(f's_add_u32 s12, s12, {WS_MODF}')
        a('v_lshlrev_b32 v241, 2, v2')
        a('buffer_store_dword v240, v241, s[20:23], s12 offen sc0 sc1')
        a('M_MB:')
        mk_[0] = nvm[0]
    mk_ = [0, 0, 0]
    def mod_c():
        a(f's_cmp_lg_u32 s3, {MW}')
        a('s_cbranch_scc1 M_MC')
        a('s_lshl_b32 s12, s4, 5')
        a('s_add_u32 s12, s12, s5')
        a('s_lshl_b32 s12, s12, 2')
        a(f's_add_u32 s12, s12, {WS_MFL}')
        a('v_mov_b32 v12, s59')
        a('v_mov_b32 v13, 0')
        a(f's_waitcnt vmcnt({nvm[0] - mk_[0]})')
        a('s_mov_b64 exec, 1')
        a('buffer_store_dword v12, v13, s[20:23], s12 offen sc0 sc1')
        a('s_mov_b64 exec, -1')
        a('M_MC:')
    def mod_d():
        a('s_lshl_b32 s38, s4, 7')
        a(f's_add_u32 s38, s38, {WS_MFL}')
        a('v_lshlrev_b32 v13, 2, v4')
        a('buffer_load_dword v12, v13, s[20:23], s38 offen sc1')
        mk_[1] = nvm[0]
    def mod_e():
        a(f's_waitcnt vmcnt({nvm[0] - mk_[1]})')
        a("""
s_mov_b32 s39, 0x80000
M_EW:
v_cmp_eq_u32 vcc, s59, v12
s_cmp_eq_u64 vcc, -1
s_cbranch_scc1 M_EG
s_sleep 2
buffer_load_dword v12, v13, s[20:23], s38 offen sc1
s_waitcnt vmcnt(0)
s_sub_u32 s39, s39, 1
s_cmp_lg_u32 s39, 0
s_cbranch_scc1 M_EW
M_EG:
s_cmp_ge_u32 s3, 6
""")
        a(f's_cselect_b32 s12, {L_GB - 6144}, {L_MODS}' if False else f's_mov_b32 s12, {L_MODS}')
        a(f's_cselect_b32 s12, {L_GB - 6144}, s12')
        a('s_add_u32 s12, s12, s63')
        a('s_mov_b32 m0, s12')
        a('s_lshl_b32 s12, s4, 13')
        a('s_add_u32 s12, s12, s63')
        a(f's_add_u32 s12, s12, {WS_MODF}')
        a('buffer_load_dwordx4 v3, s[20:23], s12 offen sc1 lds')
        mk_[2] = nvm[0]
    def prio(p, tag):
        def f():
            a('s_cmp_lt_u32 s3, 4')
            a(f's_cbranch_scc1 M_P{tag}')
            a(f's_setprio {p}')
            a(f'M_P{tag}:')
        return f
    def touch_setup():
        a('s_mul_i32 s54, s5, 57344')
        a('v_lshlrev_b32 v11, 7, v2')
        for r in (64, 68, 72):
            a(f's_and_b32 s{r+1}, s{r+1}, 0xffff')
            a(f's_mov_b32 s{r+2}, 1835008')
            a(f's_mov_b32 s{r+3}, 0x20000')
    def touch(u):
        def f():
            mat, k = u // 7, u % 7
            a(f's_cmp_lg_u32 s3, {u & 7}')
            a(f's_cbranch_scc1 M_T{u}')
            a(f's_add_u32 s55, s54, {k*8192}')
            a(f'buffer_load_dword v1, v11, s[{64+4*mat}:{67+4*mat}], s55 offen')
            a(f'M_T{u}:')
        return f
    side = {T: [] for T in range(64)}
    def gf_ld():
        a(f's_mov_b32 s15, {WS_GFL}')
        a('buffer_load_dwordx4 v[220:223], v3, s[20:23], s15 offen sc1')
    def gf_chk():
        a('s_mov_b32 s36, 0x80000')
        a('M_GW:')
        a('s_waitcnt vmcnt(0)')
        for r in (220, 221, 222, 223): a(f'v_xor_b32 v{r}, s59, v{r}')
        a("""
v_or3_b32 v220, v220, v221, v222
v_or_b32 v220, v220, v223
v_cmp_eq_u32 vcc, 0, v220
s_cmp_eq_u64 vcc, -1
s_cbranch_scc1 M_GG
s_sleep 4
""")
        gf_ld()
        a("""
s_sub_u32 s36, s36, 1
s_cmp_lg_u32 s36, 0
s_cbranch_scc1 M_GW
s_waitcnt vmcnt(0)
M_GG:
""")
        a('s_lshl_b32 s61, s4, 12')
        a(f's_add_u32 s61, s61, {WS_FLAG}')
    a('v_lshlrev_b32 v12, 3, v2')
    gf_ld()
    side[2].append(gf_chk)
    for i in range(2, 16): side[min(2 + (i-2)//2, 8)].append(lambda i=i: dma(i))
    side[5].append('vbar6')
    side[11].append('vbar')
    A0, MODT = E_('A0', 12), E_('MODT', 17)
    side[9].append(ev_addr)
    side[10].append(touch_setup)
    def wf_ld():
        a(f's_mov_b32 s15, {WS_WFL}')
        a('buffer_load_dwordx2 v[216:217], v12, s[20:23], s15 offen sc1')
    def wf_chk():
        a("""
s_mov_b32 s36, 0x80000
M_WW:
v_cmp_eq_u32 vcc, s59, v216
v_cmp_eq_u32 s[34:35], s59, v217
s_and_b64 vcc, vcc, s[34:35]
s_cmp_eq_u64 vcc, -1
s_cbranch_scc1 M_WG
s_sleep 4
buffer_load_dwordx2 v[216:217], v12, s[20:23], s15 offen sc1
s_waitcnt vmcnt(0)
s_sub_u32 s36, s36, 1
s_cmp_lg_u32 s36, 0
s_cbranch_scc1 M_WW
M_WG:
""")
    side[9].append(wf_ld)
    side[12].append(wf_chk)
    def bump():
        a('s_lshl_b32 s12, s2, 3')
        a('s_add_u32 s12, s12, s3')
        a('s_cmp_lg_u32 s12, 1')
        a('s_cbranch_scc1 M_NB')
        a('v_mov_b32 v220, s59')
        a('v_mov_b32 v221, 0')
        a(f's_mov_b32 s12, {WS_EPOCH}')
        a('s_mov_b64 exec, 1')
        a('buffer_store_dword v220, v221, s[20:23], s12 offen')
        a('s_mov_b64 exec, -1')
        a('M_NB:')
    side[10].append(bump)
    side[9].append(mod_a)
    side[12].append(mod_b)
    side[15].append(mod_c)
    side[E_('B0', 34) - 8].append(mod_d)
    side[E_('B0', 34) - 5].append(mod_e)
    NREG = 39
    treg = {f: WO + 4*f for f in range(37)}
    treg[37], treg[38] = P, P + 4
    NLDS = E_('NLDS', 4)
    def wo_park(j):
        f = NREG + j
        ks, c = f >> 2, f & 3
        if j == 0:
            a('s_lshl_b32 s10, s63, 1')
            a(f's_add_u32 s10, s10, {L_ONES}')
        else: a(f's_add_u32 s10, s63, {98304 + (j-1)*8192}')
        a('s_mov_b32 m0, s10')
        a(f's_add_u32 s12, s13, {c*16384 + ks*1024}')
        a('buffer_load_dwordx4 v3, s[20:23], s12 offen sc1 lds')
        nvm[0] += 1
    side[WOSTART].append(lambda: wo_park(0))
    if NLDS > 1:
        side[60].append('bar')
        for j in range(1, NLDS): side[60 + j].append(lambda j=j: wo_park(j))
    WOEND = E_('WOEND', 33)
    for f in range(NREG): side[WOSTART + f*(WOEND - WOSTART)//NREG].append(lambda f=f: wo_ld(f, treg[f]))
    order = []
    def w1setup():
        a("""
v_lshrrev_b32 v7, 3, v2
v_mul_u32_u24 v0, 3584, v7
v_and_b32 v15, 7, v2
v_and_b32 v7, 2, v7
v_xor_b32 v15, v15, v7
v_lshl_add_u32 v0, v15, 4, v0
v_xor_b32 v7, 64, v0
s_mov_b32 s44, s64
s_mov_b32 s45, s65
s_mov_b32 s47, 0x20000
s_mov_b32 s48, s68
s_mov_b32 s49, s69
s_mov_b32 s51, 0x20000
s_cmp_ge_u32 s5, 28
s_cselect_b32 s46, 0, s66
s_cselect_b32 s50, 0, s70
""")
    def w1dma(mat, g, fl=''):
        a(f's_add_u32 s36, s63, {mat*65536 + g*8192}')
        a('s_mov_b32 m0, s36')
        a(f's_add_u32 s37, s62, {g*8*28672}')
        a(f'buffer_load_dwordx4 v{7 if mat else 0}, s[{44+4*mat}:{47+4*mat}], s37 offen {fl} lds')
        order.append(('d', mat, g)); nvm[0] += 1
    B0 = E_('B0', 34)
    side[B0 - 2].append(w1setup)
    side[B0 - 1].append('mbar')
    for g in range(12):
        T = B0 + g*(E_('BEND', 58) - B0)//12
        if g == 8:
            assert T >= 50
            side[T - 1].append('bar')
        side[T].append(lambda g=g: w1dma(g >> 3, g & 7, W1F))
    def tch(tag, w, srdr, base_expr):
        def f():
            a(f's_cmp_lg_u32 s3, {w}')
            a(f's_cbranch_scc1 M_T{tag}')
            for x in base_expr: a(x)
            a(f'buffer_load_dword v1, v11, s[{srdr}:{srdr+3}], s55 offen')
            a(f'M_T{tag}:')
        return f
    if 'm' in TCH:
        side[E_('TG', 20)].append(tch('g', 5, 64, ['s_mul_i32 s55, s2, 7168']))
        side[E_('TG', 20) + 3].append(tch('u', 6, 68, ['s_mul_i32 s55, s2, 7168']))
    if 'u' in TCH:
        for k in range(4):
            side[E_('TU0', 40) + E_('TUS', 5)*k].append(tch(f'v{k}', k, 68, ['s_mul_i32 s55, s5, 28672', f's_add_u32 s55, s55, {917504 + min(k*8192, 28672-8192)}']))
    if 'd' in TCH:
        for k in range(7):
            side[E_('TD0', 20) + 3*k].append(tch(f'w{k}', k, 72, [f's_add_u32 s55, s54, {k*8192}']))
    def touch_wd():
        a('s_cmp_lg_u32 s3, 7')
        a('s_cbranch_scc1 M_TD')
        a('s_mul_i32 s55, s2, 7168')
        a('buffer_load_dword v1, v11, s[72:75], s55 offen')
        a('M_TD:')
    side[E_('TWD', 37)].append(touch_wd)
    for k in range(2):
        side[E_('TO', 12)].append(tch(f'o{k}', k, 20, ['s_lshl_b32 s55, s5, 14', f's_add_u32 s55, s55, {WS_WOF + k*8192}']))
    def preown():
        a(f'global_store_dwordx4 v14, v[{Q}:{Q+3}], s[56:57]')
        nvm[0] += 1
    def preown2():
        a("""
s_lshl_b32 s36, s4, 3
s_add_u32 s36, s36, s3
s_mul_i32 s36, s36, 0x1c000
s_min_u32 s37, s5, 27
s_lshl_b32 s37, s37, 12
s_add_u32 s36, s36, s37
""")
        a(f's_add_u32 s36, s36, {WS_ACTF}')
        if 'L' in PRE:
            a('v_lshlrev_b32 v13, 6, v2')
            a(f'buffer_load_dword v1, v13, s[20:23], s36 offen')
            nvm[0] += 1
        else:
            a('s_cmp_ge_u32 s5, 28')
            a('s_cbranch_scc1 M_NPO')
            for c in range(4): a(f'buffer_store_dwordx4 v[{Q}:{Q+3}], v3, s[20:23], s36 offen offset:{c*1024}')
            a('M_NPO:')
    if 'h' in PRE: side[E_('PREH', 35)].append(preown)
    def act_touch(w):
        def f():
            a(f's_cmp_lg_u32 s3, {w}')
            a(f's_cbranch_scc1 M_AT{w}')
            a("""
s_lshl_b32 s36, s4, 3
s_add_u32 s36, s36, s3
s_mul_i32 s36, s36, 0x1c000
s_min_u32 s37, s5, 27
s_lshl_b32 s37, s37, 12
s_add_u32 s36, s36, s37
s_mov_b32 exec_hi, 0
""")
            a(f's_add_u32 s36, s36, {WS_ACTF}')
            a(f'buffer_load_dword v1, v11, s[20:23], s36 offen {ATF}')
            a('s_mov_b64 exec, -1')
            a(f'M_AT{w}:')
        return f
    if 'a' in PRE:
        for w in range(8): side[E_('AT0', 18) + w*E_('ATS', 2)].append(act_touch(w))
    for T in range(0, 64, PRIO_PERIOD):
        side[T].insert(0, prio(1, f'a{T}'))
        side[T + PRIO_HI].insert(0, prio(0, f'b{T}'))
    SK = os.environ.get('SK', '')
    def kind(f):
        if isinstance(f, str): return 'b' if f == 'bar' else ''
        q = getattr(f, '__qualname__', '')
        src = f.__code__.co_names + f.__code__.co_freevars
        if 'modld' in q or 'ev_mod' in q: return 'm'
        if 'wo_ld' in src: return 'w'
        if 'w1dma' in src: return 'd'
        if 'preown' in q: return 'p'
        if 'tch' in q or 'touch_wd' in q or 'act_touch' in q: return 't'
        return ''
    for T in side: side[T] = [f for f in side[T] if not (kind(f) and kind(f) in SK)]
    LT = [int(x) for x in os.environ.get('LT', '2,5,11,20,33').split(',')]
    for T in range(64):
        tile(a, T & 7, [x for x in side[T] if not isinstance(x, str)])
        if 'vbar' in side[T]: a('s_waitcnt vmcnt(0)')
        if 'vbar6' in side[T]: a('s_waitcnt vmcnt(6)')
        if 'mbar' in side[T]:
            a(f's_waitcnt vmcnt({nvm[0] - mk_[2]})')
            a('s_barrier')
        if 'vbar' in side[T] or 'bar' in side[T] or 'vbar6' in side[T]: a('s_barrier')
        if 'l' in DIAG and T in LT: stamp(a, 6 + LT.index(T))

    if 'F' not in DIAG: stamp(a, 5)
    a('s_setprio 0')
    a(f'v_cvt_pk_bf16_f32 v{S1+7}, v{S1+14}, v{S1+15}')
    a('s_waitcnt lgkmcnt(0)')
    a(f'v_mfma_f32_32x32x16_bf16 v[{O}:{O+15}], v[{VB}:{VB+3}], v[{S1+4}:{S1+7}], v[{O}:{O+15}]')
    a(f'v_add_f32 v12, |v{O}|, |v{O+1}|')
    a(f'v_add_f32 v13, |v{O+2}|, |v{O+3}|')
    a(f'v_add_f32 v12, v12, |v{O+4}|')
    a(f'v_add_f32 v13, v13, |v{O+5}|')
    a(f'v_add_f32 v12, v12, |v{O+6}|')
    a(f'v_add_f32 v13, v13, |v{O+7}|')
    a(f'v_add_f32 v12, v12, v{O+8}')
    a('v_add_f32 v12, v12, v13')
    a('s_mov_b32 s12, 0x7e800000')
    a('v_cmp_gt_f32 vcc, s12, v12')
    a('s_cmp_eq_u64 vcc, -1')
    a('s_cbranch_scc0 M_SLOW')
    a('M_FIN:')
    ACC = S1
    ring = [KK, VA, VB, Q]
    a(f'v_rcp_f32 v12, v{O+8}')
    for i in range(8): a(f'v_mul_f32 v{O+i}, v{O+i}, v12')
    for i in range(4): a(f'v_cvt_pk_bf16_f32 v{S1+i}, v{O+2*i}, v{O+2*i+1}')
    a('s_mul_i32 s12, s3, 1056')
    a(f's_add_u32 s12, s12, {L_OX}')
    a('v_add_u32 v12, s12, v6')
    a(f'ds_write_b128 v12, v[{S1}:{S1+3}]')
    late = [C, C+4, C+8, C+12, S0, S0+4, S0+8, S0+12, O, O+4, O+8, O+12]
    freg = dict(treg)
    nxt = NREG + NLDS
    order.clear()
    a("""
v_and_b32 v13, 7, v2
v_mul_u32_u24 v13, 1056, v13
v_lshrrev_b32 v15, 4, v2
v_lshl_add_u32 v13, v15, 4, v13
s_lshl_b32 s10, s63, 1
""")
    a(f'v_add_u32 v13, {L_OX}, v13')
    a(f's_add_u32 s10, s10, {L_ONES}')
    a('v_add_u32 v8, s10, v3')
    a('s_add_u32 s10, s63, 98304')
    a('v_add_u32 v9, s10, v3')
    NB4 = E_('NB4', 12)
    for r in late[:NB4]:
        freg[nxt] = r; wo_ld(nxt, r); order.append(nxt); nxt += 1
    if E_('EP', 1): prio(1, 'e1')()
    a('s_waitcnt lgkmcnt(0)')
    a('s_barrier')
    if 'e' in DIAG: stamp(a, 1)
    lg = []
    def lrd_b(ks):
        a(f'ds_read_b128 v[{ring[ks&3]}:{ring[ks&3]+3}], v13 offset:{64*ks}'); lg.append(('b', ks))
    for ks in range(4): lrd_b(ks)
    pool = late[NB4:]
    w1q = [(1, g) for g in range(4, 8)]
    nl = 0
    for ks in range(16):
        br = ring[ks & 3]
        for c in range(4):
            f = 4*ks + c
            w = []
            need = [lg.index(('b', ks))] if c == 0 else []
            if ('w', f) in lg: need.append(lg.index(('w', f)))
            if f == 30: need.append(lg.index(('w', NREG + NLDS - 1)))
            if need: w.append(f'lgkmcnt({len(lg) - max(need) - 1})')
            if f in order: w.append(f'vmcnt({len(order) - order.index(f) - 1})')
            elif f == 0: w.append(f'vmcnt({len(order)})')
            if w: a('s_waitcnt ' + ' '.join(w))
            r = freg[f]
            cc = '0' if ks == 0 else f'v[{ACC+4*c}:{ACC+4*c+3}]'
            a(f'v_mfma_f32_16x16x32_bf16 v[{ACC+4*c}:{ACC+4*c+3}], v[{r}:{r+3}], v[{br}:{br+3}], {cc}')
            if f < 19: pool.append(r)
            if E_('EP', 1) and f == E_('EPF', 40): a('s_setprio 0')
            if nxt < 64:
                r2 = pool.pop(0)
                freg[nxt] = r2; wo_ld(nxt, r2); order.append(nxt); nxt += 1
            elif nl < NLDS:
                r2 = pool.pop(0); g_ = NREG + nl
                a(f'ds_read_b128 v[{r2}:{r2+3}], v{8 if nl == 0 else 9} offset:{0 if nl == 0 else (nl-1)*8192}')
                lg.append(('w', g_)); freg[g_] = r2; nl += 1
            elif w1q and f >= 30: w1dma(*w1q.pop(0))
        if ks + 4 < 16: lrd_b(ks + 4)
    if 'e' in DIAG: stamp(a, 2)
    G, SB, CB, X = 184, 192, 200, 208
    a('''
v_lshrrev_b32 v15, 3, v2
v_lshlrev_b32 v15, 5, v15
s_lshl_b32 s12, s3, 8
''')
    a(f's_add_u32 s12, s12, {L_MODS}')
    a('v_add_u32 v15, s12, v15')
    for i, r in enumerate((G, SB, CB)):
        a(f'ds_read_b128 v[{r}:{r+3}], v15 offset:{2048*i}')
        a(f'ds_read_b128 v[{r+4}:{r+7}], v15 offset:{2048*i+16}')
    unpack(a, X, XR, 4)
    a('v_and_b32 v12, 8, v2')
    a('v_cmp_eq_u32 s[34:35], 0, v12')
    for i in range(8): a(f'v_cndmask_b32 v{ACC+i}, v{ACC+8+i}, v{ACC+i}, s[34:35]')
    a('s_waitcnt lgkmcnt(0)')
    for i in range(8): a(f'v_fmac_f32 v{X+i}, v{ACC+i}, v{G+i}')
    for i in range(4): a(f'v_cvt_pk_bf16_f32 v{XR+i}, v{X+2*i}, v{X+2*i+1}')
    a(f'global_store_dwordx4 v14, v[{XR}:{XR+3}], s[56:57]')
    unpack(a, X, XR, 4)
    def red(r, t):
        a(f'v_add_f32_dpp v{r}, v{r}, v{r} row_ror:8 row_mask:0xf bank_mask:0xf')
        a(f'v_mov_b32 v{t}, v{r}')
        a(f'v_permlane16_swap_b32 v{r}, v{t}')
        a(f'v_add_f32 v{r}, v{r}, v{t}')
        a(f'v_mov_b32 v{t}, v{r}')
        a(f'v_permlane32_swap_b32 v{r}, v{t}')
        a(f'v_add_f32 v{r}, v{r}, v{t}')
    M, D, ST = 216, 220, 228
    a(f'v_add_f32 v{M}, v{X}, v{X+1}')
    a(f'v_add_f32 v{M+1}, v{X+2}, v{X+3}')
    a(f'v_add_f32 v{M+2}, v{X+4}, v{X+5}')
    a(f'v_add_f32 v{M+3}, v{X+6}, v{X+7}')
    a(f'v_add_f32 v{M}, v{M}, v{M+1}')
    a(f'v_add_f32 v{M+2}, v{M+2}, v{M+3}')
    a(f'v_add_f32 v{M}, v{M}, v{M+2}')
    red(M, M+2)
    a(f'v_mul_f32 v{M}, {f32(1/64)}, v{M}')
    for i in range(8): a(f'v_sub_f32 v{D+i}, v{X+i}, v{M}')
    a(f'v_mul_f32 v{M+1}, v{D}, v{D}')
    a(f'v_mul_f32 v{M+2}, v{D+1}, v{D+1}')
    for i in range(2, 8): a(f'v_fmac_f32 v{M+1+(i&1)}, v{D+i}, v{D+i}')
    a(f'v_add_f32 v{M+1}, v{M+1}, v{M+2}')
    red(M+1, M+2)
    a('''
v_and_b32 v12, 7, v2
v_lshlrev_b32 v12, 6, v12
''')
    a(f'v_add_u32 v12, {L_STAT}, v12')
    a('s_lshl_b32 s12, s3, 3')
    a('v_add_u32 v13, s12, v12')
    a('s_mov_b64 exec, 0xff')
    a(f'ds_write_b64 v13, v[{M}:{M+1}]')
    a('s_mov_b64 exec, -1')
    a('''
s_lshr_b32 s12, s6, 5
s_lshl_b32 s12, s12, 15
s_and_b32 s14, s6, 31
s_lshl_b32 s14, s14, 4
s_add_u32 s12, s12, s14
s_lshl_b32 s14, s3, 12
s_add_u32 s12, s12, s14
''')
    a(f's_add_u32 s12, s12, {H2B}')
    a('''
v_lshrrev_b32 v13, 3, v2
v_lshlrev_b32 v13, 9, v13
v_and_b32 v15, 7, v2
v_lshl_add_u32 v13, v15, 4, v13
s_waitcnt lgkmcnt(0)
s_barrier
''')
    for i in range(4): a(f'ds_read_b128 v[{ST+4*i}:{ST+4*i+3}], v12 offset:{16*i}')
    a('s_waitcnt lgkmcnt(0)')
    a(f'v_add_f32 v{M}, v{ST}, v{ST+2}')
    a(f'v_add_f32 v{M+1}, v{ST+1}, v{ST+3}')
    for i in range(2, 8):
        a(f'v_add_f32 v{M}, v{M}, v{ST+2*i}')
        a(f'v_add_f32 v{M+1}, v{M+1}, v{ST+2*i+1}')
    a(f'v_mul_f32 v{M}, {f32(1/8)}, v{M}')
    for i in range(8): a(f'v_sub_f32 v{ST+2*i}, v{ST+2*i}, v{M}')
    a(f'v_mul_f32 v{M+2}, v{ST}, v{ST}')
    for i in range(1, 8): a(f'v_fmac_f32 v{M+2}, v{ST+2*i}, v{ST+2*i}')
    a(f'v_mul_f32 v{M+1}, {f32(1/512)}, v{M+1}')
    a(f'v_fmac_f32 v{M+1}, {f32(1/8)}, v{M+2}')
    a(f'v_add_f32 v{M+1}, {f32(1e-5)}, v{M+1}')
    a(f'v_rsq_f32 v{M+1}, v{M+1}')
    for i in range(8): a(f'v_sub_f32 v{X+i}, v{X+i}, v{M}')
    for i in range(8): a(f'v_mul_f32 v{CB+i}, v{CB+i}, v{M+1}')
    for i in range(8): a(f'v_fmac_f32 v{SB+i}, v{X+i}, v{CB+i}')
    for i in range(4): a(f'v_cvt_pk_bf16_f32 v{D+i}, v{SB+2*i}, v{SB+2*i+1}')
    a(f'buffer_store_dwordx4 v[{D}:{D+3}], v13, s[20:23], s12 offen {STH}')
    stamp(a, 6) if 'l' not in DIAG and 'F' not in DIAG else None
    a('''
s_lshl_b32 s12, s5, 3
s_add_u32 s12, s12, s3
s_lshl_b32 s12, s12, 2
v_mov_b32 v6, s12
v_mov_b32 v7, s59
v_bfe_u32 v16, v2, 4, 1
v_lshlrev_b32 v12, 16, v16
v_lshrrev_b32 v17, 5, v2
v_lshl_add_u32 v12, v17, 10, v12
v_bfe_u32 v17, v2, 2, 2
v_lshl_add_u32 v12, v17, 7, v12
v_bfe_u32 v13, v2, 1, 1
v_lshl_add_u32 v12, v13, 3, v12
v_and_b32 v13, 1, v2
v_and_b32 v17, 2, v17
v_xor_b32 v13, v13, v17
v_lshlrev_b32 v16, 2, v16
v_xor_b32 v13, v13, v16
v_lshl_add_u32 v8, v13, 4, v12
v_xor_b32 v9, 32, v8
v_xor_b32 v10, 64, v8
v_xor_b32 v11, 0x60, v8
s_lshl_b32 s11, s4, 3
s_add_u32 s11, s11, s3
s_mul_i32 s14, s11, 0x1c000
s_lshl_b32 s11, s11, 15
s_lshl_b32 s13, s5, 12
s_add_u32 s14, s14, s13
v_and_b32 v12, 31, v2
s_lshl_b32 s13, s3, 7
v_lshl_add_u32 v12, v12, 2, s13
''')
    a(f'v_mov_b32 v15, {f32(K1C)}')
    a(f's_mov_b32 s42, {f32(K1C)}')
    a(f's_mov_b32 s43, {f32(K0C)}')
    a(f's_add_u32 s11, s11, {H2B}')
    a(f's_add_u32 s14, s14, {WS_ACTF}')
    publish(a, 1, 6, 7, 's61')
    GB = 56
    a("""
s_and_b32 s15, s5, 7
s_lshl_b32 s17, s15, 1
s_and_b32 s6, s3, 1
s_add_u32 s17, s17, s6
s_lshl_b32 s17, s17, 2
s_lshr_b32 s8, s3, 2
s_add_u32 s17, s17, s8
s_lshl_b32 s17, s17, 4
s_lshl_b32 s38, s17, 1
v_lshrrev_b32 v16, 5, v2
""")
    a(f's_add_u32 s38, s38, {L_GB}')
    a('v_lshl_add_u32 v16, v16, 6, s38')
    a(f'ds_read_b128 v[{GB}:{GB+3}], v16')
    a(f'ds_read_b128 v[{GB+4}:{GB+7}], v16 offset:16')
    a("""
v_lshrrev_b32 v16, 3, v2
v_and_b32 v17, 7, v2
v_and_b32 v18, 2, v16
v_lshlrev_b32 v18, 1, v18
v_xor_b32 v17, v17, v18
v_lshlrev_b32 v14, 10, v16
v_lshl_add_u32 v14, v17, 4, v14
s_lshl_b32 s10, s15, 7
s_lshr_b32 s9, s5, 3
s_mul_i32 s13, s9, 7
s_mul_i32 s16, s15, 3
s_add_u32 s13, s13, s16
s_add_u32 s13, s13, s3
s_cmp_ge_u32 s13, 28
s_cselect_b32 s38, 28, 0
s_sub_u32 s13, s13, s38
s_mov_b32 s39, s13
s_lshl_b32 s41, s3, 11
""")
    WSLOT = [131072, 147456, 0, 16384, 65536, 81920]
    ASLOT = [32768, 49152, 98304, 114688]
    def nxt_stage(r):
        a(f's_add_u32 s{r}, s{r}, 8')
        a(f's_sub_u32 s38, s{r}, 28')
        a(f's_cmp_ge_u32 s{r}, 28')
        a(f's_cselect_b32 s{r}, s38, s{r}')
    def ks_of(s, r, dst):
        a(f's_lshl_b32 s{dst}, s{r}, 2')
        c0 = (8*s)//28
        if c0: a(f's_add_u32 s{dst}, s{dst}, {c0}')
        if s in (3, 10): a(f's_add_u32 s{dst}, s{dst}, s8')
    def wd_dma(s, k):
        if k == 0:
            ks_of(s, 13, 18)
            a('s_lshl_b32 s18, s18, 14')
            a('s_add_u32 s18, s18, s10')
        a(f's_add_u32 s16, s41, {WSLOT[s % 6] + k*1024}')
        a('s_mov_b32 m0, s16')
        if k: a('s_add_u32 s18, s18, 0x2000')
        a('buffer_load_dwordx4 v14, s[72:75], s18 offen lds')
        if k and s < 13: nxt_stage(13)
    a("""
s_lshl_b32 s12, s3, 5
s_add_u32 s12, s12, s5
s_lshl_b32 s12, s12, 2
s_add_u32 s12, s12, 1024
v_mov_b32 v6, s12
""")
    a('s_cmp_ge_u32 s5, 28')
    a('s_cbranch_scc1 M_SPARE')
    poll(a, 1, 12, 13, 's61', 1)
    stamp(a, 7) if 'l' not in DIAG and 'F' not in DIAG else None

    BREG, AC1, AR, NR, LOOK = 128, 64, 32, 6, 4
    KS = E_('KS', 20)
    def rd(c, ks, reg):
        a(f'ds_read_b64_tr_b16 v[{reg}:{reg+1}], v{8+c} offset:{ks*2048}')
        a(f'ds_read_b64_tr_b16 v[{reg+2}:{reg+3}], v{8+c} offset:{ks*2048+512}')
    def store(c, reg):
        a(f'buffer_store_dwordx4 v[{reg}:{reg+3}], v3, s[20:23], s14 offen offset:{c*1024} {STA}')
    def epi(c):
        o = []
        for i in range(4): o += gelu_ops(AC1+16*c, AC1+16*c+8, 16 + 2*(i & 1), 24 + 4*(c & 1), i)
        o.append(('STORE', c))
        return o
    def emit(o):
        if isinstance(o, tuple): store(o[1], 24 + 4*(o[1] & 1))
        else: a(o)
    def f2_setup():
        a("""
s_bfe_u32 s7, s3, 0x10001
v_lshrrev_b32 v16, 5, v2
v_lshlrev_b32 v8, 10, v16
v_bfe_u32 v17, v2, 2, 2
v_lshl_add_u32 v8, v17, 7, v8
v_bfe_u32 v5, v2, 1, 1
v_lshl_add_u32 v8, v5, 3, v8
v_and_b32 v5, 1, v2
v_lshlrev_b32 v5, 1, v5
v_bfe_u32 v9, v2, 4, 1
v_add_u32 v5, v5, v9
v_and_b32 v17, 2, v17
v_lshl_add_u32 v5, v17, 1, v5
s_lshl_b32 s38, s6, 2
v_xor_b32 v5, s38, v5
v_lshl_add_u32 v8, v5, 4, v8
s_lshl_b32 s38, s8, 13
v_add_u32 v8, s38, v8
v_add_u32 v9, 0x10000, v8
v_add_u32 v13, 0x20000, v8
s_lshl_b32 s38, s7, 13
s_lshl_b32 s40, s8, 12
s_add_u32 s38, s38, s40
v_add_u32 v10, s38, v3
v_add_u32 v11, 0x10000, v10
s_lshl_b32 s40, s4, 2
s_add_u32 s40, s40, s9
s_mul_i32 s11, s40, 0x38000
""")
        a(f's_add_u32 s11, s11, {WS_ACTF}')
        a("""
s_lshl_b32 s40, s40, 1
s_add_u32 s40, s40, s7
s_lshl_b32 s40, s40, 15
s_add_u32 s40, s40, s17
v_and_b32 v12, 31, v2
v_min_u32 v5, 27, v12
v_lshlrev_b32 v12, 10, v12
v_lshl_add_u32 v12, v16, 5, v12
v_add_u32 v12, s40, v12
s_lshl_b32 s38, s3, 11
v_add_u32 v4, s38, v3
s_xor_b32 s38, s38, 0x2000
v_add_u32 v15, s38, v3
v_lshl_add_u32 v5, v16, 5, v5
s_lshl_b32 s38, s9, 8
s_add_u32 s38, s38, 1024
v_lshl_add_u32 v5, v5, 2, s38
""")
    SPAN = E_('F1SPAN', 52)
    def tail(c):
        A3 = AC1 + 16*c
        out = 24 + 4*(c & 1)
        if E_('PK', 0):
            G_, U_, T_ = A3, A3 + 8, 16
            pr = lambda b, i: f'v[{b+2*i}:{b+2*i+1}]'
            for i in range(4): a(f'v_pk_mul_f32 {pr(T_,i)}, {pr(G_,i)}, {pr(G_,i)}')
            for i in range(4): a(f'v_pk_fma_f32 {pr(T_,i)}, {pr(T_,i)}, s[42:43], s[42:43] op_sel:[0,0,1] op_sel_hi:[1,0,1]')
            for i in range(4): a(f'v_pk_mul_f32 {pr(T_,i)}, {pr(T_,i)}, {pr(G_,i)}')
            for i in range(8): a(f'v_exp_f32 v{T_+i}, v{T_+i}')
            for i in range(4): a(f'v_pk_mul_f32 {pr(G_,i)}, {pr(G_,i)}, {pr(U_,i)}')
            for i in range(4): a(f'v_pk_add_f32 {pr(T_,i)}, {pr(T_,i)}, 1.0 op_sel_hi:[1,0]')
            for i in range(8): a(f'v_rcp_f32 v{T_+i}, v{T_+i}')
            for i in range(4): a(f'v_pk_mul_f32 {pr(G_,i)}, {pr(G_,i)}, {pr(T_,i)}')
            for i in range(4): a(f'v_cvt_pk_bf16_f32 v{out+i}, v{G_+2*i}, v{G_+2*i+1}')
        else:
            seqs = [[o for o in gelu_ops(A3, A3+8, 16 + 2*i, out, i) if o != 's_nop 0'] for i in range(4)]
            for k in range(0, len(seqs[0]), 2):
                for s_ in seqs:
                    for o in s_[k:k+2]: a(o)
        store(c, out)
    seq = [(c, ks) for ks in range(16) for c in range(4)] + [(c, ks) for c in range(4) for ks in range(16, 32)]
    def step(n, wv=''):
        c, ks = seq[n]
        if n + LOOK < len(seq): rd(*seq[n + LOOK], AR + 4*((n + LOOK) % NR))
        a(f's_waitcnt lgkmcnt({2*(min(len(seq)-1, n+LOOK) - n)}){wv}')
        cc = '0' if ks == 0 else f'v[{AC1+16*c}:{AC1+16*c+15}]'
        r = AR + 4*(n % NR)
        a(f'v_mfma_f32_32x32x16_bf16 v[{AC1+16*c}:{AC1+16*c+15}], v[{r}:{r+3}], v[{BREG+4*ks}:{BREG+4*ks+3}], {cc}')
        if 'f' in DIAG and n in (0, 32, 63, 96, 127): stamp(a, 1 + (0, 32, 63, 96, 127).index(n))
    def half1(young):
        vm = []
        def bld(ks):
            if ks & 3 == 0 and ks: a('s_add_u32 s11, s11, 4096')
            a(f'buffer_load_dwordx4 v[{BREG+4*ks}:{BREG+4*ks+3}], v3, s[20:23], s11 offen offset:{(ks&3)*1024} {LD}')
            vm.append(ks)
        if young:
            a('s_waitcnt lgkmcnt(0)')
            a('s_barrier')
            a('s_barrier')
            for ks in range(16): bld(ks)
        else:
            for ks in range(NL0): bld(ks)
            a('s_waitcnt lgkmcnt(0)')
            a('s_barrier')
        for n in range(LOOK): rd(*seq[n], AR + 4*(n % NR))
        for n in range(64):
            c, ks = seq[n]
            if not young and len(vm) < 16:
                bld(len(vm))
                if len(vm) == 16: a('s_barrier')
            if young and n >= 64 - 16*PY and (64 - n) % PY == 0: bld(len(vm))
            if not young and n >= LB0 and len(vm) < 32 and n % 4 == 2: bld(len(vm))
            step(n, f' vmcnt({len(vm) - vm.index(ks) - 1})' if c == 0 else '')
        while len(vm) < 32: bld(len(vm))
    NL0, PY, LB0 = E_('NL0', 10), E_('PY', 2), E_('LB0', 40)
    a('s_cmp_ge_u32 s3, 4')
    a('s_cbranch_scc1 M_F1Y')
    half1(False)
    a('s_branch M_F1J')
    a('M_F1Y:')
    half1(True)
    a('M_F1J:')
    a('s_barrier')
    if 'e' in DIAG: stamp(a, 3)
    wdq = [(s_, k) for s_ in range(6) for k in range(2)]
    nd = 0
    WDN = E_('WDN', 70)
    gops = []
    for n in range(64, 128):
        step(n, f' vmcnt({79 - n + nd})' if n < 80 else '')
        if wdq and n >= WDN and (n - WDN) % 3 == 0: wd_dma(*wdq.pop(0)); nd += 1
        GI = E_('GI', 0)
        if n == 95: nd95 = nd
        if n == E_('EFN', 109): flag_only(a, '2e', 6, 7, 's61', 1024, nd - nd95)
        if GI == 0:
            if n % 16 == 15: tail(seq[n][0])
        else:
            if n % 16 == 2 and n > 80:
                c_ = seq[n][0] - 1
                A3 = AC1 + 16*c_; out = 24 + 4*(c_ & 1)
                sq = [[o for o in gelu_ops(A3, A3+8, 16 + 2*i, out, i) if o != 's_nop 0'] for i in range(4)]
                for k in range(0, len(sq[0]), 2):
                    for s2 in sq: gops.extend(s2[k:k+2])
                gops.append(('STORE', c_))
            for _ in range(E_('GPER', 5)):
                if gops: emit(gops.pop(0))
            if n == 127:
                while gops: emit(gops.pop(0))
                tail(3)
    assert not wdq
    stamp(a, 8) if 'l' not in DIAG and 'F' not in DIAG else None
    f2_setup()
    assert 'sc1' in STA
    a('s_waitcnt vmcnt(2)')
    a('s_branch M_F2')
    a('M_SPARE:')
    a('s_waitcnt vmcnt(0) lgkmcnt(0)')
    a('s_barrier')
    a('''
s_sub_u32 s7, s5, 28
s_lshl_b32 s7, s7, 3
s_add_u32 s7, s7, s3
s_lshr_b32 s36, s7, 2
s_lshl_b32 s36, s36, 16
s_and_b32 s37, s7, 3
s_lshl_b32 s37, s37, 13
s_add_u32 s36, s36, s37
s_add_u32 s36, s36, 0x8000
v_lshlrev_b32 v4, 7, v2
s_lshr_b32 s37, s7, 1
s_lshl_b32 s37, s37, 16
s_and_b32 s7, s7, 1
s_lshl_b32 s7, s7, 13
s_add_u32 s37, s37, s7
''')
    SPO = os.environ.get('SPO', '231')
    def t23():
        for i in range(4):
            a(f'buffer_load_dword v{16+i}, v4, s[72:75], s36 offen')
            if i < 3: a('s_add_u32 s36, s36, 0x80000')
    def t1(c):
        a(f's_add_u32 s7, s37, {c*16384}')
        for i in range(2):
            a(f'buffer_load_dword v{20+2*c+i}, v4, s[72:75], s7 offen')
            if i < 1: a('s_add_u32 s7, s7, 0x100000')
    for ch in SPO:
        if ch == '2': t23()
        if ch == '1': t1(1)
        if ch == '0': t1(0)
    for s_ in range(6):
        for k in range(2): wd_dma(s_, k)
    f2_setup()
    a('s_waitcnt vmcnt(0)')

    a('M_F2:')
    AC2, AF, BF, X2 = 16, 32, 64, 80
    a('s_cmp_lg_u32 s3, 0')
    a('s_cbranch_scc1 M_NP2')
    poll(a, 2, 5, 16, 's61', 2)
    a('M_NP2:')
    a('s_barrier')
    stamp(a, 9) if 'l' not in DIAG and 'F' not in DIAG else None
    vm = []
    def issue_a(s_):
        ks_of(s_, 39, 19)
        a('s_lshl_b32 s19, s19, 10')
        a('s_add_u32 s19, s19, s11')
        for k in range(2):
            a(f's_add_u32 s16, s63, {ASLOT[s_ & 3] + k*8192}')
            a('s_mov_b32 m0, s16')
            if k: a('s_add_u32 s19, s19, 0x1c000')
            a(f'buffer_load_dwordx4 v3, s[20:23], s19 offen {LD} lds')
        vm.extend([s_]*2)
        if s_ < 13: nxt_stage(39)
    for s_ in range(4): issue_a(s_)
    a(f'global_load_dwordx4 v[{X2}:{X2+3}], v12, s[56:57] {LD}')
    vm.append(3)
    flag_only(a, 2, 6, 7, 's61', 0, len(vm))
    vm.append(99)
    for s_ in range(14):
        if s_ == 4:
            a('s_cmp_lg_u32 s3, 0')
            a('s_cbranch_scc1 M_NP3')
            a(f's_waitcnt vmcnt({len(vm) - 1 - vm.index(-1)})')
            a('v_cmp_eq_u32 vcc, s59, v6')
            a('s_cmp_eq_u64 vcc, -1')
            a('s_cbranch_scc1 M_G3')
            poll(a, 3, 5, 6, 's61', 3)
            a('M_NP3:')
        a(f's_waitcnt vmcnt({len(vm) - 1 - max(i for i, x in enumerate(vm) if 0 <= x <= s_)})')
        a('s_barrier')
        if s_ == E_('FLD', 2):
            a('buffer_load_dword v6, v5, s[20:23], s61 offen sc1')
            vm.append(-1)
        if 's' in DIAG and s_ in (0, 3, 6, 9, 12): stamp(a, 1 + s_//3)
        if 'e' in DIAG and s_ == 0: stamp(a, 4)
        wo_, ao = WSLOT[s_ % 6], ASLOT[s_ & 3]
        va = (8, 9, 13)[wo_ >> 16]; vb = (10, 11)[ao >> 16]
        for j in range(4):
            a(f'ds_read_b128 v[{BF+4*j}:{BF+4*j+3}], v{vb} offset:{(ao & 0xffff) + j*1024}')
            a(f'ds_read_b64_tr_b16 v[{AF+4*j}:{AF+4*j+1}], v{va} offset:{(wo_ & 0xffff) + j*2048}')
            a(f'ds_read_b64_tr_b16 v[{AF+4*j+2}:{AF+4*j+3}], v{va} offset:{(wo_ & 0xffff) + j*2048 + 512}')
        if s_ >= 1:
            if s_ + 3 < 14: issue_a(s_ + 3)
            if s_ + 5 < 14:
                for k in range(2): wd_dma(s_ + 5, k)
                vm.extend([s_ + 5]*2)
        if '2' in os.environ.get('WB', '') and s_ == 10:
            a('s_lshl_b32 s38, s5, 3')
            a('s_add_u32 s38, s38, s3')
            a('s_cmp_lg_u32 s38, 255')
            a('s_cbranch_scc1 M_NWB2')
            a('buffer_wbl2 sc1')
            a('M_NWB2:')
        for j in range(4):
            a(f's_waitcnt lgkmcnt({9-3*j})')
            cc = '0' if (s_ == 0 and j == 0) else f'v[{AC2}:{AC2+15}]'
            a(f'v_mfma_f32_32x32x16_bf16 v[{AC2}:{AC2+15}], v[{AF+4*j}:{AF+4*j+3}], v[{BF+4*j}:{BF+4*j+3}], {cc}')
    stamp(a, 10) if 'l' not in DIAG and 'F' not in DIAG else None
    unpack(a, 88, X2, 4)
    a('s_cmp_ge_u32 s3, 4')
    a('s_cbranch_scc1 F2_HI')
    a(f'ds_write_b128 v4, v[{AC2+8}:{AC2+11}]')
    a(f'ds_write_b128 v4, v[{AC2+12}:{AC2+15}] offset:1024')
    a('s_branch F2_X')
    a('F2_HI:')
    a('s_nop 2')
    a(f'ds_write_b128 v4, v[{AC2}:{AC2+3}]')
    a(f'ds_write_b128 v4, v[{AC2+4}:{AC2+7}] offset:1024')
    for i in range(8): a(f'v_mov_b32 v{AC2+i}, v{AC2+8+i}')
    a('F2_X:')
    a('s_waitcnt lgkmcnt(0)')
    a('s_barrier')
    a(f'ds_read_b128 v[{AF}:{AF+3}], v15')
    a(f'ds_read_b128 v[{AF+4}:{AF+7}], v15 offset:1024')
    a('s_waitcnt lgkmcnt(0)')
    for i in range(8): a(f'v_add_f32 v{AC2+i}, v{AC2+i}, v{AF+i}')
    for i in range(8): a(f'v_fmac_f32 v{88+i}, v{AC2+i}, v{GB+i}')
    for i in range(4): a(f'v_cvt_pk_bf16_f32 v{X2+i}, v{88+2*i}, v{89+2*i}')
    a(f'global_store_dwordx4 v12, v[{X2}:{X2+3}], s[56:57] {STO}')
    for off in [int(x, 0) for x in os.environ.get('XLOAD', '').split(',') if x]:
        a('s_lshl_b32 s12, s2, 7')
        a(f's_add_u32 s12, s12, {off}')
        a('v_mov_b32 v0, s12')
        a('global_load_dword v1, v0, s[30:31]')
        a('s_waitcnt vmcnt(0)')
    prof_end(a, 0, 3, 30)
    a('M_END2:')
    a('s_endpgm')

    a('M_SLOW:')
    a('v_mov_b32 v12, 0xff800000')
    a(f's_mov_b32 s12, {WS_KVF}')
    a('M_SL1:')
    a(f'buffer_load_dwordx4 v[{KK}:{KK+3}], v3, s[20:23], s12 offen sc1')
    a('s_waitcnt vmcnt(0)')
    a(f'v_mfma_f32_32x32x16_bf16 v[{S0}:{S0+15}], v[{KK}:{KK+3}], v[{Q}:{Q+3}], 0')
    for i in range(0, 16, 2): a(f'v_max3_f32 v12, v12, v{S0+i}, v{S0+i+1}')
    a('s_add_u32 s12, s12, 2048')
    a(f's_cmp_lt_u32 s12, {WS_KVF + 131072}')
    a('s_cbranch_scc1 M_SL1')
    a('''
v_mov_b32 v13, v12
v_permlane32_swap_b32 v12, v13
v_max_f32 v12, v12, v13
''')
    for i in range(16): a(f'v_sub_f32 v{C+i}, 0, v12')
    for i in range(16): a(f'v_mov_b32 v{O+i}, 0')
    for i in range(8): a(f'v_mov_b32 v{VA+i}, 0x3f803f80')
    a('''
v_lshl_add_u32 v13, v5, 4, v4
v_lshlrev_b32 v13, 4, v13
''')
    a(f's_mov_b32 s12, {WS_KVF}')
    a('M_SL2:')
    a(f'buffer_load_dwordx4 v[{KK}:{KK+3}], v3, s[20:23], s12 offen sc1')
    a('s_mov_b64 exec, s[32:33]')
    a(f'buffer_load_dwordx4 v[{VA}:{VA+3}], v13, s[20:23], s12 offen offset:1024 sc1')
    a(f'buffer_load_dwordx4 v[{VB}:{VB+3}], v13, s[20:23], s12 offen offset:1536 sc1')
    a('s_mov_b64 exec, -1')
    a('s_waitcnt vmcnt(0)')
    a(f'v_mfma_f32_32x32x16_bf16 v[{S0}:{S0+15}], v[{KK}:{KK+3}], v[{Q}:{Q+3}], v[{C}:{C+15}]')
    for i in range(16): a(f'v_exp_f32 v{S0+i}, v{S0+i}')
    for i in range(8): a(f'v_cvt_pk_bf16_f32 v{S1+i}, v{S0+2*i}, v{S0+2*i+1}')
    a(f'v_mfma_f32_32x32x16_bf16 v[{O}:{O+15}], v[{VA}:{VA+3}], v[{S1}:{S1+3}], v[{O}:{O+15}]')
    a(f'v_mfma_f32_32x32x16_bf16 v[{O}:{O+15}], v[{VB}:{VB+3}], v[{S1+4}:{S1+7}], v[{O}:{O+15}]')
    a('s_add_u32 s12, s12, 2048')
    a(f's_cmp_lt_u32 s12, {WS_KVF + 131072}')
    a('s_cbranch_scc1 M_SL2')
    a('s_nop 15')
    a('s_branch M_FIN')
    a('CODE_END:')
    a('s_endpgm')
    return K
```

```python
from common import *
from k3 import gelu_ops, K1C, K0C
from fphase import fphase

L_ONES = 131072
L_STAT = 131072 + 1024
L_OX   = 147072
L_MODS = L_OX + 8448
L_GB   = 161792
L_END  = 163840
Q, C, S0, S1, P, O, KK, VA, VB = 16, 20, 36, 52, 68, 76, 92, 96, 100
XR, WO, NPRE = 104, 108, 36
E_ = lambda k, d: int(os.environ.get(k, str(d)))
PRIO_PERIOD, PRIO_HI = E_('PRIO_PERIOD', 8), E_('PRIO_HI', 6)
TOUCH, TSPAN, WOSTART = E_('TOUCH', 14), E_('TSPAN', 42), E_('WOSTART', 16)
FORCE_SLOW = E_('FORCE_SLOW', 0)
NP1 = E_('NP1', 2)
WD0 = E_('WD0', 8)
PRE = os.environ.get('PRE', 'h')
W1F = os.environ.get('W1F', 'nt')
STA = os.environ.get('STA', 'sc0 sc1')
STH = os.environ.get('STH', '')
STO = os.environ.get('STO', '')
TCH = os.environ.get('TCH', 'x')
ATF = os.environ.get('ATF', '')
DIAG = os.environ.get('DIAG', '')
H2B = WS_Q
LD = os.environ.get('LD', 'sc1')

def tile(a, t, side=()):
    side = list(side)
    def sd():
        if side: side.pop(0)()
    b = t & 1
    S = S1 if b else S0; SN = S0 if b else S1
    E = lambda i: a(f'v_exp_f32 v{S+i}, v{S+i}')
    Cv = lambda i: a(f'v_cvt_pk_bf16_f32 v{S+i}, v{S+2*i}, v{S+2*i+1}')
    E(0)
    a(f'v_cvt_pk_bf16_f32 v{SN+7}, v{SN+14}, v{SN+15}')
    E(1); E(2); Cv(0)
    a('s_waitcnt lgkmcnt(2)')
    a(f'v_mfma_f32_32x32x16_bf16 v[{O}:{O+15}], v[{VB}:{VB+3}], v[{SN+4}:{SN+7}], v[{O}:{O+15}]')
    a(f'ds_read_b128 v[{VB}:{VB+3}], v9 offset:{t*2048+512}')
    E(3); E(4); Cv(1); sd(); E(5); E(6); Cv(2)
    a('s_waitcnt lgkmcnt(2)')
    a(f'v_mfma_f32_32x32x16_bf16 v[{SN}:{SN+15}], v[{KK}:{KK+3}], v[{Q}:{Q+3}], v[{C}:{C+15}]')
    a(f'ds_read_b128 v[{KK}:{KK+3}], v8 offset:{(t+2)*2048}')
    E(7); E(8); Cv(3); E(9); E(10)
    a('s_waitcnt lgkmcnt(2)')
    a(f'v_mfma_f32_32x32x16_bf16 v[{O}:{O+15}], v[{VA}:{VA+3}], v[{S}:{S+3}], v[{O}:{O+15}]')
    if t == 7:
        a('v_add_u32 v9, v9, v10')
        a(f'ds_read_b128 v[{VA}:{VA+3}], v9')
        a('v_add_u32 v8, 0x4000, v8')
    else:
        a(f'ds_read_b128 v[{VA}:{VA+3}], v9 offset:{(t+1)*2048}')
    Cv(4); E(11); E(12); Cv(5); sd(); E(13); E(14); Cv(6); E(15)
    while side: sd()

def publish(a, tag, voff, vone, soff, nyoung=0):
    a(f's_waitcnt vmcnt({nyoung})')
    a('s_mov_b64 exec, 1')
    a('s_cmp_lg_u32 s60, 0')
    a(f's_cbranch_scc1 M_PF{tag}')
    a('buffer_wbl2 sc1')
    a('s_waitcnt vmcnt(0)')
    a(f'buffer_store_dword v{vone}, v{voff}, s[20:23], {soff} offen sc0 sc1')
    a(f's_branch M_PX{tag}')
    a(f'M_PF{tag}:')
    a(f'buffer_store_dword v{vone}, v{voff}, s[20:23], {soff} offen')
    a(f'M_PX{tag}:')
    a('s_mov_b64 exec, -1')

def flag_only(a, tag, voff, vone, soff, off, n=0):
    a(f's_waitcnt vmcnt({n})')
    a('s_mov_b64 exec, 1')
    a('s_cmp_lg_u32 s60, 0')
    a(f's_cbranch_scc1 M_PF{tag}')
    a(f'buffer_store_dword v{vone}, v{voff}, s[20:23], {soff} offen offset:{off} sc0 sc1')
    a(f's_branch M_PX{tag}')
    a(f'M_PF{tag}:')
    a(f'buffer_store_dword v{vone}, v{voff}, s[20:23], {soff} offen offset:{off}')
    a(f'M_PX{tag}:')
    a('s_mov_b64 exec, -1')

def poll(a, tag, voff, vtmp, soff, code):
    a('s_mov_b32 s36, 0x80000')
    a(f'M_W{tag}:')
    a(f'buffer_load_dword v{vtmp}, v{voff}, s[20:23], {soff} offen offset:{1024 if code == 2 else 0} sc1')
    a('s_waitcnt vmcnt(0)')
    a(f'v_cmp_eq_u32 vcc, s59, v{vtmp}')
    a('s_cmp_eq_u64 vcc, -1')
    a(f's_cbranch_scc1 M_G{tag}')
    a('s_sleep 2')
    a('s_sub_u32 s36, s36, 1')
    a('s_cmp_lg_u32 s36, 0')
    a(f's_cbranch_scc1 M_W{tag}')
    a(f'M_G{tag}:')
    a('s_cmp_lg_u32 s60, 0')
    a(f's_cbranch_scc1 M_A{tag}')
    a('buffer_inv sc1')
    a('s_waitcnt vmcnt(0)')
    a(f'M_A{tag}:')

def mega():
    K = Kernel(NAME + '_kernel', 256, 512, L_END)
    a = K.a
    a('''
s_cmp_ge_u32 s2, 256
s_cbranch_scc1 M_END2
''')
    prof_init(a)
    fphase(a)
    stamp(a, 2)
    a("""
s_lshl_b32 s6, s4, 8
s_lshl_b32 s9, s5, 3
s_add_u32 s6, s6, s9
v_and_b32 v4, 31, v2
v_lshrrev_b32 v5, 5, v2
v_lshlrev_b32 v6, 5, v4
v_lshl_add_u32 v6, v5, 4, v6
v_lshrrev_b32 v7, 1, v4
v_lshlrev_b32 v7, 11, v7
v_lshl_add_u32 v7, v5, 10, v7
v_and_b32 v8, 1, v4
v_lshl_add_u32 v7, v8, 9, v7
s_add_u32 s9, s6, s3
s_and_b32 s9, s9, 31
s_lshl_b32 s9, s9, 4
s_lshl_b32 s10, s7, 15
s_add_u32 s9, s9, s10
""")
    a(f's_add_u32 s9, s9, {WS_Q}')
    a("""
v_mov_b32 v8, v3
v_lshl_add_u32 v9, v5, 4, v4
v_lshlrev_b32 v9, 4, v9
v_add_u32 v9, 0x400, v9
v_cmp_gt_u32 s[32:33], 16, v4
""")
    a(f'v_mov_b32 v11, {L_ONES+1024}')
    a("""
v_mov_b32 v12, 0x4000
v_and_b32 v13, 27, v4
v_cmp_eq_u32 s[34:35], 16, v13
v_add_u32 v13, 16, v11
v_cndmask_b32 v13, v13, v11, s[34:35]
v_add_u32 v14, 4, v4
v_and_b32 v14, 8, v14
v_lshl_add_u32 v13, v14, 3, v13
v_cndmask_b32 v9, v13, v9, s[32:33]
v_cndmask_b32 v10, 0, v12, s[32:33]
v_lshrrev_b32 v12, 1, v2
v_lshlrev_b32 v12, 11, v12
v_and_b32 v13, 1, v2
v_lshl_add_u32 v12, v13, 9, v12
v_add_u32 v12, v12, v11
""")
    for i in range(4): a(f'v_mov_b32 v{VA+i}, 0x3f803f80')
    for i in range(4): a(f'v_mov_b32 v{VB+i}, 0')
    for i in range(16): a(f'v_mov_b32 v{O+i}, 0')
    for i in range(4): a(f'v_mov_b32 v{S1+4+i}, 0')
    a(f'v_mov_b32 v{S1+14}, 0')
    a(f'v_mov_b32 v{S1+15}, 0')
    a("""
s_lshl_b32 s63, s3, 10
s_mov_b32 s10, s63
s_lshl_b32 s11, s4, 14
s_add_u32 s11, s11, s10
s_cmp_lg_u32 s3, 7
s_cbranch_scc1 M_NP0
v_and_b32 v13, 15, v2
s_lshl_b32 s14, s7, 6
s_lshl_b32 s15, s4, 7
""")
    a(f's_add_u32 s14, s14, {WS_QFL}')
    a(f's_add_u32 s15, s15, {WS_LFL}')
    a("""
v_lshl_add_u32 v13, v13, 2, s14
v_lshl_add_u32 v14, v4, 2, s15
v_cmp_gt_u32 vcc, 32, v2
s_mov_b32 s36, 0x80000
v_cndmask_b32 v13, v13, v14, vcc
M_W0:
buffer_load_dword v24, v13, s[20:23], 0 offen sc1
s_waitcnt vmcnt(0)
v_cmp_eq_u32 vcc, s59, v24
s_cmp_eq_u64 vcc, -1
s_cbranch_scc1 M_NP0
""")
    a(f's_sleep {E_("P0S", 1)}')
    a("""
s_sub_u32 s36, s36, 1
s_cmp_lg_u32 s36, 0
s_cbranch_scc1 M_W0
M_NP0:
s_barrier
""")
    stamp(a, 3)
    a(f'buffer_load_dwordx4 v[{Q}:{Q+3}], v7, s[20:23], s9 offen sc1')
    def dma(i):
        a('s_mov_b32 m0, s10')
        a(f's_add_u32 s12, s11, {WS_KVL if i < 2 else WS_KVF}')
        a('buffer_load_dwordx4 v3, s[20:23], s12 offen sc1 lds')
        if i < 15:
            a('s_add_u32 s10, s10, 8192')
            a('s_add_u32 s11, s11, 8192')
            a('s_and_b32 s11, s11, 0x1ffff')
    for i in range(2): dma(i)
    a('s_mov_b64 exec, 0xffff')
    a(f'ds_write_b128 v12, v[{VA}:{VA+3}]')
    a(f'ds_write_b128 v12, v[{VB}:{VB+3}] offset:16')
    a(f'ds_write_b128 v12, v[{VA}:{VA+3}] offset:64')
    a(f'ds_write_b128 v12, v[{VB}:{VB+3}] offset:80')
    a('s_mov_b64 exec, -1')
    a('s_waitcnt vmcnt(0) lgkmcnt(0)')
    a('s_barrier')
    stamp(a, 4)
    a('s_cmp_lg_u32 s3, 3')
    a('s_cbranch_scc1 M_NWF')
    a('s_cmp_ge_u32 s2, 128')
    a('s_cbranch_scc1 M_NWF')
    a('s_lshl_b32 s12, s2, 2')
    a(f's_add_u32 s12, s12, {WS_WFL}')
    a('v_mov_b32 v14, s59')
    a('v_mov_b32 v15, 0')
    a('s_mov_b64 exec, 1')
    a('buffer_store_dword v14, v15, s[20:23], s12 offen sc0 sc1')
    a('s_mov_b64 exec, -1')
    a('M_NWF:')
    a(f'ds_read_b128 v[{KK}:{KK+3}], v8')
    a('s_waitcnt lgkmcnt(0)')
    a(f'v_mfma_f32_32x32x16_bf16 v[{S0}:{S0+15}], v[{KK}:{KK+3}], v[{Q}:{Q+3}], 0')
    a(f'v_max3_f32 v12, v{S0}, v{S0+1}, v{S0+2}')
    a(f'v_max3_f32 v13, v{S0+3}, v{S0+4}, v{S0+5}')
    for i in range(6, 16, 4):
        a(f'v_max3_f32 v12, v12, v{S0+i}, v{S0+i+1}')
        if i + 2 < 16: a(f'v_max3_f32 v13, v13, v{S0+i+2}, v{S0+i+3}')
    a('''
v_max_f32 v12, v12, v13
v_mov_b32 v13, v12
v_permlane32_swap_b32 v12, v13
v_max_f32 v12, v12, v13
''')
    for i in range(16): a(f'v_sub_f32 v{C+i}, 0, v12')
    a(f'v_mfma_f32_32x32x16_bf16 v[{S0}:{S0+15}], v[{KK}:{KK+3}], v[{Q}:{Q+3}], v[{C}:{C+15}]')
    a(f'ds_read_b128 v[{KK}:{KK+3}], v8 offset:2048')
    a(f'ds_read_b128 v[{VA}:{VA+3}], v9')
    a('s_nop 7')

    nvm = [0]
    def wo_ld(f, reg):
        ks, c = f >> 2, f & 3
        a(f's_add_u32 s12, s13, {c*16384 + ks*1024}')
        a(f'buffer_load_dwordx4 v[{reg}:{reg+3}], v3, s[20:23], s12 offen sc1')
        nvm[0] += 1
    def wo_dma(f, ldsoff):
        ks, c = f >> 2, f & 3
        a(f's_add_u32 s10, s53, {ldsoff}')
        a('s_mov_b32 m0, s10')
        a(f's_add_u32 s12, s13, {c*16384 + ks*1024}')
        a('buffer_load_dwordx4 v3, s[20:23], s12 offen lds')
        nvm[0] += 1
    def ev_addr():
        a('''
v_and_b32 v13, 7, v2
v_add_u32 v13, s6, v13
v_lshlrev_b32 v14, 10, v13
v_lshrrev_b32 v15, 3, v2
v_lshl_add_u32 v14, v15, 4, v14
s_lshl_b32 s12, s3, 7
v_add_u32 v14, s12, v14
s_lshl_b32 s13, s3, 16
s_mul_i32 s62, s3, 28672
s_lshl_b32 s12, s5, 7
s_add_u32 s62, s62, s12
''')
        a(f's_add_u32 s13, s13, {WS_WOF}')
        a(f'global_load_dwordx4 v[{XR}:{XR+3}], v14, s[16:17]')
    xmark = [0]
    def ev_xld():
        a('s_getreg_b32 s58, hwreg(HW_REG_XCC_ID)')
        a('s_and_b32 s58, s58, 7')
        a('s_lshl_b32 s39, s4, 8')
        a(f's_add_u32 s39, s39, {WS_XT}')
        a('v_lshlrev_b32 v15, 3, v4')
        a('buffer_load_dwordx2 v[12:13], v15, s[20:23], s39 offen sc1')
        xmark[0] = nvm[0]
    def ev_xchk():
        a(f's_waitcnt vmcnt({nvm[0] - xmark[0]})')
        a("""
s_mov_b32 s38, 0x80000
M_XW:
v_cmp_eq_u32 vcc, s59, v13
s_cmp_eq_u64 vcc, -1
s_cbranch_scc1 M_XG
buffer_load_dwordx2 v[12:13], v15, s[20:23], s39 offen sc1
s_waitcnt vmcnt(0)
s_sub_u32 s38, s38, 1
s_cmp_lg_u32 s38, 0
s_cbranch_scc1 M_XW
M_XG:
v_cmp_eq_u32 vcc, s58, v12
s_cmp_eq_u64 vcc, -1
""")
        a(f's_cselect_b32 s60, {0 if FORCE_SLOW else 1}, 0')
        a('s_lshl_b32 s61, s4, 12')
        a(f's_add_u32 s61, s61, {WS_FLAG}')
    MW = 2
    def mod_a():
        a(f's_cmp_lg_u32 s3, {MW}')
        a('s_cbranch_scc1 M_MA')
        a('s_lshl_b32 s38, s5, 9')
        a(f's_add_u32 s38, s38, {WS_MODG + 8192}')
        mod_ld()
        a('M_MA:')
    def mod_ld():
        for p in range(4):
            a(f's_add_u32 s12, s38, {p*24576}')
            a(f'buffer_load_dwordx2 v[{240+2*p}:{241+2*p}], v12, s[20:23], s12 offen sc1')
    def mod_b():
        a(f's_cmp_lg_u32 s3, {MW}')
        a('s_cbranch_scc1 M_MB')
        a('s_mov_b32 s39, 0x40000')
        a('M_MW:')
        a('s_waitcnt vmcnt(0)')
        for p in range(4): a(f'v_xor_b32 v{241+2*p}, s59, v{241+2*p}')
        a('v_or3_b32 v241, v241, v243, v245')
        a('v_or_b32 v241, v241, v247')
        a('v_cmp_eq_u32 vcc, 0, v241')
        a('s_cmp_eq_u64 vcc, -1')
        a('s_cbranch_scc1 M_MG')
        mod_ld()
        a('s_sub_u32 s39, s39, 1')
        a('s_cmp_lg_u32 s39, 0')
        a('s_cbranch_scc1 M_MW')
        a('s_waitcnt vmcnt(0)')
        a('M_MG:')
        a('v_add_f32 v240, v240, v242')
        a('v_add_f32 v244, v244, v246')
        a('v_add_f32 v240, v240, v244')
        round_bf16(a, 240)
        a('s_lshr_b32 s12, s5, 3')
        a('s_cmp_lg_u32 s12, 2')
        a('s_cbranch_scc1 M_NOADD')
        a('v_add_f32 v240, 1.0, v240')
        round_bf16(a, 240)
        a('M_NOADD:')
        a('s_lshl_b32 s12, s4, 13')
        a('s_lshl_b32 s39, s5, 8')
        a('s_add_u32 s12, s12, s39')
        a(f's_add_u32 s12, s12, {WS_MODF}')
        a('v_lshlrev_b32 v241, 2, v2')
        a('buffer_store_dword v240, v241, s[20:23], s12 offen sc0 sc1')
        a('M_MB:')
        mk_[0] = nvm[0]
    mk_ = [0, 0, 0]
    def mod_c():
        a(f's_cmp_lg_u32 s3, {MW}')
        a('s_cbranch_scc1 M_MC')
        a('s_lshl_b32 s12, s4, 5')
        a('s_add_u32 s12, s12, s5')
        a('s_lshl_b32 s12, s12, 2')
        a(f's_add_u32 s12, s12, {WS_MFL}')
        a('v_mov_b32 v12, s59')
        a('v_mov_b32 v13, 0')
        a(f's_waitcnt vmcnt({nvm[0] - mk_[0]})')
        a('s_mov_b64 exec, 1')
        a('buffer_store_dword v12, v13, s[20:23], s12 offen sc0 sc1')
        a('s_mov_b64 exec, -1')
        a('M_MC:')
    def mod_d():
        a('s_lshl_b32 s38, s4, 7')
        a(f's_add_u32 s38, s38, {WS_MFL}')
        a('v_lshlrev_b32 v13, 2, v4')
        a('buffer_load_dword v12, v13, s[20:23], s38 offen sc1')
        mk_[1] = nvm[0]
    def mod_e():
        a(f's_waitcnt vmcnt({nvm[0] - mk_[1]})')
        a("""
s_mov_b32 s39, 0x80000
M_EW:
v_cmp_eq_u32 vcc, s59, v12
s_cmp_eq_u64 vcc, -1
s_cbranch_scc1 M_EG
s_sleep 2
buffer_load_dword v12, v13, s[20:23], s38 offen sc1
s_waitcnt vmcnt(0)
s_sub_u32 s39, s39, 1
s_cmp_lg_u32 s39, 0
s_cbranch_scc1 M_EW
M_EG:
s_cmp_ge_u32 s3, 6
""")
        a(f's_cselect_b32 s12, {L_GB - 6144}, {L_MODS}' if False else f's_mov_b32 s12, {L_MODS}')
        a(f's_cselect_b32 s12, {L_GB - 6144}, s12')
        a('s_add_u32 s12, s12, s63')
        a('s_mov_b32 m0, s12')
        a('s_lshl_b32 s12, s4, 13')
        a('s_add_u32 s12, s12, s63')
        a(f's_add_u32 s12, s12, {WS_MODF}')
        a('buffer_load_dwordx4 v3, s[20:23], s12 offen sc1 lds')
        mk_[2] = nvm[0]
    def prio(p, tag):
        def f():
            a('s_cmp_lt_u32 s3, 4')
            a(f's_cbranch_scc1 M_P{tag}')
            a(f's_setprio {p}')
            a(f'M_P{tag}:')
        return f
    def touch_setup():
        a('s_mul_i32 s54, s5, 57344')
        a('v_lshlrev_b32 v11, 7, v2')
        for r in (64, 68, 72):
            a(f's_and_b32 s{r+1}, s{r+1}, 0xffff')
            a(f's_mov_b32 s{r+2}, 1835008')
            a(f's_mov_b32 s{r+3}, 0x20000')
    def touch(u):
        def f():
            mat, k = u // 7, u % 7
            a(f's_cmp_lg_u32 s3, {u & 7}')
            a(f's_cbranch_scc1 M_T{u}')
            a(f's_add_u32 s55, s54, {k*8192}')
            a(f'buffer_load_dword v1, v11, s[{64+4*mat}:{67+4*mat}], s55 offen')
            a(f'M_T{u}:')
        return f
    side = {T: [] for T in range(64)}
    def gf_ld():
        a(f's_mov_b32 s15, {WS_GFL}')
        a('buffer_load_dwordx4 v[220:223], v3, s[20:23], s15 offen sc1')
    def gf_chk():
        a('s_mov_b32 s36, 0x80000')
        a('M_GW:')
        a('s_waitcnt vmcnt(0)')
        for r in (220, 221, 222, 223): a(f'v_xor_b32 v{r}, s59, v{r}')
        a("""
v_or3_b32 v220, v220, v221, v222
v_or_b32 v220, v220, v223
v_cmp_eq_u32 vcc, 0, v220
s_cmp_eq_u64 vcc, -1
s_cbranch_scc1 M_GG
s_sleep 4
""")
        gf_ld()
        a("""
s_sub_u32 s36, s36, 1
s_cmp_lg_u32 s36, 0
s_cbranch_scc1 M_GW
s_waitcnt vmcnt(0)
M_GG:
""")
        a('s_lshl_b32 s61, s4, 12')
        a(f's_add_u32 s61, s61, {WS_FLAG}')
    a('v_lshlrev_b32 v12, 3, v2')
    gf_ld()
    side[2].append(gf_chk)
    for i in range(2, 16): side[min(2 + (i-2)//2, 8)].append(lambda i=i: dma(i))
    side[5].append('vbar6')
    side[11].append('vbar')
    A0, MODT = E_('A0', 12), E_('MODT', 17)
    side[9].append(ev_addr)
    side[10].append(touch_setup)
    def wf_ld():
        a(f's_mov_b32 s15, {WS_WFL}')
        a('buffer_load_dwordx2 v[216:217], v12, s[20:23], s15 offen sc1')
    def wf_chk():
        a("""
s_mov_b32 s36, 0x80000
M_WW:
v_cmp_eq_u32 vcc, s59, v216
v_cmp_eq_u32 s[34:35], s59, v217
s_and_b64 vcc, vcc, s[34:35]
s_cmp_eq_u64 vcc, -1
s_cbranch_scc1 M_WG
s_sleep 4
buffer_load_dwordx2 v[216:217], v12, s[20:23], s15 offen sc1
s_waitcnt vmcnt(0)
s_sub_u32 s36, s36, 1
s_cmp_lg_u32 s36, 0
s_cbranch_scc1 M_WW
M_WG:
""")
    side[9].append(wf_ld)
    side[12].append(wf_chk)
    def bump():
        a('s_lshl_b32 s12, s2, 3')
        a('s_add_u32 s12, s12, s3')
        a('s_cmp_lg_u32 s12, 1')
        a('s_cbranch_scc1 M_NB')
        a('v_mov_b32 v220, s59')
        a('v_mov_b32 v221, 0')
        a(f's_mov_b32 s12, {WS_EPOCH}')
        a('s_mov_b64 exec, 1')
        a('buffer_store_dword v220, v221, s[20:23], s12 offen')
        a('s_mov_b64 exec, -1')
        a('M_NB:')
    side[10].append(bump)
    side[9].append(mod_a)
    side[12].append(mod_b)
    side[15].append(mod_c)
    side[E_('B0', 34) - 8].append(mod_d)
    side[E_('B0', 34) - 5].append(mod_e)
    NREG = 39
    treg = {f: WO + 4*f for f in range(37)}
    treg[37], treg[38] = P, P + 4
    NLDS = E_('NLDS', 4)
    def wo_park(j):
        f = NREG + j
        ks, c = f >> 2, f & 3
        if j == 0:
            a('s_lshl_b32 s10, s63, 1')
            a(f's_add_u32 s10, s10, {L_ONES}')
        else: a(f's_add_u32 s10, s63, {98304 + (j-1)*8192}')
        a('s_mov_b32 m0, s10')
        a(f's_add_u32 s12, s13, {c*16384 + ks*1024}')
        a('buffer_load_dwordx4 v3, s[20:23], s12 offen sc1 lds')
        nvm[0] += 1
    side[WOSTART].append(lambda: wo_park(0))
    if NLDS > 1:
        side[60].append('bar')
        for j in range(1, NLDS): side[60 + j].append(lambda j=j: wo_park(j))
    WOEND = E_('WOEND', 33)
    for f in range(NREG): side[WOSTART + f*(WOEND - WOSTART)//NREG].append(lambda f=f: wo_ld(f, treg[f]))
    order = []
    def w1setup():
        a("""
v_lshrrev_b32 v7, 3, v2
v_mul_u32_u24 v0, 3584, v7
v_and_b32 v15, 7, v2
v_and_b32 v7, 2, v7
v_xor_b32 v15, v15, v7
v_lshl_add_u32 v0, v15, 4, v0
v_xor_b32 v7, 64, v0
s_mov_b32 s44, s64
s_mov_b32 s45, s65
s_mov_b32 s47, 0x20000
s_mov_b32 s48, s68
s_mov_b32 s49, s69
s_mov_b32 s51, 0x20000
s_cmp_ge_u32 s5, 28
s_cselect_b32 s46, 0, s66
s_cselect_b32 s50, 0, s70
""")
    def w1dma(mat, g, fl=''):
        a(f's_add_u32 s36, s63, {mat*65536 + g*8192}')
        a('s_mov_b32 m0, s36')
        a(f's_add_u32 s37, s62, {g*8*28672}')
        a(f'buffer_load_dwordx4 v{7 if mat else 0}, s[{44+4*mat}:{47+4*mat}], s37 offen {fl} lds')
        order.append(('d', mat, g)); nvm[0] += 1
    B0 = E_('B0', 34)
    side[B0 - 2].append(w1setup)
    side[B0 - 1].append('mbar')
    for g in range(12):
        T = B0 + g*(E_('BEND', 58) - B0)//12
        if g == 8:
            assert T >= 50
            side[T - 1].append('bar')
        side[T].append(lambda g=g: w1dma(g >> 3, g & 7, W1F))
    def tch(tag, w, srdr, base_expr):
        def f():
            a(f's_cmp_lg_u32 s3, {w}')
            a(f's_cbranch_scc1 M_T{tag}')
            for x in base_expr: a(x)
            a(f'buffer_load_dword v1, v11, s[{srdr}:{srdr+3}], s55 offen')
            a(f'M_T{tag}:')
        return f
    if 'm' in TCH:
        side[E_('TG', 20)].append(tch('g', 5, 64, ['s_mul_i32 s55, s2, 7168']))
        side[E_('TG', 20) + 3].append(tch('u', 6, 68, ['s_mul_i32 s55, s2, 7168']))
    if 'u' in TCH:
        for k in range(4):
            side[E_('TU0', 40) + E_('TUS', 5)*k].append(tch(f'v{k}', k, 68, ['s_mul_i32 s55, s5, 28672', f's_add_u32 s55, s55, {917504 + min(k*8192, 28672-8192)}']))
    if 'd' in TCH:
        for k in range(7):
            side[E_('TD0', 20) + 3*k].append(tch(f'w{k}', k, 72, [f's_add_u32 s55, s54, {k*8192}']))
    def touch_wd():
        a('s_cmp_lg_u32 s3, 7')
        a('s_cbranch_scc1 M_TD')
        a('s_mul_i32 s55, s2, 7168')
        a('buffer_load_dword v1, v11, s[72:75], s55 offen')
        a('M_TD:')
    side[E_('TWD', 37)].append(touch_wd)
    for k in range(2):
        side[E_('TO', 12)].append(tch(f'o{k}', k, 20, ['s_lshl_b32 s55, s5, 14', f's_add_u32 s55, s55, {WS_WOF + k*8192}']))
    def preown():
        a(f'global_store_dwordx4 v14, v[{Q}:{Q+3}], s[56:57]')
        nvm[0] += 1
    def preown2():
        a("""
s_lshl_b32 s36, s4, 3
s_add_u32 s36, s36, s3
s_mul_i32 s36, s36, 0x1c000
s_min_u32 s37, s5, 27
s_lshl_b32 s37, s37, 12
s_add_u32 s36, s36, s37
""")
        a(f's_add_u32 s36, s36, {WS_ACTF}')
        if 'L' in PRE:
            a('v_lshlrev_b32 v13, 6, v2')
            a(f'buffer_load_dword v1, v13, s[20:23], s36 offen')
            nvm[0] += 1
        else:
            a('s_cmp_ge_u32 s5, 28')
            a('s_cbranch_scc1 M_NPO')
            for c in range(4): a(f'buffer_store_dwordx4 v[{Q}:{Q+3}], v3, s[20:23], s36 offen offset:{c*1024}')
            a('M_NPO:')
    if 'h' in PRE: side[E_('PREH', 35)].append(preown)
    def act_touch(w):
        def f():
            a(f's_cmp_lg_u32 s3, {w}')
            a(f's_cbranch_scc1 M_AT{w}')
            a("""
s_lshl_b32 s36, s4, 3
s_add_u32 s36, s36, s3
s_mul_i32 s36, s36, 0x1c000
s_min_u32 s37, s5, 27
s_lshl_b32 s37, s37, 12
s_add_u32 s36, s36, s37
s_mov_b32 exec_hi, 0
""")
            a(f's_add_u32 s36, s36, {WS_ACTF}')
            a(f'buffer_load_dword v1, v11, s[20:23], s36 offen {ATF}')
            a('s_mov_b64 exec, -1')
            a(f'M_AT{w}:')
        return f
    if 'a' in PRE:
        for w in range(8): side[E_('AT0', 18) + w*E_('ATS', 2)].append(act_touch(w))
    if E_('PSEG', 1):
        ends = sorted(T for T in side if any(isinstance(x, str) for x in side[T])) + [63]
        st = 0
        FR = float(os.environ.get('PFR', '0.7'))
        MX = E_('PMX', 8)
        for e in ends:
            n = e - st + 1
            if n <= 0: continue
            k = -(-n // MX)
            for j in range(k):
                b0 = st + j*n//k; b1 = st + (j+1)*n//k
                h2_ = int(round((b1 - b0)*FR*2))
                side[b0].insert(0, prio(1, f'a{b0}'))
                Tl = b0 + h2_//2
                if Tl < b1:
                    if h2_ & 1:
                        fs_ = [x for x in side[Tl] if not isinstance(x, str)]
                        if not fs_: side[Tl].insert(0, lambda: None)
                        side[Tl].insert(1, prio(0, f'b{b0}'))
                    else: side[Tl].insert(0, prio(0, f'b{b0}'))
            st = e + 1
    else:
        for T in range(0, 64, PRIO_PERIOD):
            side[T].insert(0, prio(1, f'a{T}'))
            side[T + PRIO_HI].insert(0, prio(0, f'b{T}'))
    SK = os.environ.get('SK', '')
    def kind(f):
        if isinstance(f, str): return 'b' if f == 'bar' else ''
        q = getattr(f, '__qualname__', '')
        src = f.__code__.co_names + f.__code__.co_freevars
        if 'modld' in q or 'ev_mod' in q: return 'm'
        if 'wo_ld' in src: return 'w'
        if 'w1dma' in src: return 'd'
        if 'preown' in q: return 'p'
        if 'tch' in q or 'touch_wd' in q or 'act_touch' in q: return 't'
        return ''
    for T in side: side[T] = [f for f in side[T] if not (kind(f) and kind(f) in SK)]
    LT = [int(x) for x in os.environ.get('LT', '2,5,11,20,33').split(',')]
    for T in range(64):
        tile(a, T & 7, [x for x in side[T] if not isinstance(x, str)])
        if 'vbar' in side[T]: a('s_waitcnt vmcnt(0)')
        if 'vbar6' in side[T]: a('s_waitcnt vmcnt(6)')
        if 'mbar' in side[T]:
            a(f's_waitcnt vmcnt({nvm[0] - mk_[2]})')
            a('s_barrier')
        if 'vbar' in side[T] or 'bar' in side[T] or 'vbar6' in side[T]: a('s_barrier')
        if 'l' in DIAG and T in LT: stamp(a, 6 + LT.index(T))

    if 'F' not in DIAG: stamp(a, 5)
    a('s_setprio 0')
    a(f'v_cvt_pk_bf16_f32 v{S1+7}, v{S1+14}, v{S1+15}')
    a('s_waitcnt lgkmcnt(0)')
    a(f'v_mfma_f32_32x32x16_bf16 v[{O}:{O+15}], v[{VB}:{VB+3}], v[{S1+4}:{S1+7}], v[{O}:{O+15}]')
    a(f'v_add_f32 v12, |v{O}|, |v{O+1}|')
    a(f'v_add_f32 v13, |v{O+2}|, |v{O+3}|')
    a(f'v_add_f32 v12, v12, |v{O+4}|')
    a(f'v_add_f32 v13, v13, |v{O+5}|')
    a(f'v_add_f32 v12, v12, |v{O+6}|')
    a(f'v_add_f32 v13, v13, |v{O+7}|')
    a(f'v_add_f32 v12, v12, v{O+8}')
    a('v_add_f32 v12, v12, v13')
    a('s_mov_b32 s12, 0x7e800000')
    a('v_cmp_gt_f32 vcc, s12, v12')
    a('s_cmp_eq_u64 vcc, -1')
    a('s_cbranch_scc0 M_SLOW')
    a('M_FIN:')
    ACC = S1
    ring = [KK, VA, VB, Q]
    a(f'v_rcp_f32 v12, v{O+8}')
    for i in range(8): a(f'v_mul_f32 v{O+i}, v{O+i}, v12')
    for i in range(4): a(f'v_cvt_pk_bf16_f32 v{S1+i}, v{O+2*i}, v{O+2*i+1}')
    a('s_mul_i32 s12, s3, 1056')
    a(f's_add_u32 s12, s12, {L_OX}')
    a('v_add_u32 v12, s12, v6')
    a(f'ds_write_b128 v12, v[{S1}:{S1+3}]')
    late = [C, C+4, C+8, C+12, S0, S0+4, S0+8, S0+12, O, O+4, O+8, O+12]
    freg = dict(treg)
    nxt = NREG + NLDS
    order.clear()
    a("""
v_and_b32 v13, 7, v2
v_mul_u32_u24 v13, 1056, v13
v_lshrrev_b32 v15, 4, v2
v_lshl_add_u32 v13, v15, 4, v13
s_lshl_b32 s10, s63, 1
""")
    a(f'v_add_u32 v13, {L_OX}, v13')
    a(f's_add_u32 s10, s10, {L_ONES}')
    a('v_add_u32 v8, s10, v3')
    a('s_add_u32 s10, s63, 98304')
    a('v_add_u32 v9, s10, v3')
    NB4 = E_('NB4', 12)
    for r in late[:NB4]:
        freg[nxt] = r; wo_ld(nxt, r); order.append(nxt); nxt += 1
    if E_('EP', 1): prio(1, 'e1')()
    a('s_waitcnt lgkmcnt(0)')
    a('s_barrier')
    if 'e' in DIAG: stamp(a, 1)
    lg = []
    def lrd_b(ks):
        a(f'ds_read_b128 v[{ring[ks&3]}:{ring[ks&3]+3}], v13 offset:{64*ks}'); lg.append(('b', ks))
    for ks in range(4): lrd_b(ks)
    pool = late[NB4:]
    w1q = [(1, g) for g in range(4, 8)]
    nl = 0
    for ks in range(16):
        br = ring[ks & 3]
        for c in range(4):
            f = 4*ks + c
            w = []
            need = [lg.index(('b', ks))] if c == 0 else []
            if ('w', f) in lg: need.append(lg.index(('w', f)))
            if f == 30: need.append(lg.index(('w', NREG + NLDS - 1)))
            if need: w.append(f'lgkmcnt({len(lg) - max(need) - 1})')
            if f in order: w.append(f'vmcnt({len(order) - order.index(f) - 1})')
            elif f == 0: w.append(f'vmcnt({len(order)})')
            if w: a('s_waitcnt ' + ' '.join(w))
            r = freg[f]
            cc = '0' if ks == 0 else f'v[{ACC+4*c}:{ACC+4*c+3}]'
            a(f'v_mfma_f32_16x16x32_bf16 v[{ACC+4*c}:{ACC+4*c+3}], v[{r}:{r+3}], v[{br}:{br+3}], {cc}')
            if f < 19: pool.append(r)
            if E_('EP', 1) and f == E_('EPF', 40): a('s_setprio 0')
            if nxt < 64:
                r2 = pool.pop(0)
                freg[nxt] = r2; wo_ld(nxt, r2); order.append(nxt); nxt += 1
            elif nl < NLDS:
                r2 = pool.pop(0); g_ = NREG + nl
                a(f'ds_read_b128 v[{r2}:{r2+3}], v{8 if nl == 0 else 9} offset:{0 if nl == 0 else (nl-1)*8192}')
                lg.append(('w', g_)); freg[g_] = r2; nl += 1
            elif w1q and f >= 30: w1dma(*w1q.pop(0))
        if ks + 4 < 16: lrd_b(ks + 4)
    if 'e' in DIAG: stamp(a, 2)
    G, SB, CB, X = 184, 192, 200, 208
    a('''
v_lshrrev_b32 v15, 3, v2
v_lshlrev_b32 v15, 5, v15
s_lshl_b32 s12, s3, 8
''')
    a(f's_add_u32 s12, s12, {L_MODS}')
    a('v_add_u32 v15, s12, v15')
    for i, r in enumerate((G, SB, CB)):
        a(f'ds_read_b128 v[{r}:{r+3}], v15 offset:{2048*i}')
        a(f'ds_read_b128 v[{r+4}:{r+7}], v15 offset:{2048*i+16}')
    unpack(a, X, XR, 4)
    a('v_and_b32 v12, 8, v2')
    a('v_cmp_eq_u32 s[34:35], 0, v12')
    for i in range(8): a(f'v_cndmask_b32 v{ACC+i}, v{ACC+8+i}, v{ACC+i}, s[34:35]')
    a('s_waitcnt lgkmcnt(0)')
    for i in range(8): a(f'v_fmac_f32 v{X+i}, v{ACC+i}, v{G+i}')
    for i in range(4): a(f'v_cvt_pk_bf16_f32 v{XR+i}, v{X+2*i}, v{X+2*i+1}')
    a(f'global_store_dwordx4 v14, v[{XR}:{XR+3}], s[56:57]')
    unpack(a, X, XR, 4)
    def red(r, t):
        a(f'v_add_f32_dpp v{r}, v{r}, v{r} row_ror:8 row_mask:0xf bank_mask:0xf')
        a(f'v_mov_b32 v{t}, v{r}')
        a(f'v_permlane16_swap_b32 v{r}, v{t}')
        a(f'v_add_f32 v{r}, v{r}, v{t}')
        a(f'v_mov_b32 v{t}, v{r}')
        a(f'v_permlane32_swap_b32 v{r}, v{t}')
        a(f'v_add_f32 v{r}, v{r}, v{t}')
    M, D, ST = 216, 220, 228
    a(f'v_add_f32 v{M}, v{X}, v{X+1}')
    a(f'v_add_f32 v{M+1}, v{X+2}, v{X+3}')
    a(f'v_add_f32 v{M+2}, v{X+4}, v{X+5}')
    a(f'v_add_f32 v{M+3}, v{X+6}, v{X+7}')
    a(f'v_add_f32 v{M}, v{M}, v{M+1}')
    a(f'v_add_f32 v{M+2}, v{M+2}, v{M+3}')
    a(f'v_add_f32 v{M}, v{M}, v{M+2}')
    red(M, M+2)
    a(f'v_mul_f32 v{M}, {f32(1/64)}, v{M}')
    for i in range(8): a(f'v_sub_f32 v{D+i}, v{X+i}, v{M}')
    a(f'v_mul_f32 v{M+1}, v{D}, v{D}')
    a(f'v_mul_f32 v{M+2}, v{D+1}, v{D+1}')
    for i in range(2, 8): a(f'v_fmac_f32 v{M+1+(i&1)}, v{D+i}, v{D+i}')
    a(f'v_add_f32 v{M+1}, v{M+1}, v{M+2}')
    red(M+1, M+2)
    a('''
v_and_b32 v12, 7, v2
v_lshlrev_b32 v12, 6, v12
''')
    a(f'v_add_u32 v12, {L_STAT}, v12')
    a('s_lshl_b32 s12, s3, 3')
    a('v_add_u32 v13, s12, v12')
    a('s_mov_b64 exec, 0xff')
    a(f'ds_write_b64 v13, v[{M}:{M+1}]')
    a('s_mov_b64 exec, -1')
    a('''
s_lshr_b32 s12, s6, 5
s_lshl_b32 s12, s12, 15
s_and_b32 s14, s6, 31
s_lshl_b32 s14, s14, 4
s_add_u32 s12, s12, s14
s_lshl_b32 s14, s3, 12
s_add_u32 s12, s12, s14
''')
    a(f's_add_u32 s12, s12, {H2B}')
    a('''
v_lshrrev_b32 v13, 3, v2
v_lshlrev_b32 v13, 9, v13
v_and_b32 v15, 7, v2
v_lshl_add_u32 v13, v15, 4, v13
s_waitcnt lgkmcnt(0)
s_barrier
''')
    for i in range(4): a(f'ds_read_b128 v[{ST+4*i}:{ST+4*i+3}], v12 offset:{16*i}')
    a('s_waitcnt lgkmcnt(0)')
    a(f'v_add_f32 v{M}, v{ST}, v{ST+2}')
    a(f'v_add_f32 v{M+1}, v{ST+1}, v{ST+3}')
    for i in range(2, 8):
        a(f'v_add_f32 v{M}, v{M}, v{ST+2*i}')
        a(f'v_add_f32 v{M+1}, v{M+1}, v{ST+2*i+1}')
    a(f'v_mul_f32 v{M}, {f32(1/8)}, v{M}')
    for i in range(8): a(f'v_sub_f32 v{ST+2*i}, v{ST+2*i}, v{M}')
    a(f'v_mul_f32 v{M+2}, v{ST}, v{ST}')
    for i in range(1, 8): a(f'v_fmac_f32 v{M+2}, v{ST+2*i}, v{ST+2*i}')
    a(f'v_mul_f32 v{M+1}, {f32(1/512)}, v{M+1}')
    a(f'v_fmac_f32 v{M+1}, {f32(1/8)}, v{M+2}')
    a(f'v_add_f32 v{M+1}, {f32(1e-5)}, v{M+1}')
    a(f'v_rsq_f32 v{M+1}, v{M+1}')
    for i in range(8): a(f'v_sub_f32 v{X+i}, v{X+i}, v{M}')
    for i in range(8): a(f'v_mul_f32 v{CB+i}, v{CB+i}, v{M+1}')
    for i in range(8): a(f'v_fmac_f32 v{SB+i}, v{X+i}, v{CB+i}')
    for i in range(4): a(f'v_cvt_pk_bf16_f32 v{D+i}, v{SB+2*i}, v{SB+2*i+1}')
    a(f'buffer_store_dwordx4 v[{D}:{D+3}], v13, s[20:23], s12 offen {STH}')
    stamp(a, 6) if 'l' not in DIAG and 'F' not in DIAG else None
    a('''
s_lshl_b32 s12, s5, 3
s_add_u32 s12, s12, s3
s_lshl_b32 s12, s12, 2
v_mov_b32 v6, s12
v_mov_b32 v7, s59
v_bfe_u32 v16, v2, 4, 1
v_lshlrev_b32 v12, 16, v16
v_lshrrev_b32 v17, 5, v2
v_lshl_add_u32 v12, v17, 10, v12
v_bfe_u32 v17, v2, 2, 2
v_lshl_add_u32 v12, v17, 7, v12
v_bfe_u32 v13, v2, 1, 1
v_lshl_add_u32 v12, v13, 3, v12
v_and_b32 v13, 1, v2
v_and_b32 v17, 2, v17
v_xor_b32 v13, v13, v17
v_lshlrev_b32 v16, 2, v16
v_xor_b32 v13, v13, v16
v_lshl_add_u32 v8, v13, 4, v12
v_xor_b32 v9, 32, v8
v_xor_b32 v10, 64, v8
v_xor_b32 v11, 0x60, v8
s_lshl_b32 s11, s4, 3
s_add_u32 s11, s11, s3
s_mul_i32 s14, s11, 0x1c000
s_lshl_b32 s11, s11, 15
s_lshl_b32 s13, s5, 12
s_add_u32 s14, s14, s13
v_and_b32 v12, 31, v2
s_lshl_b32 s13, s3, 7
v_lshl_add_u32 v12, v12, 2, s13
''')
    a(f'v_mov_b32 v15, {f32(K1C)}')
    a(f's_mov_b32 s42, {f32(K1C)}')
    a(f's_mov_b32 s43, {f32(K0C)}')
    a(f's_add_u32 s11, s11, {H2B}')
    a(f's_add_u32 s14, s14, {WS_ACTF}')
    publish(a, 1, 6, 7, 's61')
    GB = 56
    a("""
s_and_b32 s15, s5, 7
s_lshl_b32 s17, s15, 1
s_and_b32 s6, s3, 1
s_add_u32 s17, s17, s6
s_lshl_b32 s17, s17, 2
s_lshr_b32 s8, s3, 2
s_add_u32 s17, s17, s8
s_lshl_b32 s17, s17, 4
s_lshl_b32 s38, s17, 1
v_lshrrev_b32 v16, 5, v2
""")
    a(f's_add_u32 s38, s38, {L_GB}')
    a('v_lshl_add_u32 v16, v16, 6, s38')
    a(f'ds_read_b128 v[{GB}:{GB+3}], v16')
    a(f'ds_read_b128 v[{GB+4}:{GB+7}], v16 offset:16')
    a("""
v_lshrrev_b32 v16, 3, v2
v_and_b32 v17, 7, v2
v_and_b32 v18, 2, v16
v_lshlrev_b32 v18, 1, v18
v_xor_b32 v17, v17, v18
v_lshlrev_b32 v14, 10, v16
v_lshl_add_u32 v14, v17, 4, v14
s_lshl_b32 s10, s15, 7
s_lshr_b32 s9, s5, 3
s_mul_i32 s13, s9, 7
s_mul_i32 s16, s15, 3
s_add_u32 s13, s13, s16
s_add_u32 s13, s13, s3
s_cmp_ge_u32 s13, 28
s_cselect_b32 s38, 28, 0
s_sub_u32 s13, s13, s38
s_mov_b32 s39, s13
s_lshl_b32 s41, s3, 11
""")
    WSLOT = [131072, 147456, 0, 16384, 65536, 81920]
    ASLOT = [32768, 49152, 98304, 114688]
    def nxt_stage(r):
        a(f's_add_u32 s{r}, s{r}, 8')
        a(f's_sub_u32 s38, s{r}, 28')
        a(f's_cmp_ge_u32 s{r}, 28')
        a(f's_cselect_b32 s{r}, s38, s{r}')
    def ks_of(s, r, dst):
        a(f's_lshl_b32 s{dst}, s{r}, 2')
        c0 = (8*s)//28
        if c0: a(f's_add_u32 s{dst}, s{dst}, {c0}')
        if s in (3, 10): a(f's_add_u32 s{dst}, s{dst}, s8')
    def wd_dma(s, k):
        if k == 0:
            ks_of(s, 13, 18)
            a('s_lshl_b32 s18, s18, 14')
            a('s_add_u32 s18, s18, s10')
        a(f's_add_u32 s16, s41, {WSLOT[s % 6] + k*1024}')
        a('s_mov_b32 m0, s16')
        if k: a('s_add_u32 s18, s18, 0x2000')
        a('buffer_load_dwordx4 v14, s[72:75], s18 offen lds')
        if k and s < 13: nxt_stage(13)
    a("""
s_lshl_b32 s12, s3, 5
s_add_u32 s12, s12, s5
s_lshl_b32 s12, s12, 2
s_add_u32 s12, s12, 1024
v_mov_b32 v6, s12
""")
    a('s_cmp_ge_u32 s5, 28')
    a('s_cbranch_scc1 M_SPARE')
    poll(a, 1, 12, 13, 's61', 1)
    stamp(a, 7) if 'l' not in DIAG and 'F' not in DIAG else None

    BREG, AC1, AR, NR, LOOK = 128, 64, 32, 6, 4
    KS = E_('KS', 20)
    def rd(c, ks, reg):
        a(f'ds_read_b64_tr_b16 v[{reg}:{reg+1}], v{8+c} offset:{ks*2048}')
        a(f'ds_read_b64_tr_b16 v[{reg+2}:{reg+3}], v{8+c} offset:{ks*2048+512}')
    def store(c, reg):
        a(f'buffer_store_dwordx4 v[{reg}:{reg+3}], v3, s[20:23], s14 offen offset:{c*1024} {STA}')
    def epi(c):
        o = []
        for i in range(4): o += gelu_ops(AC1+16*c, AC1+16*c+8, 16 + 2*(i & 1), 24 + 4*(c & 1), i)
        o.append(('STORE', c))
        return o
    def emit(o):
        if isinstance(o, tuple): store(o[1], 24 + 4*(o[1] & 1))
        else: a(o)
    def f2_setup():
        a("""
s_bfe_u32 s7, s3, 0x10001
v_lshrrev_b32 v16, 5, v2
v_lshlrev_b32 v8, 10, v16
v_bfe_u32 v17, v2, 2, 2
v_lshl_add_u32 v8, v17, 7, v8
v_bfe_u32 v5, v2, 1, 1
v_lshl_add_u32 v8, v5, 3, v8
v_and_b32 v5, 1, v2
v_lshlrev_b32 v5, 1, v5
v_bfe_u32 v9, v2, 4, 1
v_add_u32 v5, v5, v9
v_and_b32 v17, 2, v17
v_lshl_add_u32 v5, v17, 1, v5
s_lshl_b32 s38, s6, 2
v_xor_b32 v5, s38, v5
v_lshl_add_u32 v8, v5, 4, v8
s_lshl_b32 s38, s8, 13
v_add_u32 v8, s38, v8
v_add_u32 v9, 0x10000, v8
v_add_u32 v13, 0x20000, v8
s_lshl_b32 s38, s7, 13
s_lshl_b32 s40, s8, 12
s_add_u32 s38, s38, s40
v_add_u32 v10, s38, v3
v_add_u32 v11, 0x10000, v10
s_lshl_b32 s40, s4, 2
s_add_u32 s40, s40, s9
s_mul_i32 s11, s40, 0x38000
""")
        a(f's_add_u32 s11, s11, {WS_ACTF}')
        a("""
s_lshl_b32 s40, s40, 1
s_add_u32 s40, s40, s7
s_lshl_b32 s40, s40, 15
s_add_u32 s40, s40, s17
v_and_b32 v12, 31, v2
v_min_u32 v5, 27, v12
v_lshlrev_b32 v12, 10, v12
v_lshl_add_u32 v12, v16, 5, v12
v_add_u32 v12, s40, v12
s_lshl_b32 s38, s3, 11
v_add_u32 v4, s38, v3
s_xor_b32 s38, s38, 0x2000
v_add_u32 v15, s38, v3
v_lshl_add_u32 v5, v16, 5, v5
s_lshl_b32 s38, s9, 8
s_add_u32 s38, s38, 1024
v_lshl_add_u32 v5, v5, 2, s38
""")
    SPAN = E_('F1SPAN', 52)
    def tail(c):
        A3 = AC1 + 16*c
        out = 24 + 4*(c & 1)
        if E_('PK', 0):
            G_, U_, T_ = A3, A3 + 8, 16
            pr = lambda b, i: f'v[{b+2*i}:{b+2*i+1}]'
            for i in range(4): a(f'v_pk_mul_f32 {pr(T_,i)}, {pr(G_,i)}, {pr(G_,i)}')
            for i in range(4): a(f'v_pk_fma_f32 {pr(T_,i)}, {pr(T_,i)}, s[42:43], s[42:43] op_sel:[0,0,1] op_sel_hi:[1,0,1]')
            for i in range(4): a(f'v_pk_mul_f32 {pr(T_,i)}, {pr(T_,i)}, {pr(G_,i)}')
            for i in range(8): a(f'v_exp_f32 v{T_+i}, v{T_+i}')
            for i in range(4): a(f'v_pk_mul_f32 {pr(G_,i)}, {pr(G_,i)}, {pr(U_,i)}')
            for i in range(4): a(f'v_pk_add_f32 {pr(T_,i)}, {pr(T_,i)}, 1.0 op_sel_hi:[1,0]')
            for i in range(8): a(f'v_rcp_f32 v{T_+i}, v{T_+i}')
            for i in range(4): a(f'v_pk_mul_f32 {pr(G_,i)}, {pr(G_,i)}, {pr(T_,i)}')
            for i in range(4): a(f'v_cvt_pk_bf16_f32 v{out+i}, v{G_+2*i}, v{G_+2*i+1}')
        else:
            seqs = [[o for o in gelu_ops(A3, A3+8, 16 + 2*i, out, i) if o != 's_nop 0'] for i in range(4)]
            for k in range(0, len(seqs[0]), 2):
                for s_ in seqs:
                    for o in s_[k:k+2]: a(o)
        store(c, out)
    seq = [(c, ks) for ks in range(16) for c in range(4)] + [(c, ks) for c in range(4) for ks in range(16, 32)]
    def step(n, wv=''):
        c, ks = seq[n]
        if n + LOOK < len(seq): rd(*seq[n + LOOK], AR + 4*((n + LOOK) % NR))
        a(f's_waitcnt lgkmcnt({2*(min(len(seq)-1, n+LOOK) - n)}){wv}')
        cc = '0' if ks == 0 else f'v[{AC1+16*c}:{AC1+16*c+15}]'
        r = AR + 4*(n % NR)
        a(f'v_mfma_f32_32x32x16_bf16 v[{AC1+16*c}:{AC1+16*c+15}], v[{r}:{r+3}], v[{BREG+4*ks}:{BREG+4*ks+3}], {cc}')
        if 'f' in DIAG and n in (0, 32, 63, 96, 127): stamp(a, 1 + (0, 32, 63, 96, 127).index(n))
    def half1(young):
        vm = []
        def bld(ks):
            if ks & 3 == 0 and ks: a('s_add_u32 s11, s11, 4096')
            a(f'buffer_load_dwordx4 v[{BREG+4*ks}:{BREG+4*ks+3}], v3, s[20:23], s11 offen offset:{(ks&3)*1024} {LD}')
            vm.append(ks)
        if young:
            a('s_waitcnt lgkmcnt(0)')
            a('s_barrier')
            a('s_barrier')
            for ks in range(16): bld(ks)
        else:
            for ks in range(NL0): bld(ks)
            a('s_waitcnt lgkmcnt(0)')
            a('s_barrier')
        for n in range(LOOK): rd(*seq[n], AR + 4*(n % NR))
        for n in range(64):
            c, ks = seq[n]
            if not young and len(vm) < 16:
                bld(len(vm))
                if len(vm) == 16: a('s_barrier')
            if young and n >= 64 - 16*PY and (64 - n) % PY == 0: bld(len(vm))
            if not young and n >= LB0 and len(vm) < 32 and n % 4 == 2: bld(len(vm))
            step(n, f' vmcnt({len(vm) - vm.index(ks) - 1})' if c == 0 else '')
        while len(vm) < 32: bld(len(vm))
    NL0, PY, LB0 = E_('NL0', 10), E_('PY', 2), E_('LB0', 40)
    a('s_cmp_ge_u32 s3, 4')
    a('s_cbranch_scc1 M_F1Y')
    half1(False)
    a('s_branch M_F1J')
    a('M_F1Y:')
    half1(True)
    a('M_F1J:')
    a('s_barrier')
    if 'e' in DIAG: stamp(a, 3)
    wdq = [(s_, k) for s_ in range(6) for k in range(2)]
    nd = 0
    WDN = E_('WDN', 70)
    gops = []
    for n in range(64, 128):
        step(n, f' vmcnt({79 - n + nd})' if n < 80 else '')
        if wdq and n >= WDN and (n - WDN) % 3 == 0: wd_dma(*wdq.pop(0)); nd += 1
        GI = E_('GI', 0)
        if n == 95: nd95 = nd
        if n == E_('EFN', 109): flag_only(a, '2e', 6, 7, 's61', 1024, nd - nd95)
        if GI == 0:
            if n % 16 == 15: tail(seq[n][0])
        else:
            if n % 16 == 2 and n > 80:
                c_ = seq[n][0] - 1
                A3 = AC1 + 16*c_; out = 24 + 4*(c_ & 1)
                sq = [[o for o in gelu_ops(A3, A3+8, 16 + 2*i, out, i) if o != 's_nop 0'] for i in range(4)]
                for k in range(0, len(sq[0]), 2):
                    for s2 in sq: gops.extend(s2[k:k+2])
                gops.append(('STORE', c_))
            for _ in range(E_('GPER', 5)):
                if gops: emit(gops.pop(0))
            if n == 127:
                while gops: emit(gops.pop(0))
                tail(3)
    assert not wdq
    stamp(a, 8) if 'l' not in DIAG and 'F' not in DIAG else None
    f2_setup()
    assert 'sc1' in STA
    a('s_waitcnt vmcnt(2)')
    a('s_branch M_F2')
    a('M_SPARE:')
    a('s_waitcnt vmcnt(0) lgkmcnt(0)')
    a('s_barrier')
    a('''
s_sub_u32 s7, s5, 28
s_lshl_b32 s7, s7, 3
s_add_u32 s7, s7, s3
s_lshr_b32 s36, s7, 2
s_lshl_b32 s36, s36, 16
s_and_b32 s37, s7, 3
s_lshl_b32 s37, s37, 13
s_add_u32 s36, s36, s37
s_add_u32 s36, s36, 0x8000
v_lshlrev_b32 v4, 7, v2
s_lshr_b32 s37, s7, 1
s_lshl_b32 s37, s37, 16
s_and_b32 s7, s7, 1
s_lshl_b32 s7, s7, 13
s_add_u32 s37, s37, s7
''')
    SPO = os.environ.get('SPO', '231')
    def t23():
        for i in range(4):
            a(f'buffer_load_dword v{16+i}, v4, s[72:75], s36 offen')
            if i < 3: a('s_add_u32 s36, s36, 0x80000')
    def t1(c):
        a(f's_add_u32 s7, s37, {c*16384}')
        for i in range(2):
            a(f'buffer_load_dword v{20+2*c+i}, v4, s[72:75], s7 offen')
            if i < 1: a('s_add_u32 s7, s7, 0x100000')
    for ch in SPO:
        if ch == '2': t23()
        if ch == '1': t1(1)
        if ch == '0': t1(0)
    for s_ in range(6):
        for k in range(2): wd_dma(s_, k)
    f2_setup()
    a('s_waitcnt vmcnt(0)')

    a('M_F2:')
    AC2, AF, BF, X2 = 16, 32, 64, 80
    a('s_cmp_lg_u32 s3, 0')
    a('s_cbranch_scc1 M_NP2')
    poll(a, 2, 5, 16, 's61', 2)
    a('M_NP2:')
    a('s_barrier')
    stamp(a, 9) if 'l' not in DIAG and 'F' not in DIAG else None
    vm = []
    def issue_a(s_):
        ks_of(s_, 39, 19)
        a('s_lshl_b32 s19, s19, 10')
        a('s_add_u32 s19, s19, s11')
        for k in range(2):
            a(f's_add_u32 s16, s63, {ASLOT[s_ & 3] + k*8192}')
            a('s_mov_b32 m0, s16')
            if k: a('s_add_u32 s19, s19, 0x1c000')
            a(f'buffer_load_dwordx4 v3, s[20:23], s19 offen {LD} lds')
        vm.extend([s_]*2)
        if s_ < 13: nxt_stage(39)
    for s_ in range(4): issue_a(s_)
    a(f'global_load_dwordx4 v[{X2}:{X2+3}], v12, s[56:57] {LD}')
    vm.append(3)
    flag_only(a, 2, 6, 7, 's61', 0, len(vm))
    vm.append(99)
    for s_ in range(14):
        if s_ == 4:
            a('s_cmp_lg_u32 s3, 0')
            a('s_cbranch_scc1 M_NP3')
            a(f's_waitcnt vmcnt({len(vm) - 1 - vm.index(-1)})')
            a('v_cmp_eq_u32 vcc, s59, v6')
            a('s_cmp_eq_u64 vcc, -1')
            a('s_cbranch_scc1 M_G3')
            poll(a, 3, 5, 6, 's61', 3)
            a('M_NP3:')
        a(f's_waitcnt vmcnt({len(vm) - 1 - max(i for i, x in enumerate(vm) if 0 <= x <= s_)})')
        a('s_barrier')
        if s_ == E_('FLD', 2):
            a('buffer_load_dword v6, v5, s[20:23], s61 offen sc1')
            vm.append(-1)
        if 's' in DIAG and s_ in (0, 3, 6, 9, 12): stamp(a, 1 + s_//3)
        if 'e' in DIAG and s_ == 0: stamp(a, 4)
        wo_, ao = WSLOT[s_ % 6], ASLOT[s_ & 3]
        va = (8, 9, 13)[wo_ >> 16]; vb = (10, 11)[ao >> 16]
        for j in range(4):
            a(f'ds_read_b128 v[{BF+4*j}:{BF+4*j+3}], v{vb} offset:{(ao & 0xffff) + j*1024}')
            a(f'ds_read_b64_tr_b16 v[{AF+4*j}:{AF+4*j+1}], v{va} offset:{(wo_ & 0xffff) + j*2048}')
            a(f'ds_read_b64_tr_b16 v[{AF+4*j+2}:{AF+4*j+3}], v{va} offset:{(wo_ & 0xffff) + j*2048 + 512}')
        if s_ >= 1:
            if s_ + 3 < 14: issue_a(s_ + 3)
            if s_ + 5 < 14:
                for k in range(2): wd_dma(s_ + 5, k)
                vm.extend([s_ + 5]*2)
        if '2' in os.environ.get('WB', '') and s_ == 10:
            a('s_lshl_b32 s38, s5, 3')
            a('s_add_u32 s38, s38, s3')
            a('s_cmp_lg_u32 s38, 255')
            a('s_cbranch_scc1 M_NWB2')
            a('buffer_wbl2 sc1')
            a('M_NWB2:')
        for j in range(4):
            a(f's_waitcnt lgkmcnt({9-3*j})')
            cc = '0' if (s_ == 0 and j == 0) else f'v[{AC2}:{AC2+15}]'
            a(f'v_mfma_f32_32x32x16_bf16 v[{AC2}:{AC2+15}], v[{AF+4*j}:{AF+4*j+3}], v[{BF+4*j}:{BF+4*j+3}], {cc}')
    stamp(a, 10) if 'l' not in DIAG and 'F' not in DIAG else None
    unpack(a, 88, X2, 4)
    a('s_cmp_ge_u32 s3, 4')
    a('s_cbranch_scc1 F2_HI')
    a(f'ds_write_b128 v4, v[{AC2+8}:{AC2+11}]')
    a(f'ds_write_b128 v4, v[{AC2+12}:{AC2+15}] offset:1024')
    a('s_branch F2_X')
    a('F2_HI:')
    a('s_nop 2')
    a(f'ds_write_b128 v4, v[{AC2}:{AC2+3}]')
    a(f'ds_write_b128 v4, v[{AC2+4}:{AC2+7}] offset:1024')
    for i in range(8): a(f'v_mov_b32 v{AC2+i}, v{AC2+8+i}')
    a('F2_X:')
    a('s_waitcnt lgkmcnt(0)')
    a('s_barrier')
    a(f'ds_read_b128 v[{AF}:{AF+3}], v15')
    a(f'ds_read_b128 v[{AF+4}:{AF+7}], v15 offset:1024')
    a('s_waitcnt lgkmcnt(0)')
    for i in range(8): a(f'v_add_f32 v{AC2+i}, v{AC2+i}, v{AF+i}')
    for i in range(8): a(f'v_fmac_f32 v{88+i}, v{AC2+i}, v{GB+i}')
    for i in range(4): a(f'v_cvt_pk_bf16_f32 v{X2+i}, v{88+2*i}, v{89+2*i}')
    a(f'global_store_dwordx4 v12, v[{X2}:{X2+3}], s[56:57] {STO}')
    for off in [int(x, 0) for x in os.environ.get('XLOAD', '').split(',') if x]:
        a('s_lshl_b32 s12, s2, 7')
        a(f's_add_u32 s12, s12, {off}')
        a('v_mov_b32 v0, s12')
        a('global_load_dword v1, v0, s[30:31]')
        a('s_waitcnt vmcnt(0)')
    prof_end(a, 0, 3, 30)
    a('M_END2:')
    a('s_endpgm')

    a('M_SLOW:')
    a('v_mov_b32 v12, 0xff800000')
    a(f's_mov_b32 s12, {WS_KVF}')
    a('M_SL1:')
    a(f'buffer_load_dwordx4 v[{KK}:{KK+3}], v3, s[20:23], s12 offen sc1')
    a('s_waitcnt vmcnt(0)')
    a(f'v_mfma_f32_32x32x16_bf16 v[{S0}:{S0+15}], v[{KK}:{KK+3}], v[{Q}:{Q+3}], 0')
    for i in range(0, 16, 2): a(f'v_max3_f32 v12, v12, v{S0+i}, v{S0+i+1}')
    a('s_add_u32 s12, s12, 2048')
    a(f's_cmp_lt_u32 s12, {WS_KVF + 131072}')
    a('s_cbranch_scc1 M_SL1')
    a('''
v_mov_b32 v13, v12
v_permlane32_swap_b32 v12, v13
v_max_f32 v12, v12, v13
''')
    for i in range(16): a(f'v_sub_f32 v{C+i}, 0, v12')
    for i in range(16): a(f'v_mov_b32 v{O+i}, 0')
    for i in range(8): a(f'v_mov_b32 v{VA+i}, 0x3f803f80')
    a('''
v_lshl_add_u32 v13, v5, 4, v4
v_lshlrev_b32 v13, 4, v13
''')
    a(f's_mov_b32 s12, {WS_KVF}')
    a('M_SL2:')
    a(f'buffer_load_dwordx4 v[{KK}:{KK+3}], v3, s[20:23], s12 offen sc1')
    a('s_mov_b64 exec, s[32:33]')
    a(f'buffer_load_dwordx4 v[{VA}:{VA+3}], v13, s[20:23], s12 offen offset:1024 sc1')
    a(f'buffer_load_dwordx4 v[{VB}:{VB+3}], v13, s[20:23], s12 offen offset:1536 sc1')
    a('s_mov_b64 exec, -1')
    a('s_waitcnt vmcnt(0)')
    a(f'v_mfma_f32_32x32x16_bf16 v[{S0}:{S0+15}], v[{KK}:{KK+3}], v[{Q}:{Q+3}], v[{C}:{C+15}]')
    for i in range(16): a(f'v_exp_f32 v{S0+i}, v{S0+i}')
    for i in range(8): a(f'v_cvt_pk_bf16_f32 v{S1+i}, v{S0+2*i}, v{S0+2*i+1}')
    a(f'v_mfma_f32_32x32x16_bf16 v[{O}:{O+15}], v[{VA}:{VA+3}], v[{S1}:{S1+3}], v[{O}:{O+15}]')
    a(f'v_mfma_f32_32x32x16_bf16 v[{O}:{O+15}], v[{VB}:{VB+3}], v[{S1+4}:{S1+7}], v[{O}:{O+15}]')
    a('s_add_u32 s12, s12, 2048')
    a(f's_cmp_lt_u32 s12, {WS_KVF + 131072}')
    a('s_cbranch_scc1 M_SL2')
    a('s_nop 15')
    a('s_branch M_FIN')
    a('CODE_END:')
    a('s_endpgm')
    return K
```

```python
from common import *
from k3 import gelu_ops, K1C, K0C
from fphase import fphase

L_ONES = 131072
L_STAT = 131072 + 1024
L_OX   = 147072
L_MODS = L_OX + 8448
L_GB   = 161792
L_END  = 163840
Q, C, S0, S1, P, O, KK, VA, VB = 16, 20, 36, 52, 68, 76, 92, 96, 100
XR, WO, NPRE = 104, 108, 36
E_ = lambda k, d: int(os.environ.get(k, str(d)))
PRIO_PERIOD, PRIO_HI = E_('PRIO_PERIOD', 8), E_('PRIO_HI', 6)
TOUCH, TSPAN, WOSTART = E_('TOUCH', 14), E_('TSPAN', 42), E_('WOSTART', 16)
FORCE_SLOW = E_('FORCE_SLOW', 0)
NP1 = E_('NP1', 2)
WD0 = E_('WD0', 8)
PRE = os.environ.get('PRE', 'h')
W1F = os.environ.get('W1F', 'nt')
STA = os.environ.get('STA', 'sc0 sc1')
STH = os.environ.get('STH', '')
STO = os.environ.get('STO', '')
TCH = os.environ.get('TCH', 'x')
ATF = os.environ.get('ATF', '')
DIAG = os.environ.get('DIAG', '')
H2B = WS_Q
LD = os.environ.get('LD', 'sc1')

def tile(a, t, side=()):
    side = list(side)
    def sd():
        if side: side.pop(0)()
    b = t & 1
    S = S1 if b else S0; SN = S0 if b else S1
    E = lambda i: a(f'v_exp_f32 v{S+i}, v{S+i}')
    Cv = lambda i: a(f'v_cvt_pk_bf16_f32 v{S+i}, v{S+2*i}, v{S+2*i+1}')
    E(0)
    a(f'v_cvt_pk_bf16_f32 v{SN+7}, v{SN+14}, v{SN+15}')
    E(1); E(2); Cv(0)
    a('s_waitcnt lgkmcnt(2)')
    a(f'v_mfma_f32_32x32x16_bf16 v[{O}:{O+15}], v[{VB}:{VB+3}], v[{SN+4}:{SN+7}], v[{O}:{O+15}]')
    a(f'ds_read_b128 v[{VB}:{VB+3}], v9 offset:{t*2048+512}')
    E(3); E(4); Cv(1); sd(); E(5); E(6); Cv(2)
    a('s_waitcnt lgkmcnt(2)')
    a(f'v_mfma_f32_32x32x16_bf16 v[{SN}:{SN+15}], v[{KK}:{KK+3}], v[{Q}:{Q+3}], v[{C}:{C+15}]')
    a(f'ds_read_b128 v[{KK}:{KK+3}], v8 offset:{(t+2)*2048}')
    E(7); E(8); Cv(3); E(9); E(10)
    a('s_waitcnt lgkmcnt(2)')
    a(f'v_mfma_f32_32x32x16_bf16 v[{O}:{O+15}], v[{VA}:{VA+3}], v[{S}:{S+3}], v[{O}:{O+15}]')
    if t == 7:
        a('v_add_u32 v9, v9, v10')
        a(f'ds_read_b128 v[{VA}:{VA+3}], v9')
        a('v_add_u32 v8, 0x4000, v8')
    else:
        a(f'ds_read_b128 v[{VA}:{VA+3}], v9 offset:{(t+1)*2048}')
    Cv(4); E(11); E(12); Cv(5); sd(); E(13); E(14); Cv(6); E(15)
    while side: sd()

def publish(a, tag, voff, vone, soff, nyoung=0):
    a(f's_waitcnt vmcnt({nyoung})')
    a('s_mov_b64 exec, 1')
    a('s_cmp_lg_u32 s60, 0')
    a(f's_cbranch_scc1 M_PF{tag}')
    a('buffer_wbl2 sc1')
    a('s_waitcnt vmcnt(0)')
    a(f'buffer_store_dword v{vone}, v{voff}, s[20:23], {soff} offen sc0 sc1')
    a(f's_branch M_PX{tag}')
    a(f'M_PF{tag}:')
    a(f'buffer_store_dword v{vone}, v{voff}, s[20:23], {soff} offen')
    a(f'M_PX{tag}:')
    a('s_mov_b64 exec, -1')

def flag_only(a, tag, voff, vone, soff, off, n=0):
    a(f's_waitcnt vmcnt({n})')
    a('s_mov_b64 exec, 1')
    a('s_cmp_lg_u32 s60, 0')
    a(f's_cbranch_scc1 M_PF{tag}')
    a(f'buffer_store_dword v{vone}, v{voff}, s[20:23], {soff} offen offset:{off} sc0 sc1')
    a(f's_branch M_PX{tag}')
    a(f'M_PF{tag}:')
    a(f'buffer_store_dword v{vone}, v{voff}, s[20:23], {soff} offen offset:{off}')
    a(f'M_PX{tag}:')
    a('s_mov_b64 exec, -1')

def poll(a, tag, voff, vtmp, soff, code):
    a('s_mov_b32 s36, 0x80000')
    a(f'M_W{tag}:')
    a(f'buffer_load_dword v{vtmp}, v{voff}, s[20:23], {soff} offen offset:{1024 if code == 2 else 0} sc1')
    a('s_waitcnt vmcnt(0)')
    a(f'v_cmp_eq_u32 vcc, s59, v{vtmp}')
    a('s_cmp_eq_u64 vcc, -1')
    a(f's_cbranch_scc1 M_G{tag}')
    a('s_sleep 2')
    a('s_sub_u32 s36, s36, 1')
    a('s_cmp_lg_u32 s36, 0')
    a(f's_cbranch_scc1 M_W{tag}')
    a(f'M_G{tag}:')
    a('s_cmp_lg_u32 s60, 0')
    a(f's_cbranch_scc1 M_A{tag}')
    a('buffer_inv sc1')
    a('s_waitcnt vmcnt(0)')
    a(f'M_A{tag}:')

def mega():
    K = Kernel(NAME + '_kernel', 256, 512, L_END)
    a = K.a
    a('''
s_cmp_ge_u32 s2, 256
s_cbranch_scc1 M_END2
''')
    prof_init(a)
    fphase(a)
    stamp(a, 2)
    a("""
s_lshl_b32 s6, s4, 8
s_lshl_b32 s9, s5, 3
s_add_u32 s6, s6, s9
v_and_b32 v4, 31, v2
v_lshrrev_b32 v5, 5, v2
v_lshlrev_b32 v6, 5, v4
v_lshl_add_u32 v6, v5, 4, v6
v_lshrrev_b32 v7, 1, v4
v_lshlrev_b32 v7, 11, v7
v_lshl_add_u32 v7, v5, 10, v7
v_and_b32 v8, 1, v4
v_lshl_add_u32 v7, v8, 9, v7
s_add_u32 s9, s6, s3
s_and_b32 s9, s9, 31
s_lshl_b32 s9, s9, 4
s_lshl_b32 s10, s7, 15
s_add_u32 s9, s9, s10
""")
    a(f's_add_u32 s9, s9, {WS_Q}')
    a("""
v_mov_b32 v8, v3
v_lshl_add_u32 v9, v5, 4, v4
v_lshlrev_b32 v9, 4, v9
v_add_u32 v9, 0x400, v9
v_cmp_gt_u32 s[32:33], 16, v4
""")
    a(f'v_mov_b32 v11, {L_ONES+1024}')
    a("""
v_mov_b32 v12, 0x4000
v_and_b32 v13, 27, v4
v_cmp_eq_u32 s[34:35], 16, v13
v_add_u32 v13, 16, v11
v_cndmask_b32 v13, v13, v11, s[34:35]
v_add_u32 v14, 4, v4
v_and_b32 v14, 8, v14
v_lshl_add_u32 v13, v14, 3, v13
v_cndmask_b32 v9, v13, v9, s[32:33]
v_cndmask_b32 v10, 0, v12, s[32:33]
v_lshrrev_b32 v12, 1, v2
v_lshlrev_b32 v12, 11, v12
v_and_b32 v13, 1, v2
v_lshl_add_u32 v12, v13, 9, v12
v_add_u32 v12, v12, v11
""")
    for i in range(4): a(f'v_mov_b32 v{VA+i}, 0x3f803f80')
    for i in range(4): a(f'v_mov_b32 v{VB+i}, 0')
    for i in range(16): a(f'v_mov_b32 v{O+i}, 0')
    for i in range(4): a(f'v_mov_b32 v{S1+4+i}, 0')
    a(f'v_mov_b32 v{S1+14}, 0')
    a(f'v_mov_b32 v{S1+15}, 0')
    a("""
s_lshl_b32 s63, s3, 10
s_mov_b32 s10, s63
s_lshl_b32 s11, s4, 14
s_add_u32 s11, s11, s10
s_cmp_lg_u32 s3, 7
s_cbranch_scc1 M_NP0
v_and_b32 v13, 15, v2
s_lshl_b32 s14, s7, 6
s_lshl_b32 s15, s4, 7
""")
    a(f's_add_u32 s14, s14, {WS_QFL}')
    a(f's_add_u32 s15, s15, {WS_LFL}')
    a("""
v_lshl_add_u32 v13, v13, 2, s14
v_lshl_add_u32 v14, v4, 2, s15
v_cmp_gt_u32 vcc, 32, v2
s_mov_b32 s36, 0x80000
v_cndmask_b32 v13, v13, v14, vcc
M_W0:
buffer_load_dword v24, v13, s[20:23], 0 offen sc1
s_waitcnt vmcnt(0)
v_cmp_eq_u32 vcc, s59, v24
s_cmp_eq_u64 vcc, -1
s_cbranch_scc1 M_NP0
""")
    a(f's_sleep {E_("P0S", 1)}')
    a("""
s_sub_u32 s36, s36, 1
s_cmp_lg_u32 s36, 0
s_cbranch_scc1 M_W0
M_NP0:
s_barrier
""")
    stamp(a, 3)
    a(f'buffer_load_dwordx4 v[{Q}:{Q+3}], v7, s[20:23], s9 offen sc1')
    def dma(i):
        a('s_mov_b32 m0, s10')
        a(f's_add_u32 s12, s11, {WS_KVL if i < 2 else WS_KVF}')
        a('buffer_load_dwordx4 v3, s[20:23], s12 offen sc1 lds')
        if i < 15:
            a('s_add_u32 s10, s10, 8192')
            a('s_add_u32 s11, s11, 8192')
            a('s_and_b32 s11, s11, 0x1ffff')
    for i in range(2): dma(i)
    a('s_mov_b64 exec, 0xffff')
    a(f'ds_write_b128 v12, v[{VA}:{VA+3}]')
    a(f'ds_write_b128 v12, v[{VB}:{VB+3}] offset:16')
    a(f'ds_write_b128 v12, v[{VA}:{VA+3}] offset:64')
    a(f'ds_write_b128 v12, v[{VB}:{VB+3}] offset:80')
    a('s_mov_b64 exec, -1')
    a('s_waitcnt vmcnt(0) lgkmcnt(0)')
    a('s_barrier')
    stamp(a, 4)
    a('s_cmp_lg_u32 s3, 3')
    a('s_cbranch_scc1 M_NWF')
    a('s_cmp_ge_u32 s2, 128')
    a('s_cbranch_scc1 M_NWF')
    a('s_lshl_b32 s12, s2, 2')
    a(f's_add_u32 s12, s12, {WS_WFL}')
    a('v_mov_b32 v14, s59')
    a('v_mov_b32 v15, 0')
    a('s_mov_b64 exec, 1')
    a('buffer_store_dword v14, v15, s[20:23], s12 offen sc0 sc1')
    a('s_mov_b64 exec, -1')
    a('M_NWF:')
    a(f'ds_read_b128 v[{KK}:{KK+3}], v8')
    a('s_waitcnt lgkmcnt(0)')
    a(f'v_mfma_f32_32x32x16_bf16 v[{S0}:{S0+15}], v[{KK}:{KK+3}], v[{Q}:{Q+3}], 0')
    a(f'v_max3_f32 v12, v{S0}, v{S0+1}, v{S0+2}')
    a(f'v_max3_f32 v13, v{S0+3}, v{S0+4}, v{S0+5}')
    for i in range(6, 16, 4):
        a(f'v_max3_f32 v12, v12, v{S0+i}, v{S0+i+1}')
        if i + 2 < 16: a(f'v_max3_f32 v13, v13, v{S0+i+2}, v{S0+i+3}')
    a('''
v_max_f32 v12, v12, v13
v_mov_b32 v13, v12
v_permlane32_swap_b32 v12, v13
v_max_f32 v12, v12, v13
''')
    for i in range(16): a(f'v_sub_f32 v{C+i}, 0, v12')
    a(f'v_mfma_f32_32x32x16_bf16 v[{S0}:{S0+15}], v[{KK}:{KK+3}], v[{Q}:{Q+3}], v[{C}:{C+15}]')
    a(f'ds_read_b128 v[{KK}:{KK+3}], v8 offset:2048')
    a(f'ds_read_b128 v[{VA}:{VA+3}], v9')
    a('s_nop 7')

    nvm = [0]
    def wo_ld(f, reg):
        ks, c = f >> 2, f & 3
        a(f's_add_u32 s12, s13, {c*16384 + ks*1024}')
        a(f'buffer_load_dwordx4 v[{reg}:{reg+3}], v3, s[20:23], s12 offen sc1')
        nvm[0] += 1
    def wo_dma(f, ldsoff):
        ks, c = f >> 2, f & 3
        a(f's_add_u32 s10, s53, {ldsoff}')
        a('s_mov_b32 m0, s10')
        a(f's_add_u32 s12, s13, {c*16384 + ks*1024}')
        a('buffer_load_dwordx4 v3, s[20:23], s12 offen lds')
        nvm[0] += 1
    def ev_addr():
        a('''
v_and_b32 v13, 7, v2
v_add_u32 v13, s6, v13
v_lshlrev_b32 v14, 10, v13
v_lshrrev_b32 v15, 3, v2
v_lshl_add_u32 v14, v15, 4, v14
s_lshl_b32 s12, s3, 7
v_add_u32 v14, s12, v14
s_lshl_b32 s13, s3, 16
s_mul_i32 s62, s3, 28672
s_lshl_b32 s12, s5, 7
s_add_u32 s62, s62, s12
''')
        a(f's_add_u32 s13, s13, {WS_WOF}')
        a(f'global_load_dwordx4 v[{XR}:{XR+3}], v14, s[16:17]')
    xmark = [0]
    def ev_xld():
        a('s_getreg_b32 s58, hwreg(HW_REG_XCC_ID)')
        a('s_and_b32 s58, s58, 7')
        a('s_lshl_b32 s39, s4, 8')
        a(f's_add_u32 s39, s39, {WS_XT}')
        a('v_lshlrev_b32 v15, 3, v4')
        a('buffer_load_dwordx2 v[12:13], v15, s[20:23], s39 offen sc1')
        xmark[0] = nvm[0]
    def ev_xchk():
        a(f's_waitcnt vmcnt({nvm[0] - xmark[0]})')
        a("""
s_mov_b32 s38, 0x80000
M_XW:
v_cmp_eq_u32 vcc, s59, v13
s_cmp_eq_u64 vcc, -1
s_cbranch_scc1 M_XG
buffer_load_dwordx2 v[12:13], v15, s[20:23], s39 offen sc1
s_waitcnt vmcnt(0)
s_sub_u32 s38, s38, 1
s_cmp_lg_u32 s38, 0
s_cbranch_scc1 M_XW
M_XG:
v_cmp_eq_u32 vcc, s58, v12
s_cmp_eq_u64 vcc, -1
""")
        a(f's_cselect_b32 s60, {0 if FORCE_SLOW else 1}, 0')
        a('s_lshl_b32 s61, s4, 12')
        a(f's_add_u32 s61, s61, {WS_FLAG}')
    MW = 2
    def mod_a():
        a(f's_cmp_lg_u32 s3, {MW}')
        a('s_cbranch_scc1 M_MA')
        a('s_lshl_b32 s38, s5, 9')
        a(f's_add_u32 s38, s38, {WS_MODG + 8192}')
        mod_ld()
        a('M_MA:')
    def mod_ld():
        for p in range(4):
            a(f's_add_u32 s12, s38, {p*24576}')
            a(f'buffer_load_dwordx2 v[{240+2*p}:{241+2*p}], v12, s[20:23], s12 offen sc1')
    def mod_b():
        a(f's_cmp_lg_u32 s3, {MW}')
        a('s_cbranch_scc1 M_MB')
        a('s_mov_b32 s39, 0x40000')
        a('M_MW:')
        a('s_waitcnt vmcnt(0)')
        for p in range(4): a(f'v_xor_b32 v{241+2*p}, s59, v{241+2*p}')
        a('v_or3_b32 v241, v241, v243, v245')
        a('v_or_b32 v241, v241, v247')
        a('v_cmp_eq_u32 vcc, 0, v241')
        a('s_cmp_eq_u64 vcc, -1')
        a('s_cbranch_scc1 M_MG')
        mod_ld()
        a('s_sub_u32 s39, s39, 1')
        a('s_cmp_lg_u32 s39, 0')
        a('s_cbranch_scc1 M_MW')
        a('s_waitcnt vmcnt(0)')
        a('M_MG:')
        a('v_add_f32 v240, v240, v242')
        a('v_add_f32 v244, v244, v246')
        a('v_add_f32 v240, v240, v244')
        round_bf16(a, 240)
        a('s_lshr_b32 s12, s5, 3')
        a('s_cmp_lg_u32 s12, 2')
        a('s_cbranch_scc1 M_NOADD')
        a('v_add_f32 v240, 1.0, v240')
        round_bf16(a, 240)
        a('M_NOADD:')
        a('s_lshl_b32 s12, s4, 13')
        a('s_lshl_b32 s39, s5, 8')
        a('s_add_u32 s12, s12, s39')
        a(f's_add_u32 s12, s12, {WS_MODF}')
        a('v_lshlrev_b32 v241, 2, v2')
        a('buffer_store_dword v240, v241, s[20:23], s12 offen sc0 sc1')
        a('M_MB:')
        mk_[0] = nvm[0]
    mk_ = [0, 0, 0]
    def mod_c():
        a(f's_cmp_lg_u32 s3, {MW}')
        a('s_cbranch_scc1 M_MC')
        a('s_lshl_b32 s12, s4, 5')
        a('s_add_u32 s12, s12, s5')
        a('s_lshl_b32 s12, s12, 2')
        a(f's_add_u32 s12, s12, {WS_MFL}')
        a('v_mov_b32 v12, s59')
        a('v_mov_b32 v13, 0')
        a(f's_waitcnt vmcnt({nvm[0] - mk_[0]})')
        a('s_mov_b64 exec, 1')
        a('buffer_store_dword v12, v13, s[20:23], s12 offen sc0 sc1')
        a('s_mov_b64 exec, -1')
        a('M_MC:')
    def mod_d():
        a('s_lshl_b32 s38, s4, 7')
        a(f's_add_u32 s38, s38, {WS_MFL}')
        a('v_lshlrev_b32 v13, 2, v4')
        a('buffer_load_dword v12, v13, s[20:23], s38 offen sc1')
        mk_[1] = nvm[0]
    def mod_e():
        a(f's_waitcnt vmcnt({nvm[0] - mk_[1]})')
        a("""
s_mov_b32 s39, 0x80000
M_EW:
v_cmp_eq_u32 vcc, s59, v12
s_cmp_eq_u64 vcc, -1
s_cbranch_scc1 M_EG
s_sleep 2
buffer_load_dword v12, v13, s[20:23], s38 offen sc1
s_waitcnt vmcnt(0)
s_sub_u32 s39, s39, 1
s_cmp_lg_u32 s39, 0
s_cbranch_scc1 M_EW
M_EG:
s_cmp_ge_u32 s3, 6
""")
        a(f's_cselect_b32 s12, {L_GB - 6144}, {L_MODS}' if False else f's_mov_b32 s12, {L_MODS}')
        a(f's_cselect_b32 s12, {L_GB - 6144}, s12')
        a('s_add_u32 s12, s12, s63')
        a('s_mov_b32 m0, s12')
        a('s_lshl_b32 s12, s4, 13')
        a('s_add_u32 s12, s12, s63')
        a(f's_add_u32 s12, s12, {WS_MODF}')
        a('buffer_load_dwordx4 v3, s[20:23], s12 offen sc1 lds')
        mk_[2] = nvm[0]
    def prio(p, tag):
        def f():
            a('s_cmp_lt_u32 s3, 4')
            a(f's_cbranch_scc1 M_P{tag}')
            a(f's_setprio {p}')
            a(f'M_P{tag}:')
        return f
    def touch_setup():
        a('s_mul_i32 s54, s5, 57344')
        a('v_lshlrev_b32 v11, 7, v2')
        for r in (64, 68, 72):
            a(f's_and_b32 s{r+1}, s{r+1}, 0xffff')
            a(f's_mov_b32 s{r+2}, 1835008')
            a(f's_mov_b32 s{r+3}, 0x20000')
    def touch(u):
        def f():
            mat, k = u // 7, u % 7
            a(f's_cmp_lg_u32 s3, {u & 7}')
            a(f's_cbranch_scc1 M_T{u}')
            a(f's_add_u32 s55, s54, {k*8192}')
            a(f'buffer_load_dword v1, v11, s[{64+4*mat}:{67+4*mat}], s55 offen')
            a(f'M_T{u}:')
        return f
    side = {T: [] for T in range(64)}
    def gf_ld():
        a(f's_mov_b32 s15, {WS_GFL}')
        a('buffer_load_dwordx4 v[220:223], v3, s[20:23], s15 offen sc1')
    def gf_chk():
        a('s_mov_b32 s36, 0x80000')
        a('M_GW:')
        a('s_waitcnt vmcnt(0)')
        for r in (220, 221, 222, 223): a(f'v_xor_b32 v{r}, s59, v{r}')
        a("""
v_or3_b32 v220, v220, v221, v222
v_or_b32 v220, v220, v223
v_cmp_eq_u32 vcc, 0, v220
s_cmp_eq_u64 vcc, -1
s_cbranch_scc1 M_GG
s_sleep 4
""")
        gf_ld()
        a("""
s_sub_u32 s36, s36, 1
s_cmp_lg_u32 s36, 0
s_cbranch_scc1 M_GW
s_waitcnt vmcnt(0)
M_GG:
""")
        a('s_lshl_b32 s61, s4, 12')
        a(f's_add_u32 s61, s61, {WS_FLAG}')
    a('v_lshlrev_b32 v12, 3, v2')
    gf_ld()
    side[2].append(gf_chk)
    for i in range(2, 16): side[min(2 + (i-2)//2, 8)].append(lambda i=i: dma(i))
    side[5].append('vbar6')
    side[11].append('vbar')
    A0, MODT = E_('A0', 12), E_('MODT', 17)
    side[9].append(ev_addr)
    side[10].append(touch_setup)
    def wf_ld():
        a(f's_mov_b32 s15, {WS_WFL}')
        a('buffer_load_dwordx2 v[216:217], v12, s[20:23], s15 offen sc1')
    def wf_chk():
        a("""
s_mov_b32 s36, 0x80000
M_WW:
v_cmp_eq_u32 vcc, s59, v216
v_cmp_eq_u32 s[34:35], s59, v217
s_and_b64 vcc, vcc, s[34:35]
s_cmp_eq_u64 vcc, -1
s_cbranch_scc1 M_WG
s_sleep 4
buffer_load_dwordx2 v[216:217], v12, s[20:23], s15 offen sc1
s_waitcnt vmcnt(0)
s_sub_u32 s36, s36, 1
s_cmp_lg_u32 s36, 0
s_cbranch_scc1 M_WW
M_WG:
""")
    side[9].append(wf_ld)
    side[12].append(wf_chk)
    def bump():
        a('s_lshl_b32 s12, s2, 3')
        a('s_add_u32 s12, s12, s3')
        a('s_cmp_lg_u32 s12, 1')
        a('s_cbranch_scc1 M_NB')
        a('v_mov_b32 v220, s59')
        a('v_mov_b32 v221, 0')
        a(f's_mov_b32 s12, {WS_EPOCH}')
        a('s_mov_b64 exec, 1')
        a('buffer_store_dword v220, v221, s[20:23], s12 offen')
        a('s_mov_b64 exec, -1')
        a('M_NB:')
    side[10].append(bump)
    side[9].append(mod_a)
    side[12].append(mod_b)
    side[15].append(mod_c)
    side[E_('B0', 34) - 8].append(mod_d)
    side[E_('B0', 34) - 5].append(mod_e)
    NREG = 39
    treg = {f: WO + 4*f for f in range(37)}
    treg[37], treg[38] = P, P + 4
    NLDS = E_('NLDS', 4)
    def wo_park(j):
        f = NREG + j
        ks, c = f >> 2, f & 3
        if j == 0:
            a('s_lshl_b32 s10, s63, 1')
            a(f's_add_u32 s10, s10, {L_ONES}')
        else: a(f's_add_u32 s10, s63, {98304 + (j-1)*8192}')
        a('s_mov_b32 m0, s10')
        a(f's_add_u32 s12, s13, {c*16384 + ks*1024}')
        a('buffer_load_dwordx4 v3, s[20:23], s12 offen sc1 lds')
        nvm[0] += 1
    side[WOSTART].append(lambda: wo_park(0))
    if NLDS > 1:
        side[60].append('bar')
        for j in range(1, NLDS): side[60 + j].append(lambda j=j: wo_park(j))
    WOEND = E_('WOEND', 33)
    for f in range(NREG): side[WOSTART + f*(WOEND - WOSTART)//NREG].append(lambda f=f: wo_ld(f, treg[f]))
    order = []
    def w1setup():
        a("""
v_lshrrev_b32 v7, 3, v2
v_mul_u32_u24 v0, 3584, v7
v_and_b32 v15, 7, v2
v_and_b32 v7, 2, v7
v_xor_b32 v15, v15, v7
v_lshl_add_u32 v0, v15, 4, v0
v_xor_b32 v7, 64, v0
s_mov_b32 s44, s64
s_mov_b32 s45, s65
s_mov_b32 s47, 0x20000
s_mov_b32 s48, s68
s_mov_b32 s49, s69
s_mov_b32 s51, 0x20000
s_cmp_ge_u32 s5, 28
s_cselect_b32 s46, 0, s66
s_cselect_b32 s50, 0, s70
""")
    def w1dma(mat, g, fl=''):
        a(f's_add_u32 s36, s63, {mat*65536 + g*8192}')
        a('s_mov_b32 m0, s36')
        a(f's_add_u32 s37, s62, {g*8*28672}')
        a(f'buffer_load_dwordx4 v{7 if mat else 0}, s[{44+4*mat}:{47+4*mat}], s37 offen {fl} lds')
        order.append(('d', mat, g)); nvm[0] += 1
    B0 = E_('B0', 34)
    side[B0 - 2].append(w1setup)
    side[B0 - 1].append('mbar')
    for g in range(12):
        T = B0 + g*(E_('BEND', 58) - B0)//12
        if g == 8:
            assert T >= 50
            side[T - 1].append('bar')
        side[T].append(lambda g=g: w1dma(g >> 3, g & 7, W1F))
    def tch(tag, w, srdr, base_expr):
        def f():
            a(f's_cmp_lg_u32 s3, {w}')
            a(f's_cbranch_scc1 M_T{tag}')
            for x in base_expr: a(x)
            a(f'buffer_load_dword v1, v11, s[{srdr}:{srdr+3}], s55 offen')
            a(f'M_T{tag}:')
        return f
    if 'm' in TCH:
        side[E_('TG', 20)].append(tch('g', 5, 64, ['s_mul_i32 s55, s2, 7168']))
        side[E_('TG', 20) + 3].append(tch('u', 6, 68, ['s_mul_i32 s55, s2, 7168']))
    if 'u' in TCH:
        for k in range(4):
            side[E_('TU0', 40) + E_('TUS', 5)*k].append(tch(f'v{k}', k, 68, ['s_mul_i32 s55, s5, 28672', f's_add_u32 s55, s55, {917504 + min(k*8192, 28672-8192)}']))
    if 'd' in TCH:
        for k in range(7):
            side[E_('TD0', 20) + 3*k].append(tch(f'w{k}', k, 72, [f's_add_u32 s55, s54, {k*8192}']))
    def touch_wd():
        a('s_cmp_lg_u32 s3, 7')
        a('s_cbranch_scc1 M_TD')
        a('s_mul_i32 s55, s2, 7168')
        a('buffer_load_dword v1, v11, s[72:75], s55 offen')
        a('M_TD:')
    side[E_('TWD', 37)].append(touch_wd)
    for k in range(2):
        side[E_('TO', 12)].append(tch(f'o{k}', k, 20, ['s_lshl_b32 s55, s5, 14', f's_add_u32 s55, s55, {WS_WOF + k*8192}']))
    def preown():
        a(f'global_store_dwordx4 v14, v[{Q}:{Q+3}], s[56:57]')
        nvm[0] += 1
    def preown2():
        a("""
s_lshl_b32 s36, s4, 3
s_add_u32 s36, s36, s3
s_mul_i32 s36, s36, 0x1c000
s_min_u32 s37, s5, 27
s_lshl_b32 s37, s37, 12
s_add_u32 s36, s36, s37
""")
        a(f's_add_u32 s36, s36, {WS_ACTF}')
        if 'L' in PRE:
            a('v_lshlrev_b32 v13, 6, v2')
            a(f'buffer_load_dword v1, v13, s[20:23], s36 offen')
            nvm[0] += 1
        else:
            a('s_cmp_ge_u32 s5, 28')
            a('s_cbranch_scc1 M_NPO')
            for c in range(4): a(f'buffer_store_dwordx4 v[{Q}:{Q+3}], v3, s[20:23], s36 offen offset:{c*1024}')
            a('M_NPO:')
    if 'h' in PRE: side[E_('PREH', 35)].append(preown)
    def act_touch(w):
        def f():
            a(f's_cmp_lg_u32 s3, {w}')
            a(f's_cbranch_scc1 M_AT{w}')
            a("""
s_lshl_b32 s36, s4, 3
s_add_u32 s36, s36, s3
s_mul_i32 s36, s36, 0x1c000
s_min_u32 s37, s5, 27
s_lshl_b32 s37, s37, 12
s_add_u32 s36, s36, s37
s_mov_b32 exec_hi, 0
""")
            a(f's_add_u32 s36, s36, {WS_ACTF}')
            a(f'buffer_load_dword v1, v11, s[20:23], s36 offen {ATF}')
            a('s_mov_b64 exec, -1')
            a(f'M_AT{w}:')
        return f
    if 'a' in PRE:
        for w in range(8): side[E_('AT0', 18) + w*E_('ATS', 2)].append(act_touch(w))
    if E_('PSEG', 1):
        ends = sorted(T for T in side if any(isinstance(x, str) for x in side[T])) + [63]
        st = 0
        FR = float(os.environ.get('PFR', '0.7'))
        MX = E_('PMX', 8)
        for e in ends:
            n = e - st + 1
            if n <= 0: continue
            k = -(-n // MX)
            for j in range(k):
                b0 = st + j*n//k; b1 = st + (j+1)*n//k
                h2_ = int(round((b1 - b0)*FR*2))
                side[b0].insert(0, prio(1, f'a{b0}'))
                Tl = b0 + h2_//2
                if Tl < b1:
                    if h2_ & 1:
                        fs_ = [x for x in side[Tl] if not isinstance(x, str)]
                        if not fs_: side[Tl].insert(0, lambda: None)
                        side[Tl].insert(1, prio(0, f'b{b0}'))
                    else: side[Tl].insert(0, prio(0, f'b{b0}'))
            st = e + 1
    else:
        for T in range(0, 64, PRIO_PERIOD):
            side[T].insert(0, prio(1, f'a{T}'))
            side[T + PRIO_HI].insert(0, prio(0, f'b{T}'))
    SK = os.environ.get('SK', '')
    def kind(f):
        if isinstance(f, str): return 'b' if f == 'bar' else ''
        q = getattr(f, '__qualname__', '')
        src = f.__code__.co_names + f.__code__.co_freevars
        if 'modld' in q or 'ev_mod' in q: return 'm'
        if 'wo_ld' in src: return 'w'
        if 'w1dma' in src: return 'd'
        if 'preown' in q: return 'p'
        if 'tch' in q or 'touch_wd' in q or 'act_touch' in q: return 't'
        return ''
    for T in side: side[T] = [f for f in side[T] if not (kind(f) and kind(f) in SK)]
    LT = [int(x) for x in os.environ.get('LT', '2,5,11,20,33').split(',')]
    for T in range(64):
        tile(a, T & 7, [x for x in side[T] if not isinstance(x, str)])
        if 'vbar' in side[T]: a('s_waitcnt vmcnt(0)')
        if 'vbar6' in side[T]: a('s_waitcnt vmcnt(6)')
        if 'mbar' in side[T]:
            a(f's_waitcnt vmcnt({nvm[0] - mk_[2]})')
            a('s_barrier')
        if 'vbar' in side[T] or 'bar' in side[T] or 'vbar6' in side[T]: a('s_barrier')
        if 'l' in DIAG and T in LT: stamp(a, 6 + LT.index(T))

    if 'F' not in DIAG: stamp(a, 5)
    a('s_setprio 0')
    a(f'v_cvt_pk_bf16_f32 v{S1+7}, v{S1+14}, v{S1+15}')
    a('s_waitcnt lgkmcnt(0)')
    a(f'v_mfma_f32_32x32x16_bf16 v[{O}:{O+15}], v[{VB}:{VB+3}], v[{S1+4}:{S1+7}], v[{O}:{O+15}]')
    a(f'v_add_f32 v12, |v{O}|, |v{O+1}|')
    a(f'v_add_f32 v13, |v{O+2}|, |v{O+3}|')
    a(f'v_add_f32 v12, v12, |v{O+4}|')
    a(f'v_add_f32 v13, v13, |v{O+5}|')
    a(f'v_add_f32 v12, v12, |v{O+6}|')
    a(f'v_add_f32 v13, v13, |v{O+7}|')
    a(f'v_add_f32 v12, v12, v{O+8}')
    a('v_add_f32 v12, v12, v13')
    a('s_mov_b32 s12, 0x7e800000')
    a('v_cmp_gt_f32 vcc, s12, v12')
    a('s_cmp_eq_u64 vcc, -1')
    a('s_cbranch_scc0 M_SLOW')
    a('M_FIN:')
    ACC = S1
    ring = [KK, VA, VB, Q]
    a(f'v_rcp_f32 v12, v{O+8}')
    for i in range(8): a(f'v_mul_f32 v{O+i}, v{O+i}, v12')
    for i in range(4): a(f'v_cvt_pk_bf16_f32 v{S1+i}, v{O+2*i}, v{O+2*i+1}')
    a('s_mul_i32 s12, s3, 1056')
    a(f's_add_u32 s12, s12, {L_OX}')
    a('v_add_u32 v12, s12, v6')
    a(f'ds_write_b128 v12, v[{S1}:{S1+3}]')
    late = [C, C+4, C+8, C+12, S0, S0+4, S0+8, S0+12, O, O+4, O+8, O+12]
    freg = dict(treg)
    nxt = NREG + NLDS
    order.clear()
    a("""
v_and_b32 v13, 7, v2
v_mul_u32_u24 v13, 1056, v13
v_lshrrev_b32 v15, 4, v2
v_lshl_add_u32 v13, v15, 4, v13
s_lshl_b32 s10, s63, 1
""")
    a(f'v_add_u32 v13, {L_OX}, v13')
    a(f's_add_u32 s10, s10, {L_ONES}')
    a('v_add_u32 v8, s10, v3')
    a('s_add_u32 s10, s63, 98304')
    a('v_add_u32 v9, s10, v3')
    NB4 = E_('NB4', 12)
    for r in late[:NB4]:
        freg[nxt] = r; wo_ld(nxt, r); order.append(nxt); nxt += 1
    if E_('EP', 1): prio(1, 'e1')()
    a('s_waitcnt lgkmcnt(0)')
    a('s_barrier')
    if 'e' in DIAG: stamp(a, 1)
    lg = []
    def lrd_b(ks):
        a(f'ds_read_b128 v[{ring[ks&3]}:{ring[ks&3]+3}], v13 offset:{64*ks}'); lg.append(('b', ks))
    for ks in range(4): lrd_b(ks)
    pool = late[NB4:]
    w1q = [(1, g) for g in range(4, 8)]
    nl = 0
    for ks in range(16):
        br = ring[ks & 3]
        for c in range(4):
            f = 4*ks + c
            w = []
            need = [lg.index(('b', ks))] if c == 0 else []
            if ('w', f) in lg: need.append(lg.index(('w', f)))
            if f == 30: need.append(lg.index(('w', NREG + NLDS - 1)))
            if need: w.append(f'lgkmcnt({len(lg) - max(need) - 1})')
            if f in order: w.append(f'vmcnt({len(order) - order.index(f) - 1})')
            elif f == 0: w.append(f'vmcnt({len(order)})')
            if w: a('s_waitcnt ' + ' '.join(w))
            r = freg[f]
            cc = '0' if ks == 0 else f'v[{ACC+4*c}:{ACC+4*c+3}]'
            a(f'v_mfma_f32_16x16x32_bf16 v[{ACC+4*c}:{ACC+4*c+3}], v[{r}:{r+3}], v[{br}:{br+3}], {cc}')
            if f < 19: pool.append(r)
            if E_('EP', 1) and f == E_('EPF', 40): a('s_setprio 0')
            if nxt < 64:
                r2 = pool.pop(0)
                freg[nxt] = r2; wo_ld(nxt, r2); order.append(nxt); nxt += 1
            elif nl < NLDS:
                r2 = pool.pop(0); g_ = NREG + nl
                a(f'ds_read_b128 v[{r2}:{r2+3}], v{8 if nl == 0 else 9} offset:{0 if nl == 0 else (nl-1)*8192}')
                lg.append(('w', g_)); freg[g_] = r2; nl += 1
            elif w1q and f >= 30: w1dma(*w1q.pop(0))
        if ks + 4 < 16: lrd_b(ks + 4)
    if 'e' in DIAG: stamp(a, 2)
    G, SB, CB, X = 184, 192, 200, 208
    a('''
v_lshrrev_b32 v15, 3, v2
v_lshlrev_b32 v15, 5, v15
s_lshl_b32 s12, s3, 8
''')
    a(f's_add_u32 s12, s12, {L_MODS}')
    a('v_add_u32 v15, s12, v15')
    for i, r in enumerate((G, SB, CB)):
        a(f'ds_read_b128 v[{r}:{r+3}], v15 offset:{2048*i}')
        a(f'ds_read_b128 v[{r+4}:{r+7}], v15 offset:{2048*i+16}')
    unpack(a, X, XR, 4)
    a('v_and_b32 v12, 8, v2')
    a('v_cmp_eq_u32 s[34:35], 0, v12')
    for i in range(8): a(f'v_cndmask_b32 v{ACC+i}, v{ACC+8+i}, v{ACC+i}, s[34:35]')
    a('s_waitcnt lgkmcnt(0)')
    for i in range(8): a(f'v_fmac_f32 v{X+i}, v{ACC+i}, v{G+i}')
    for i in range(4): a(f'v_cvt_pk_bf16_f32 v{XR+i}, v{X+2*i}, v{X+2*i+1}')
    a(f'global_store_dwordx4 v14, v[{XR}:{XR+3}], s[56:57]')
    unpack(a, X, XR, 4)
    def red(r, t):
        a(f'v_add_f32_dpp v{r}, v{r}, v{r} row_ror:8 row_mask:0xf bank_mask:0xf')
        a(f'v_mov_b32 v{t}, v{r}')
        a(f'v_permlane16_swap_b32 v{r}, v{t}')
        a(f'v_add_f32 v{r}, v{r}, v{t}')
        a(f'v_mov_b32 v{t}, v{r}')
        a(f'v_permlane32_swap_b32 v{r}, v{t}')
        a(f'v_add_f32 v{r}, v{r}, v{t}')
    M, D, ST = 216, 220, 228
    a(f'v_add_f32 v{M}, v{X}, v{X+1}')
    a(f'v_add_f32 v{M+1}, v{X+2}, v{X+3}')
    a(f'v_add_f32 v{M+2}, v{X+4}, v{X+5}')
    a(f'v_add_f32 v{M+3}, v{X+6}, v{X+7}')
    a(f'v_add_f32 v{M}, v{M}, v{M+1}')
    a(f'v_add_f32 v{M+2}, v{M+2}, v{M+3}')
    a(f'v_add_f32 v{M}, v{M}, v{M+2}')
    red(M, M+2)
    a(f'v_mul_f32 v{M}, {f32(1/64)}, v{M}')
    for i in range(8): a(f'v_sub_f32 v{D+i}, v{X+i}, v{M}')
    a(f'v_mul_f32 v{M+1}, v{D}, v{D}')
    a(f'v_mul_f32 v{M+2}, v{D+1}, v{D+1}')
    for i in range(2, 8): a(f'v_fmac_f32 v{M+1+(i&1)}, v{D+i}, v{D+i}')
    a(f'v_add_f32 v{M+1}, v{M+1}, v{M+2}')
    red(M+1, M+2)
    a('''
v_and_b32 v12, 7, v2
v_lshlrev_b32 v12, 6, v12
''')
    a(f'v_add_u32 v12, {L_STAT}, v12')
    a('s_lshl_b32 s12, s3, 3')
    a('v_add_u32 v13, s12, v12')
    a('s_mov_b64 exec, 0xff')
    a(f'ds_write_b64 v13, v[{M}:{M+1}]')
    a('s_mov_b64 exec, -1')
    a('''
s_lshr_b32 s12, s6, 5
s_lshl_b32 s12, s12, 15
s_and_b32 s14, s6, 31
s_lshl_b32 s14, s14, 4
s_add_u32 s12, s12, s14
s_lshl_b32 s14, s3, 12
s_add_u32 s12, s12, s14
''')
    a(f's_add_u32 s12, s12, {H2B}')
    a('''
v_lshrrev_b32 v13, 3, v2
v_lshlrev_b32 v13, 9, v13
v_and_b32 v15, 7, v2
v_lshl_add_u32 v13, v15, 4, v13
s_waitcnt lgkmcnt(0)
s_barrier
''')
    for i in range(4): a(f'ds_read_b128 v[{ST+4*i}:{ST+4*i+3}], v12 offset:{16*i}')
    a('s_waitcnt lgkmcnt(0)')
    a(f'v_add_f32 v{M}, v{ST}, v{ST+2}')
    a(f'v_add_f32 v{M+1}, v{ST+1}, v{ST+3}')
    for i in range(2, 8):
        a(f'v_add_f32 v{M}, v{M}, v{ST+2*i}')
        a(f'v_add_f32 v{M+1}, v{M+1}, v{ST+2*i+1}')
    a(f'v_mul_f32 v{M}, {f32(1/8)}, v{M}')
    for i in range(8): a(f'v_sub_f32 v{ST+2*i}, v{ST+2*i}, v{M}')
    a(f'v_mul_f32 v{M+2}, v{ST}, v{ST}')
    for i in range(1, 8): a(f'v_fmac_f32 v{M+2}, v{ST+2*i}, v{ST+2*i}')
    a(f'v_mul_f32 v{M+1}, {f32(1/512)}, v{M+1}')
    a(f'v_fmac_f32 v{M+1}, {f32(1/8)}, v{M+2}')
    a(f'v_add_f32 v{M+1}, {f32(1e-5)}, v{M+1}')
    a(f'v_rsq_f32 v{M+1}, v{M+1}')
    for i in range(8): a(f'v_sub_f32 v{X+i}, v{X+i}, v{M}')
    for i in range(8): a(f'v_mul_f32 v{CB+i}, v{CB+i}, v{M+1}')
    for i in range(8): a(f'v_fmac_f32 v{SB+i}, v{X+i}, v{CB+i}')
    for i in range(4): a(f'v_cvt_pk_bf16_f32 v{D+i}, v{SB+2*i}, v{SB+2*i+1}')
    a(f'buffer_store_dwordx4 v[{D}:{D+3}], v13, s[20:23], s12 offen {STH}')
    stamp(a, 6) if 'l' not in DIAG and 'F' not in DIAG else None
    a('''
s_lshl_b32 s12, s5, 3
s_add_u32 s12, s12, s3
s_lshl_b32 s12, s12, 2
v_mov_b32 v6, s12
v_mov_b32 v7, s59
v_bfe_u32 v16, v2, 4, 1
v_lshlrev_b32 v12, 16, v16
v_lshrrev_b32 v17, 5, v2
v_lshl_add_u32 v12, v17, 10, v12
v_bfe_u32 v17, v2, 2, 2
v_lshl_add_u32 v12, v17, 7, v12
v_bfe_u32 v13, v2, 1, 1
v_lshl_add_u32 v12, v13, 3, v12
v_and_b32 v13, 1, v2
v_and_b32 v17, 2, v17
v_xor_b32 v13, v13, v17
v_lshlrev_b32 v16, 2, v16
v_xor_b32 v13, v13, v16
v_lshl_add_u32 v8, v13, 4, v12
v_xor_b32 v9, 32, v8
v_xor_b32 v10, 64, v8
v_xor_b32 v11, 0x60, v8
s_lshl_b32 s11, s4, 3
s_add_u32 s11, s11, s3
s_mul_i32 s14, s11, 0x1c000
s_lshl_b32 s11, s11, 15
s_lshl_b32 s13, s5, 12
s_add_u32 s14, s14, s13
v_and_b32 v12, 31, v2
s_lshl_b32 s13, s3, 7
v_lshl_add_u32 v12, v12, 2, s13
''')
    a(f'v_mov_b32 v15, {f32(K1C)}')
    a(f's_mov_b32 s42, {f32(K1C)}')
    a(f's_mov_b32 s43, {f32(K0C)}')
    a(f's_add_u32 s11, s11, {H2B}')
    a(f's_add_u32 s14, s14, {WS_ACTF}')
    publish(a, 1, 6, 7, 's61')
    GB = 56
    a("""
s_and_b32 s15, s5, 7
s_lshl_b32 s17, s15, 1
s_and_b32 s6, s3, 1
s_add_u32 s17, s17, s6
s_lshl_b32 s17, s17, 2
s_lshr_b32 s8, s3, 2
s_add_u32 s17, s17, s8
s_lshl_b32 s17, s17, 4
s_lshl_b32 s38, s17, 1
v_lshrrev_b32 v16, 5, v2
""")
    a(f's_add_u32 s38, s38, {L_GB}')
    a('v_lshl_add_u32 v16, v16, 6, s38')
    a(f'ds_read_b128 v[{GB}:{GB+3}], v16')
    a(f'ds_read_b128 v[{GB+4}:{GB+7}], v16 offset:16')
    a("""
v_lshrrev_b32 v16, 3, v2
v_and_b32 v17, 7, v2
v_and_b32 v18, 2, v16
v_lshlrev_b32 v18, 1, v18
v_xor_b32 v17, v17, v18
v_lshlrev_b32 v14, 10, v16
v_lshl_add_u32 v14, v17, 4, v14
s_lshl_b32 s10, s15, 7
s_lshr_b32 s9, s5, 3
s_mul_i32 s13, s9, 7
s_mul_i32 s16, s15, 3
s_add_u32 s13, s13, s16
s_add_u32 s13, s13, s3
s_cmp_ge_u32 s13, 28
s_cselect_b32 s38, 28, 0
s_sub_u32 s13, s13, s38
s_mov_b32 s39, s13
s_lshl_b32 s41, s3, 11
""")
    WSLOT = [131072, 147456, 0, 16384, 65536, 81920]
    ASLOT = [32768, 49152, 98304, 114688]
    wloc = {i: WSLOT[i] for i in range(6)}
    aloc = {i: ASLOT[i] for i in range(4)}
    def nxt_stage(r):
        a(f's_add_u32 s{r}, s{r}, 8')
        a(f's_sub_u32 s38, s{r}, 28')
        a(f's_cmp_ge_u32 s{r}, 28')
        a(f's_cselect_b32 s{r}, s38, s{r}')
    def ks_of(s, r, dst):
        a(f's_lshl_b32 s{dst}, s{r}, 2')
        c0 = (8*s)//28
        if c0: a(f's_add_u32 s{dst}, s{dst}, {c0}')
        if s in (3, 10): a(f's_add_u32 s{dst}, s{dst}, s8')
    def wd_dma(s, k):
        if k == 0:
            ks_of(s, 13, 18)
            a('s_lshl_b32 s18, s18, 14')
            a('s_add_u32 s18, s18, s10')
        a(f's_add_u32 s16, s41, {wloc[s] + k*1024}')
        a('s_mov_b32 m0, s16')
        if k: a('s_add_u32 s18, s18, 0x2000')
        a('buffer_load_dwordx4 v14, s[72:75], s18 offen lds')
        if k and s < 13: nxt_stage(13)
    a("""
s_lshl_b32 s12, s3, 5
s_add_u32 s12, s12, s5
s_lshl_b32 s12, s12, 2
s_add_u32 s12, s12, 1024
v_mov_b32 v6, s12
""")
    a('s_cmp_ge_u32 s5, 28')
    a('s_cbranch_scc1 M_SPARE')
    poll(a, 1, 12, 13, 's61', 1)
    stamp(a, 7) if 'l' not in DIAG and 'F' not in DIAG else None

    BREG, AC1, AR, NR, LOOK = 128, 64, 32, 6, 4
    KS = E_('KS', 20)
    def rd(c, ks, reg):
        a(f'ds_read_b64_tr_b16 v[{reg}:{reg+1}], v{8+c} offset:{ks*2048}')
        a(f'ds_read_b64_tr_b16 v[{reg+2}:{reg+3}], v{8+c} offset:{ks*2048+512}')
    def store(c, reg):
        if E_('APL', 0):
            a('s_cmp_lg_u32 s60, 0')
            a(f's_cbranch_scc1 M_SP{c}')
            a(f'buffer_store_dwordx4 v[{reg}:{reg+3}], v3, s[20:23], s14 offen offset:{c*1024} sc0 sc1')
            a(f's_branch M_SQ{c}')
            a(f'M_SP{c}:')
            a(f'buffer_store_dwordx4 v[{reg}:{reg+3}], v3, s[20:23], s14 offen offset:{c*1024} {os.environ.get("APF", "")}')
            a(f'M_SQ{c}:')
        else:
            a(f'buffer_store_dwordx4 v[{reg}:{reg+3}], v3, s[20:23], s14 offen offset:{c*1024} {STA}')
    def epi(c):
        o = []
        for i in range(4): o += gelu_ops(AC1+16*c, AC1+16*c+8, 16 + 2*(i & 1), 24 + 4*(c & 1), i)
        o.append(('STORE', c))
        return o
    def emit(o):
        if isinstance(o, tuple): store(o[1], 24 + 4*(o[1] & 1))
        else: a(o)
    def f2_setup():
        a("""
s_bfe_u32 s7, s3, 0x10001
v_lshrrev_b32 v16, 5, v2
v_lshlrev_b32 v8, 10, v16
v_bfe_u32 v17, v2, 2, 2
v_lshl_add_u32 v8, v17, 7, v8
v_bfe_u32 v5, v2, 1, 1
v_lshl_add_u32 v8, v5, 3, v8
v_and_b32 v5, 1, v2
v_lshlrev_b32 v5, 1, v5
v_bfe_u32 v9, v2, 4, 1
v_add_u32 v5, v5, v9
v_and_b32 v17, 2, v17
v_lshl_add_u32 v5, v17, 1, v5
s_lshl_b32 s38, s6, 2
v_xor_b32 v5, s38, v5
v_lshl_add_u32 v8, v5, 4, v8
s_lshl_b32 s38, s8, 13
v_add_u32 v8, s38, v8
v_add_u32 v9, 0x10000, v8
v_add_u32 v13, 0x20000, v8
s_lshl_b32 s38, s7, 13
s_lshl_b32 s40, s8, 12
s_add_u32 s38, s38, s40
v_add_u32 v10, s38, v3
v_add_u32 v11, 0x10000, v10
v_add_u32 v0, 0x20000, v10
s_lshl_b32 s40, s4, 2
s_add_u32 s40, s40, s9
s_mul_i32 s11, s40, 0x38000
""")
        a(f's_add_u32 s11, s11, {WS_ACTF}')
        a("""
s_lshl_b32 s40, s40, 1
s_add_u32 s40, s40, s7
s_lshl_b32 s40, s40, 15
s_add_u32 s40, s40, s17
v_and_b32 v12, 31, v2
v_min_u32 v5, 27, v12
v_lshlrev_b32 v12, 10, v12
v_lshl_add_u32 v12, v16, 5, v12
v_add_u32 v12, s40, v12
v_lshl_add_u32 v5, v16, 5, v5
s_lshl_b32 s38, s9, 8
s_add_u32 s38, s38, 1024
v_lshl_add_u32 v5, v5, 2, s38
""")
    SPAN = E_('F1SPAN', 52)
    def tail(c):
        A3 = AC1 + 16*c
        out = 24 + 4*(c & 1)
        if E_('PK', 0):
            G_, U_, T_ = A3, A3 + 8, 16
            pr = lambda b, i: f'v[{b+2*i}:{b+2*i+1}]'
            for i in range(4): a(f'v_pk_mul_f32 {pr(T_,i)}, {pr(G_,i)}, {pr(G_,i)}')
            for i in range(4): a(f'v_pk_fma_f32 {pr(T_,i)}, {pr(T_,i)}, s[42:43], s[42:43] op_sel:[0,0,1] op_sel_hi:[1,0,1]')
            for i in range(4): a(f'v_pk_mul_f32 {pr(T_,i)}, {pr(T_,i)}, {pr(G_,i)}')
            for i in range(8): a(f'v_exp_f32 v{T_+i}, v{T_+i}')
            for i in range(4): a(f'v_pk_mul_f32 {pr(G_,i)}, {pr(G_,i)}, {pr(U_,i)}')
            for i in range(4): a(f'v_pk_add_f32 {pr(T_,i)}, {pr(T_,i)}, 1.0 op_sel_hi:[1,0]')
            for i in range(8): a(f'v_rcp_f32 v{T_+i}, v{T_+i}')
            for i in range(4): a(f'v_pk_mul_f32 {pr(G_,i)}, {pr(G_,i)}, {pr(T_,i)}')
            for i in range(4): a(f'v_cvt_pk_bf16_f32 v{out+i}, v{G_+2*i}, v{G_+2*i+1}')
        else:
            seqs = [[o for o in gelu_ops(A3, A3+8, 16 + 2*i, out, i) if o != 's_nop 0'] for i in range(4)]
            for k in range(0, len(seqs[0]), 2):
                for s_ in seqs:
                    for o in s_[k:k+2]: a(o)
        store(c, out)
    seq = [(c, ks) for ks in range(16) for c in range(4)] + [(c, ks) for c in range(4) for ks in range(16, 32)]
    def step(n, wv=''):
        c, ks = seq[n]
        if n + LOOK < len(seq): rd(*seq[n + LOOK], AR + 4*((n + LOOK) % NR))
        a(f's_waitcnt lgkmcnt({2*(min(len(seq)-1, n+LOOK) - n)}){wv}')
        cc = '0' if ks == 0 else f'v[{AC1+16*c}:{AC1+16*c+15}]'
        r = AR + 4*(n % NR)
        a(f'v_mfma_f32_32x32x16_bf16 v[{AC1+16*c}:{AC1+16*c+15}], v[{r}:{r+3}], v[{BREG+4*ks}:{BREG+4*ks+3}], {cc}')
        if 'f' in DIAG and n in (0, 32, 63, 96, 127): stamp(a, 1 + (0, 32, 63, 96, 127).index(n))
    def half1(young):
        vm = []
        def bld(ks):
            if ks & 3 == 0 and ks: a('s_add_u32 s11, s11, 4096')
            a(f'buffer_load_dwordx4 v[{BREG+4*ks}:{BREG+4*ks+3}], v3, s[20:23], s11 offen offset:{(ks&3)*1024} {LD}')
            vm.append(ks)
        if young:
            a('s_waitcnt lgkmcnt(0)')
            a('s_barrier')
            a('s_barrier')
            for ks in range(16): bld(ks)
        else:
            for ks in range(NL0): bld(ks)
            a('s_waitcnt lgkmcnt(0)')
            a('s_barrier')
        for n in range(LOOK): rd(*seq[n], AR + 4*(n % NR))
        for n in range(64):
            c, ks = seq[n]
            if not young and len(vm) < 16:
                bld(len(vm))
                if len(vm) == 16: a('s_barrier')
            if young and n >= 64 - 16*PY and (64 - n) % PY == 0: bld(len(vm))
            if not young and n >= LB0 and len(vm) < 32 and n % 4 == 2: bld(len(vm))
            step(n, f' vmcnt({len(vm) - vm.index(ks) - 1})' if c == 0 else '')
        while len(vm) < 32: bld(len(vm))
    NL0, PY, LB0 = E_('NL0', 10), E_('PY', 2), E_('LB0', 40)
    a('s_cmp_ge_u32 s3, 4')
    a('s_cbranch_scc1 M_F1Y')
    half1(False)
    a('s_branch M_F1J')
    a('M_F1Y:')
    half1(True)
    a('M_F1J:')
    a('s_barrier')
    if 'e' in DIAG: stamp(a, 3)
    wdq = [(s_, k) for s_ in range(6) for k in range(2)]
    nd = 0
    WDN = E_('WDN', 70)
    gops = []
    for n in range(64, 128):
        step(n, f' vmcnt({79 - n + nd})' if n < 80 else '')
        if wdq and n >= WDN and (n - WDN) % 3 == 0: wd_dma(*wdq.pop(0)); nd += 1
        GI = E_('GI', 0)
        if n == 95: nd95 = nd
        if n == E_('EFN', 109): flag_only(a, '2e', 6, 7, 's61', 1024, nd - nd95)
        if n == E_('EFN', 109) and E_('RT', 0):
            a('v_lshlrev_b32 v4, 7, v2')
            a('s_mov_b64 exec, 0xffff')
            a('buffer_load_dword v1, v4, s[20:23], s14 offen sc1')
            a('s_mov_b64 exec, -1')
        if GI == 0:
            if n % 16 == 15: tail(seq[n][0])
        else:
            if n % 16 == 2 and n > 80:
                c_ = seq[n][0] - 1
                A3 = AC1 + 16*c_; out = 24 + 4*(c_ & 1)
                sq = [[o for o in gelu_ops(A3, A3+8, 16 + 2*i, out, i) if o != 's_nop 0'] for i in range(4)]
                for k in range(0, len(sq[0]), 2):
                    for s2 in sq: gops.extend(s2[k:k+2])
                gops.append(('STORE', c_))
            for _ in range(E_('GPER', 5)):
                if gops: emit(gops.pop(0))
            if n == 127:
                while gops: emit(gops.pop(0))
                tail(3)
    assert not wdq
    stamp(a, 8) if 'l' not in DIAG and 'F' not in DIAG else None
    f2_setup()
    assert 'sc1' in STA
    a('s_waitcnt vmcnt(2)')
    a('s_branch M_F2')
    a('M_SPARE:')
    a('s_waitcnt vmcnt(0) lgkmcnt(0)')
    a('s_barrier')
    a('''
s_sub_u32 s7, s5, 28
s_lshl_b32 s7, s7, 3
s_add_u32 s7, s7, s3
s_lshr_b32 s36, s7, 2
s_lshl_b32 s36, s36, 16
s_and_b32 s37, s7, 3
s_lshl_b32 s37, s37, 13
s_add_u32 s36, s36, s37
s_add_u32 s36, s36, 0x8000
v_lshlrev_b32 v4, 7, v2
s_lshr_b32 s37, s7, 1
s_lshl_b32 s37, s37, 16
s_and_b32 s7, s7, 1
s_lshl_b32 s7, s7, 13
s_add_u32 s37, s37, s7
''')
    SPO = os.environ.get('SPO', '231')
    def t23():
        for i in range(4):
            a(f'buffer_load_dword v{16+i}, v4, s[72:75], s36 offen')
            if i < 3: a('s_add_u32 s36, s36, 0x80000')
    def t1(c):
        a(f's_add_u32 s7, s37, {c*16384}')
        for i in range(2):
            a(f'buffer_load_dword v{20+2*c+i}, v4, s[72:75], s7 offen')
            if i < 1: a('s_add_u32 s7, s7, 0x100000')
    for ch in SPO:
        if ch == '2': t23()
        if ch == '1': t1(1)
        if ch == '0': t1(0)
    for s_ in range(6):
        for k in range(2): wd_dma(s_, k)
    f2_setup()
    a('s_waitcnt vmcnt(0)')

    a('M_F2:')
    AC2, AF, BF, X2 = 16, 32, 64, 80
    a('s_cmp_lg_u32 s3, 0')
    a('s_cbranch_scc1 M_NP2')
    poll(a, 2, 5, 16, 's61', 2)
    a('M_NP2:')
    a('s_barrier')
    stamp(a, 9) if 'l' not in DIAG and 'F' not in DIAG else None
    vm = []
    def issue_a(s_):
        ks_of(s_, 39, 19)
        a('s_lshl_b32 s19, s19, 10')
        a('s_add_u32 s19, s19, s11')
        for k in range(2):
            a(f's_add_u32 s16, s63, {aloc[s_] + k*8192}')
            a('s_mov_b32 m0, s16')
            if k: a('s_add_u32 s19, s19, 0x1c000')
            a(f'buffer_load_dwordx4 v3, s[20:23], s19 offen {LD} lds')
        vm.extend([s_]*2)
        if s_ < 13: nxt_stage(39)
    AL = E_('AL', -1)
    items = sorted([('a', i) for i in range(4, 14)] + [('w', i) for i in range(6, 14)], key=lambda x: (x[1] - (AL if x[0] == 'a' else 0), x[0]))
    for s_ in range(4): issue_a(s_)
    a(f'global_load_dwordx4 v[{X2}:{X2+3}], v12, s[56:57] {LD}')
    vm.append(3)
    flag_only(a, 2, 6, 7, 's61', 0, len(vm))
    vm.append(99)
    if E_('RT', 0) == 1:
        a('v_lshlrev_b32 v4, 7, v2')
        a('s_mov_b64 exec, 0xffff')
        a('buffer_load_dword v1, v4, s[20:23], s14 offen offset:2048 sc1')
        a('s_mov_b64 exec, -1')
        vm.append(99)
    FCK = items.index(('a', 7))//2
    FR = lambda s_: 96 + 32*(s_ & 1)
    def reads(s_):
        wo_, ao = wloc[s_], aloc[s_]
        va = (8, 9, 13)[wo_ >> 16]; vb = (10, 11, 0)[ao >> 16]
        A_, B_ = FR(s_), FR(s_) + 16
        o = []
        for j in range(4):
            o.append(f'ds_read_b128 v[{B_+4*j}:{B_+4*j+3}], v{vb} offset:{(ao & 0xffff) + j*1024}')
            o.append(f'ds_read_b64_tr_b16 v[{A_+4*j}:{A_+4*j+1}], v{va} offset:{(wo_ & 0xffff) + j*2048}')
            o.append(f'ds_read_b64_tr_b16 v[{A_+4*j+2}:{A_+4*j+3}], v{va} offset:{(wo_ & 0xffff) + j*2048 + 512}')
        return o
    vw = lambda s_: len(vm) - 1 - max(i for i, x in enumerate(vm) if 0 <= x <= s_)
    a(f's_waitcnt vmcnt({vw(0)})')
    a('s_barrier')
    if 'e' in DIAG: stamp(a, 4)
    for o in reads(0): a(o)
    if FCK - E_('FLD', 2) < 0:
        a('buffer_load_dword v6, v5, s[20:23], s61 offen sc1'); vm.append(-1)
    for s_ in range(14):
        if s_ == FCK:
            a('s_cmp_lg_u32 s3, 0')
            a('s_cbranch_scc1 M_NP3')
            a(f's_waitcnt vmcnt({len(vm) - 1 - vm.index(-1)})')
            a('v_cmp_eq_u32 vcc, s59, v6')
            a('s_cmp_eq_u64 vcc, -1')
            a('s_cbranch_scc1 M_G3')
            poll(a, 3, 5, 6, 's61', 3)
            a('M_NP3:')
        if s_ < 13:
            a(f's_waitcnt vmcnt({vw(s_ + 1)}) lgkmcnt(0)')
            a('s_barrier')
        else: a('s_waitcnt lgkmcnt(0)')
        if 's' in DIAG and s_ in (0, 3, 6, 9, 12): stamp(a, 1 + s_//3)
        rd_ = reads(s_ + 1) if s_ < 13 else []
        A_, B_ = FR(s_), FR(s_) + 16
        for j in range(4):
            cc = '0' if (s_ == 0 and j == 0) else f'v[{AC2}:{AC2+15}]'
            a(f'v_mfma_f32_32x32x16_bf16 v[{AC2}:{AC2+15}], v[{A_+4*j}:{A_+4*j+3}], v[{B_+4*j}:{B_+4*j+3}], {cc}')
            for o in rd_[3*j:3*j+3]: a(o)
        if s_ == FCK - E_('FLD', 2):
            a('buffer_load_dword v6, v5, s[20:23], s61 offen sc1'); vm.append(-1)
        for slot in (aloc[s_], wloc[s_]):
            if not items: break
            kind_, st_ = items.pop(0)
            if kind_ == 'a':
                assert st_ < 7 or s_ >= FCK
                aloc[st_] = slot; issue_a(st_)
            else:
                wloc[st_] = slot
                for k in range(2): wd_dma(st_, k)
                vm.extend([st_]*2)
    stamp(a, 10) if 'l' not in DIAG and 'F' not in DIAG else None
    xs = aloc[11]
    assert xs not in (aloc[12], aloc[13], wloc[12], wloc[13])
    a('s_lshl_b32 s38, s3, 11')
    a(f's_add_u32 s40, s38, {xs}')
    a('v_add_u32 v4, s40, v3')
    a('s_xor_b32 s38, s38, 0x2000')
    a(f's_add_u32 s40, s38, {xs}')
    a('v_add_u32 v15, s40, v3')
    unpack(a, 88, X2, 4)
    a('s_cmp_ge_u32 s3, 4')
    a('s_cbranch_scc1 F2_HI')
    a(f'ds_write_b128 v4, v[{AC2+8}:{AC2+11}]')
    a(f'ds_write_b128 v4, v[{AC2+12}:{AC2+15}] offset:1024')
    a('s_branch F2_X')
    a('F2_HI:')
    a('s_nop 2')
    a(f'ds_write_b128 v4, v[{AC2}:{AC2+3}]')
    a(f'ds_write_b128 v4, v[{AC2+4}:{AC2+7}] offset:1024')
    for i in range(8): a(f'v_mov_b32 v{AC2+i}, v{AC2+8+i}')
    a('F2_X:')
    a('s_waitcnt lgkmcnt(0)')
    a('s_barrier')
    a(f'ds_read_b128 v[{AF}:{AF+3}], v15')
    a(f'ds_read_b128 v[{AF+4}:{AF+7}], v15 offset:1024')
    a('s_waitcnt lgkmcnt(0)')
    for i in range(8): a(f'v_add_f32 v{AC2+i}, v{AC2+i}, v{AF+i}')
    for i in range(8): a(f'v_fmac_f32 v{88+i}, v{AC2+i}, v{GB+i}')
    for i in range(4): a(f'v_cvt_pk_bf16_f32 v{X2+i}, v{88+2*i}, v{89+2*i}')
    a(f'global_store_dwordx4 v12, v[{X2}:{X2+3}], s[56:57] {STO}')
    for off in [int(x, 0) for x in os.environ.get('XLOAD', '').split(',') if x]:
        a('s_lshl_b32 s12, s2, 7')
        a(f's_add_u32 s12, s12, {off}')
        a('v_mov_b32 v0, s12')
        a('global_load_dword v1, v0, s[30:31]')
        a('s_waitcnt vmcnt(0)')
    prof_end(a, 0, 3, 30)
    a('M_END2:')
    a('s_endpgm')

    a('M_SLOW:')
    a('v_mov_b32 v12, 0xff800000')
    a(f's_mov_b32 s12, {WS_KVF}')
    a('M_SL1:')
    a(f'buffer_load_dwordx4 v[{KK}:{KK+3}], v3, s[20:23], s12 offen sc1')
    a('s_waitcnt vmcnt(0)')
    a(f'v_mfma_f32_32x32x16_bf16 v[{S0}:{S0+15}], v[{KK}:{KK+3}], v[{Q}:{Q+3}], 0')
    for i in range(0, 16, 2): a(f'v_max3_f32 v12, v12, v{S0+i}, v{S0+i+1}')
    a('s_add_u32 s12, s12, 2048')
    a(f's_cmp_lt_u32 s12, {WS_KVF + 131072}')
    a('s_cbranch_scc1 M_SL1')
    a('''
v_mov_b32 v13, v12
v_permlane32_swap_b32 v12, v13
v_max_f32 v12, v12, v13
''')
    for i in range(16): a(f'v_sub_f32 v{C+i}, 0, v12')
    for i in range(16): a(f'v_mov_b32 v{O+i}, 0')
    for i in range(8): a(f'v_mov_b32 v{VA+i}, 0x3f803f80')
    a('''
v_lshl_add_u32 v13, v5, 4, v4
v_lshlrev_b32 v13, 4, v13
''')
    a(f's_mov_b32 s12, {WS_KVF}')
    a('M_SL2:')
    a(f'buffer_load_dwordx4 v[{KK}:{KK+3}], v3, s[20:23], s12 offen sc1')
    a('s_mov_b64 exec, s[32:33]')
    a(f'buffer_load_dwordx4 v[{VA}:{VA+3}], v13, s[20:23], s12 offen offset:1024 sc1')
    a(f'buffer_load_dwordx4 v[{VB}:{VB+3}], v13, s[20:23], s12 offen offset:1536 sc1')
    a('s_mov_b64 exec, -1')
    a('s_waitcnt vmcnt(0)')
    a(f'v_mfma_f32_32x32x16_bf16 v[{S0}:{S0+15}], v[{KK}:{KK+3}], v[{Q}:{Q+3}], v[{C}:{C+15}]')
    for i in range(16): a(f'v_exp_f32 v{S0+i}, v{S0+i}')
    for i in range(8): a(f'v_cvt_pk_bf16_f32 v{S1+i}, v{S0+2*i}, v{S0+2*i+1}')
    a(f'v_mfma_f32_32x32x16_bf16 v[{O}:{O+15}], v[{VA}:{VA+3}], v[{S1}:{S1+3}], v[{O}:{O+15}]')
    a(f'v_mfma_f32_32x32x16_bf16 v[{O}:{O+15}], v[{VB}:{VB+3}], v[{S1+4}:{S1+7}], v[{O}:{O+15}]')
    a('s_add_u32 s12, s12, 2048')
    a(f's_cmp_lt_u32 s12, {WS_KVF + 131072}')
    a('s_cbranch_scc1 M_SL2')
    a('s_nop 15')
    a('s_branch M_FIN')
    a('CODE_END:')
    a('s_endpgm')
    return K
```

```python
from common import *
from k3 import gelu_ops, K1C, K0C
from fphase import fphase

L_ONES = 131072
L_STAT = 131072 + 1024
L_OX   = 147072
L_MODS = L_OX + 8448
L_GB   = 161792
L_END  = 163840
Q, C, S0, S1, P, O, KK, VA, VB = 16, 20, 36, 52, 68, 76, 92, 96, 100
XR, WO, NPRE = 104, 108, 36
E_ = lambda k, d: int(os.environ.get(k, str(d)))
PRIO_PERIOD, PRIO_HI = E_('PRIO_PERIOD', 8), E_('PRIO_HI', 6)
TOUCH, TSPAN, WOSTART = E_('TOUCH', 14), E_('TSPAN', 42), E_('WOSTART', 16)
FORCE_SLOW = E_('FORCE_SLOW', 0)
NP1 = E_('NP1', 2)
WD0 = E_('WD0', 8)
PRE = os.environ.get('PRE', 'h')
W1F = os.environ.get('W1F', 'nt')
STA = os.environ.get('STA', 'sc0 sc1')
STH = os.environ.get('STH', '')
STO = os.environ.get('STO', '')
TCH = os.environ.get('TCH', 'x')
ATF = os.environ.get('ATF', '')
DIAG = os.environ.get('DIAG', '')
H2B = WS_Q
LD = os.environ.get('LD', 'sc1')

def tile(a, t, side=(), last=False):
    side = list(side)
    def sd():
        if side: side.pop(0)()
    b = t & 1
    S = S1 if b else S0; SN = S0 if b else S1
    E = lambda i: a(f'v_exp_f32 v{S+i}, v{S+i}')
    Cv = lambda i: a(f'v_cvt_pk_bf16_f32 v{S+i}, v{S+2*i}, v{S+2*i+1}')
    E(0)
    a(f'v_cvt_pk_bf16_f32 v{SN+7}, v{SN+14}, v{SN+15}')
    E(1); E(2); Cv(0)
    a('s_waitcnt lgkmcnt(2)')
    a(f'v_mfma_f32_32x32x16_bf16 v[{O}:{O+15}], v[{VB}:{VB+3}], v[{SN+4}:{SN+7}], v[{O}:{O+15}]')
    a(f'ds_read_b128 v[{VB}:{VB+3}], v9 offset:{t*2048+512}')
    E(3); E(4); Cv(1); sd(); E(5); E(6); Cv(2)
    if not last:
        a('s_waitcnt lgkmcnt(2)')
        a(f'v_mfma_f32_32x32x16_bf16 v[{SN}:{SN+15}], v[{KK}:{KK+3}], v[{Q}:{Q+3}], v[{C}:{C+15}]')
        a(f'ds_read_b128 v[{KK}:{KK+3}], v8 offset:{(t+2)*2048}')
    else: sd()
    E(7); E(8); Cv(3); E(9); E(10)
    a(f's_waitcnt lgkmcnt({1 if last else 2})')
    a(f'v_mfma_f32_32x32x16_bf16 v[{O}:{O+15}], v[{VA}:{VA+3}], v[{S}:{S+3}], v[{O}:{O+15}]')
    if last: sd()
    elif t == 7:
        a('v_add_u32 v9, v9, v10')
        a(f'ds_read_b128 v[{VA}:{VA+3}], v9')
        a('v_add_u32 v8, 0x4000, v8')
    else:
        a(f'ds_read_b128 v[{VA}:{VA+3}], v9 offset:{(t+1)*2048}')
    Cv(4); E(11); E(12); Cv(5); sd(); E(13); E(14); Cv(6); E(15)
    while side: sd()

def publish(a, tag, voff, vone, soff, nyoung=0):
    a(f's_waitcnt vmcnt({nyoung})')
    a('s_mov_b64 exec, 1')
    a('s_cmp_lg_u32 s60, 0')
    a(f's_cbranch_scc1 M_PF{tag}')
    a('buffer_wbl2 sc1')
    a('s_waitcnt vmcnt(0)')
    a(f'buffer_store_dword v{vone}, v{voff}, s[20:23], {soff} offen sc0 sc1')
    a(f's_branch M_PX{tag}')
    a(f'M_PF{tag}:')
    a(f'buffer_store_dword v{vone}, v{voff}, s[20:23], {soff} offen')
    a(f'M_PX{tag}:')
    a('s_mov_b64 exec, -1')

def flag_only(a, tag, voff, vone, soff, off, n=0):
    a(f's_waitcnt vmcnt({n})')
    a('s_mov_b64 exec, 1')
    a('s_cmp_lg_u32 s60, 0')
    a(f's_cbranch_scc1 M_PF{tag}')
    a(f'buffer_store_dword v{vone}, v{voff}, s[20:23], {soff} offen offset:{off} sc0 sc1')
    a(f's_branch M_PX{tag}')
    a(f'M_PF{tag}:')
    a(f'buffer_store_dword v{vone}, v{voff}, s[20:23], {soff} offen offset:{off}')
    a(f'M_PX{tag}:')
    a('s_mov_b64 exec, -1')

def poll(a, tag, voff, vtmp, soff, code):
    a('s_mov_b32 s36, 0x80000')
    a(f'M_W{tag}:')
    a(f'buffer_load_dword v{vtmp}, v{voff}, s[20:23], {soff} offen offset:{1024 if code == 2 else 0} sc1')
    a('s_waitcnt vmcnt(0)')
    a(f'v_cmp_eq_u32 vcc, s59, v{vtmp}')
    a('s_cmp_eq_u64 vcc, -1')
    a(f's_cbranch_scc1 M_G{tag}')
    a('s_sleep 2')
    a('s_sub_u32 s36, s36, 1')
    a('s_cmp_lg_u32 s36, 0')
    a(f's_cbranch_scc1 M_W{tag}')
    a(f'M_G{tag}:')
    a('s_cmp_lg_u32 s60, 0')
    a(f's_cbranch_scc1 M_A{tag}')
    a('buffer_inv sc1')
    a('s_waitcnt vmcnt(0)')
    a(f'M_A{tag}:')

def mega():
    K = Kernel(NAME + '_kernel', 256, 512, L_END)
    a = K.a
    a('''
s_cmp_ge_u32 s2, 256
s_cbranch_scc1 M_END2
''')
    prof_init(a)
    fphase(a)
    stamp(a, 2)
    a("""
s_lshl_b32 s6, s4, 8
s_lshl_b32 s9, s5, 3
s_add_u32 s6, s6, s9
v_and_b32 v4, 31, v2
v_lshrrev_b32 v5, 5, v2
v_lshlrev_b32 v6, 5, v4
v_lshl_add_u32 v6, v5, 4, v6
v_lshrrev_b32 v7, 1, v4
v_lshlrev_b32 v7, 11, v7
v_lshl_add_u32 v7, v5, 10, v7
v_and_b32 v8, 1, v4
v_lshl_add_u32 v7, v8, 9, v7
s_add_u32 s9, s6, s3
s_and_b32 s9, s9, 31
s_lshl_b32 s9, s9, 4
s_lshl_b32 s10, s7, 15
s_add_u32 s9, s9, s10
""")
    a(f's_add_u32 s9, s9, {WS_Q}')
    a("""
v_mov_b32 v8, v3
v_lshl_add_u32 v9, v5, 4, v4
v_lshlrev_b32 v9, 4, v9
v_add_u32 v9, 0x400, v9
v_cmp_gt_u32 s[32:33], 16, v4
""")
    a(f'v_mov_b32 v11, {L_ONES+1024}')
    a("""
v_mov_b32 v12, 0x4000
v_and_b32 v13, 27, v4
v_cmp_eq_u32 s[34:35], 16, v13
v_add_u32 v13, 16, v11
v_cndmask_b32 v13, v13, v11, s[34:35]
v_add_u32 v14, 4, v4
v_and_b32 v14, 8, v14
v_lshl_add_u32 v13, v14, 3, v13
v_cndmask_b32 v9, v13, v9, s[32:33]
v_cndmask_b32 v10, 0, v12, s[32:33]
v_lshrrev_b32 v12, 1, v2
v_lshlrev_b32 v12, 11, v12
v_and_b32 v13, 1, v2
v_lshl_add_u32 v12, v13, 9, v12
v_add_u32 v12, v12, v11
""")
    for i in range(4): a(f'v_mov_b32 v{VA+i}, 0x3f803f80')
    for i in range(4): a(f'v_mov_b32 v{VB+i}, 0')
    for i in range(16): a(f'v_mov_b32 v{O+i}, 0')
    for i in range(4): a(f'v_mov_b32 v{S1+4+i}, 0')
    a(f'v_mov_b32 v{S1+14}, 0')
    a(f'v_mov_b32 v{S1+15}, 0')
    a("""
s_lshl_b32 s63, s3, 10
s_mov_b32 s10, s63
s_lshl_b32 s11, s4, 14
s_add_u32 s11, s11, s10
s_cmp_lg_u32 s3, 7
s_cbranch_scc1 M_NP0
v_and_b32 v13, 15, v2
s_lshl_b32 s14, s7, 6
s_lshl_b32 s15, s4, 7
""")
    a(f's_add_u32 s14, s14, {WS_QFL}')
    a(f's_add_u32 s15, s15, {WS_LFL}')
    a("""
v_lshl_add_u32 v13, v13, 2, s14
v_lshl_add_u32 v14, v4, 2, s15
v_cmp_gt_u32 vcc, 32, v2
s_mov_b32 s36, 0x80000
v_cndmask_b32 v13, v13, v14, vcc
M_W0:
buffer_load_dword v24, v13, s[20:23], 0 offen sc1
s_waitcnt vmcnt(0)
v_cmp_eq_u32 vcc, s59, v24
s_cmp_eq_u64 vcc, -1
s_cbranch_scc1 M_NP0
""")
    a(f's_sleep {E_("P0S", 1)}')
    a("""
s_sub_u32 s36, s36, 1
s_cmp_lg_u32 s36, 0
s_cbranch_scc1 M_W0
M_NP0:
s_barrier
""")
    stamp(a, 3)
    a(f'buffer_load_dwordx4 v[{Q}:{Q+3}], v7, s[20:23], s9 offen sc1')
    def dma(i):
        a('s_mov_b32 m0, s10')
        a(f's_add_u32 s12, s11, {WS_KVL if i < 2 else WS_KVF}')
        a('buffer_load_dwordx4 v3, s[20:23], s12 offen sc1 lds')
        if i < 15:
            a('s_add_u32 s10, s10, 8192')
            a('s_add_u32 s11, s11, 8192')
            a('s_and_b32 s11, s11, 0x1ffff')
    for i in range(2): dma(i)
    a('s_mov_b64 exec, 0xffff')
    a(f'ds_write_b128 v12, v[{VA}:{VA+3}]')
    a(f'ds_write_b128 v12, v[{VB}:{VB+3}] offset:16')
    a(f'ds_write_b128 v12, v[{VA}:{VA+3}] offset:64')
    a(f'ds_write_b128 v12, v[{VB}:{VB+3}] offset:80')
    a('s_mov_b64 exec, -1')
    a('s_waitcnt vmcnt(0) lgkmcnt(0)')
    a('s_barrier')
    stamp(a, 4)
    a('s_cmp_lg_u32 s3, 3')
    a('s_cbranch_scc1 M_NWF')
    a('s_cmp_ge_u32 s2, 128')
    a('s_cbranch_scc1 M_NWF')
    a('s_lshl_b32 s12, s2, 2')
    a(f's_add_u32 s12, s12, {WS_WFL}')
    a('v_mov_b32 v14, s59')
    a('v_mov_b32 v15, 0')
    a('s_mov_b64 exec, 1')
    a('buffer_store_dword v14, v15, s[20:23], s12 offen sc0 sc1')
    a('s_mov_b64 exec, -1')
    a('M_NWF:')
    a(f'ds_read_b128 v[{KK}:{KK+3}], v8')
    a('s_waitcnt lgkmcnt(0)')
    a(f'v_mfma_f32_32x32x16_bf16 v[{S0}:{S0+15}], v[{KK}:{KK+3}], v[{Q}:{Q+3}], 0')
    a(f'v_max3_f32 v12, v{S0}, v{S0+1}, v{S0+2}')
    a(f'v_max3_f32 v13, v{S0+3}, v{S0+4}, v{S0+5}')
    for i in range(6, 16, 4):
        a(f'v_max3_f32 v12, v12, v{S0+i}, v{S0+i+1}')
        if i + 2 < 16: a(f'v_max3_f32 v13, v13, v{S0+i+2}, v{S0+i+3}')
    a('''
v_max_f32 v12, v12, v13
v_mov_b32 v13, v12
v_permlane32_swap_b32 v12, v13
v_max_f32 v12, v12, v13
''')
    for i in range(16): a(f'v_sub_f32 v{C+i}, 0, v12')
    a(f'v_mfma_f32_32x32x16_bf16 v[{S0}:{S0+15}], v[{KK}:{KK+3}], v[{Q}:{Q+3}], v[{C}:{C+15}]')
    a(f'ds_read_b128 v[{KK}:{KK+3}], v8 offset:2048')
    a(f'ds_read_b128 v[{VA}:{VA+3}], v9')
    a('s_nop 7')

    nvm = [0]
    def wo_ld(f, reg):
        ks, c = f >> 2, f & 3
        a(f's_add_u32 s12, s13, {c*16384 + ks*1024}')
        a(f'buffer_load_dwordx4 v[{reg}:{reg+3}], v3, s[20:23], s12 offen sc1')
        nvm[0] += 1
    def wo_dma(f, ldsoff):
        ks, c = f >> 2, f & 3
        a(f's_add_u32 s10, s53, {ldsoff}')
        a('s_mov_b32 m0, s10')
        a(f's_add_u32 s12, s13, {c*16384 + ks*1024}')
        a('buffer_load_dwordx4 v3, s[20:23], s12 offen lds')
        nvm[0] += 1
    def ev_addr():
        a('''
v_and_b32 v13, 7, v2
v_add_u32 v13, s6, v13
v_lshlrev_b32 v14, 10, v13
v_lshrrev_b32 v15, 3, v2
v_lshl_add_u32 v14, v15, 4, v14
s_lshl_b32 s12, s3, 7
v_add_u32 v14, s12, v14
s_lshl_b32 s13, s3, 16
s_mul_i32 s62, s3, 28672
s_lshl_b32 s12, s5, 7
s_add_u32 s62, s62, s12
''')
        a(f's_add_u32 s13, s13, {WS_WOF}')
        a(f'global_load_dwordx4 v[{XR}:{XR+3}], v14, s[16:17]')
    xmark = [0]
    def ev_xld():
        a('s_getreg_b32 s58, hwreg(HW_REG_XCC_ID)')
        a('s_and_b32 s58, s58, 7')
        a('s_lshl_b32 s39, s4, 8')
        a(f's_add_u32 s39, s39, {WS_XT}')
        a('v_lshlrev_b32 v15, 3, v4')
        a('buffer_load_dwordx2 v[12:13], v15, s[20:23], s39 offen sc1')
        xmark[0] = nvm[0]
    def ev_xchk():
        a(f's_waitcnt vmcnt({nvm[0] - xmark[0]})')
        a("""
s_mov_b32 s38, 0x80000
M_XW:
v_cmp_eq_u32 vcc, s59, v13
s_cmp_eq_u64 vcc, -1
s_cbranch_scc1 M_XG
buffer_load_dwordx2 v[12:13], v15, s[20:23], s39 offen sc1
s_waitcnt vmcnt(0)
s_sub_u32 s38, s38, 1
s_cmp_lg_u32 s38, 0
s_cbranch_scc1 M_XW
M_XG:
v_cmp_eq_u32 vcc, s58, v12
s_cmp_eq_u64 vcc, -1
""")
        a(f's_cselect_b32 s60, {0 if FORCE_SLOW else 1}, 0')
        a('s_lshl_b32 s61, s4, 12')
        a(f's_add_u32 s61, s61, {WS_FLAG}')
    MW = 2
    def mod_a():
        a(f's_cmp_lg_u32 s3, {MW}')
        a('s_cbranch_scc1 M_MA')
        a('s_lshl_b32 s38, s5, 9')
        a(f's_add_u32 s38, s38, {WS_MODG + 8192}')
        mod_ld()
        a('M_MA:')
    def mod_ld():
        for p in range(4):
            a(f's_add_u32 s12, s38, {p*24576}')
            a(f'buffer_load_dwordx2 v[{240+2*p}:{241+2*p}], v12, s[20:23], s12 offen sc1')
    def mod_b():
        a(f's_cmp_lg_u32 s3, {MW}')
        a('s_cbranch_scc1 M_MB')
        a('s_mov_b32 s39, 0x40000')
        a('M_MW:')
        a('s_waitcnt vmcnt(0)')
        for p in range(4): a(f'v_xor_b32 v{241+2*p}, s59, v{241+2*p}')
        a('v_or3_b32 v241, v241, v243, v245')
        a('v_or_b32 v241, v241, v247')
        a('v_cmp_eq_u32 vcc, 0, v241')
        a('s_cmp_eq_u64 vcc, -1')
        a('s_cbranch_scc1 M_MG')
        mod_ld()
        a('s_sub_u32 s39, s39, 1')
        a('s_cmp_lg_u32 s39, 0')
        a('s_cbranch_scc1 M_MW')
        a('s_waitcnt vmcnt(0)')
        a('M_MG:')
        a('v_add_f32 v240, v240, v242')
        a('v_add_f32 v244, v244, v246')
        a('v_add_f32 v240, v240, v244')
        round_bf16(a, 240)
        a('s_lshr_b32 s12, s5, 3')
        a('s_cmp_lg_u32 s12, 2')
        a('s_cbranch_scc1 M_NOADD')
        a('v_add_f32 v240, 1.0, v240')
        round_bf16(a, 240)
        a('M_NOADD:')
        a('s_lshl_b32 s12, s4, 13')
        a('s_lshl_b32 s39, s5, 8')
        a('s_add_u32 s12, s12, s39')
        a(f's_add_u32 s12, s12, {WS_MODF}')
        a('v_lshlrev_b32 v241, 2, v2')
        a('buffer_store_dword v240, v241, s[20:23], s12 offen sc0 sc1')
        a('M_MB:')
        mk_[0] = nvm[0]
    mk_ = [0, 0, 0]
    def mod_c():
        a(f's_cmp_lg_u32 s3, {MW}')
        a('s_cbranch_scc1 M_MC')
        a('s_lshl_b32 s12, s4, 5')
        a('s_add_u32 s12, s12, s5')
        a('s_lshl_b32 s12, s12, 2')
        a(f's_add_u32 s12, s12, {WS_MFL}')
        a('v_mov_b32 v12, s59')
        a('v_mov_b32 v13, 0')
        a(f's_waitcnt vmcnt({nvm[0] - mk_[0]})')
        a('s_mov_b64 exec, 1')
        a('buffer_store_dword v12, v13, s[20:23], s12 offen sc0 sc1')
        a('s_mov_b64 exec, -1')
        a('M_MC:')
    def mod_d():
        a('s_lshl_b32 s38, s4, 7')
        a(f's_add_u32 s38, s38, {WS_MFL}')
        a('v_lshlrev_b32 v13, 2, v4')
        a('buffer_load_dword v12, v13, s[20:23], s38 offen sc1')
        mk_[1] = nvm[0]
    def mod_e():
        a(f's_waitcnt vmcnt({nvm[0] - mk_[1]})')
        a("""
s_mov_b32 s39, 0x80000
M_EW:
v_cmp_eq_u32 vcc, s59, v12
s_cmp_eq_u64 vcc, -1
s_cbranch_scc1 M_EG
s_sleep 2
buffer_load_dword v12, v13, s[20:23], s38 offen sc1
s_waitcnt vmcnt(0)
s_sub_u32 s39, s39, 1
s_cmp_lg_u32 s39, 0
s_cbranch_scc1 M_EW
M_EG:
s_cmp_ge_u32 s3, 6
""")
        a(f's_cselect_b32 s12, {L_GB - 6144}, {L_MODS}' if False else f's_mov_b32 s12, {L_MODS}')
        a(f's_cselect_b32 s12, {L_GB - 6144}, s12')
        a('s_add_u32 s12, s12, s63')
        a('s_mov_b32 m0, s12')
        a('s_lshl_b32 s12, s4, 13')
        a('s_add_u32 s12, s12, s63')
        a(f's_add_u32 s12, s12, {WS_MODF}')
        a('buffer_load_dwordx4 v3, s[20:23], s12 offen sc1 lds')
        mk_[2] = nvm[0]
    def prio(p, tag):
        def f():
            a('s_cmp_lt_u32 s3, 4')
            a(f's_cbranch_scc1 M_P{tag}')
            a(f's_setprio {p}')
            a(f'M_P{tag}:')
        return f
    def touch_setup():
        a('s_mul_i32 s54, s5, 57344')
        a('v_lshlrev_b32 v11, 7, v2')
        for r in (64, 68, 72):
            a(f's_and_b32 s{r+1}, s{r+1}, 0xffff')
            a(f's_mov_b32 s{r+2}, 1835008')
            a(f's_mov_b32 s{r+3}, 0x20000')
    def touch(u):
        def f():
            mat, k = u // 7, u % 7
            a(f's_cmp_lg_u32 s3, {u & 7}')
            a(f's_cbranch_scc1 M_T{u}')
            a(f's_add_u32 s55, s54, {k*8192}')
            a(f'buffer_load_dword v1, v11, s[{64+4*mat}:{67+4*mat}], s55 offen')
            a(f'M_T{u}:')
        return f
    side = {T: [] for T in range(64)}
    def gf_ld():
        a(f's_mov_b32 s15, {WS_GFL}')
        a('buffer_load_dwordx4 v[220:223], v3, s[20:23], s15 offen sc1')
    def gf_chk():
        a('s_mov_b32 s36, 0x80000')
        a('M_GW:')
        a('s_waitcnt vmcnt(0)')
        for r in (220, 221, 222, 223): a(f'v_xor_b32 v{r}, s59, v{r}')
        a("""
v_or3_b32 v220, v220, v221, v222
v_or_b32 v220, v220, v223
v_cmp_eq_u32 vcc, 0, v220
s_cmp_eq_u64 vcc, -1
s_cbranch_scc1 M_GG
s_sleep 4
""")
        gf_ld()
        a("""
s_sub_u32 s36, s36, 1
s_cmp_lg_u32 s36, 0
s_cbranch_scc1 M_GW
s_waitcnt vmcnt(0)
M_GG:
""")
        a('s_lshl_b32 s61, s4, 12')
        a(f's_add_u32 s61, s61, {WS_FLAG}')
    a('v_lshlrev_b32 v12, 3, v2')
    gf_ld()
    side[2].append(gf_chk)
    for i in range(2, 16): side[min(2 + (i-2)//2, 8)].append(lambda i=i: dma(i))
    side[5].append('vbar6')
    side[11].append('vbar')
    A0, MODT = E_('A0', 12), E_('MODT', 17)
    side[9].append(ev_addr)
    side[10].append(touch_setup)
    def wf_ld():
        a(f's_mov_b32 s15, {WS_WFL}')
        a('buffer_load_dwordx2 v[216:217], v12, s[20:23], s15 offen sc1')
    def wf_chk():
        a("""
s_mov_b32 s36, 0x80000
M_WW:
v_cmp_eq_u32 vcc, s59, v216
v_cmp_eq_u32 s[34:35], s59, v217
s_and_b64 vcc, vcc, s[34:35]
s_cmp_eq_u64 vcc, -1
s_cbranch_scc1 M_WG
s_sleep 4
buffer_load_dwordx2 v[216:217], v12, s[20:23], s15 offen sc1
s_waitcnt vmcnt(0)
s_sub_u32 s36, s36, 1
s_cmp_lg_u32 s36, 0
s_cbranch_scc1 M_WW
M_WG:
""")
    side[9].append(wf_ld)
    side[12].append(wf_chk)
    def bump():
        a('s_lshl_b32 s12, s2, 3')
        a('s_add_u32 s12, s12, s3')
        a('s_cmp_lg_u32 s12, 1')
        a('s_cbranch_scc1 M_NB')
        a('v_mov_b32 v220, s59')
        a('v_mov_b32 v221, 0')
        a(f's_mov_b32 s12, {WS_EPOCH}')
        a('s_mov_b64 exec, 1')
        a('buffer_store_dword v220, v221, s[20:23], s12 offen')
        a('s_mov_b64 exec, -1')
        a('M_NB:')
    side[10].append(bump)
    side[9].append(mod_a)
    side[12].append(mod_b)
    side[15].append(mod_c)
    side[E_('B0', 34) - 8].append(mod_d)
    side[E_('B0', 34) - 5].append(mod_e)
    NREG = 39
    treg = {f: WO + 4*f for f in range(37)}
    treg[37], treg[38] = P, P + 4
    NLDS = E_('NLDS', 4)
    def wo_park(j):
        f = NREG + j
        ks, c = f >> 2, f & 3
        if j == 0:
            a('s_lshl_b32 s10, s63, 1')
            a(f's_add_u32 s10, s10, {L_ONES}')
        else: a(f's_add_u32 s10, s63, {98304 + (j-1)*8192}')
        a('s_mov_b32 m0, s10')
        a(f's_add_u32 s12, s13, {c*16384 + ks*1024}')
        a('buffer_load_dwordx4 v3, s[20:23], s12 offen sc1 lds')
        nvm[0] += 1
    side[WOSTART].append(lambda: wo_park(0))
    if NLDS > 1:
        side[60].append('bar')
        for j in range(1, NLDS): side[61 + (j-1)//2].append(lambda j=j: wo_park(j))
    WOEND = E_('WOEND', 33)
    for f in range(NREG): side[WOSTART + f*(WOEND - WOSTART)//NREG].append(lambda f=f: wo_ld(f, treg[f]))
    order = []
    def w1setup():
        a("""
v_lshrrev_b32 v7, 3, v2
v_mul_u32_u24 v0, 3584, v7
v_and_b32 v15, 7, v2
v_and_b32 v7, 2, v7
v_xor_b32 v15, v15, v7
v_lshl_add_u32 v0, v15, 4, v0
v_xor_b32 v7, 64, v0
s_mov_b32 s44, s64
s_mov_b32 s45, s65
s_mov_b32 s47, 0x20000
s_mov_b32 s48, s68
s_mov_b32 s49, s69
s_mov_b32 s51, 0x20000
s_cmp_ge_u32 s5, 28
s_cselect_b32 s46, 0, s66
s_cselect_b32 s50, 0, s70
""")
    def w1dma(mat, g, fl=''):
        a(f's_add_u32 s36, s63, {mat*65536 + g*8192}')
        a('s_mov_b32 m0, s36')
        a(f's_add_u32 s37, s62, {g*8*28672}')
        a(f'buffer_load_dwordx4 v{7 if mat else 0}, s[{44+4*mat}:{47+4*mat}], s37 offen {fl} lds')
        order.append(('d', mat, g)); nvm[0] += 1
    B0 = E_('B0', 34)
    side[B0 - 2].append(w1setup)
    side[B0 - 1].append('mbar')
    for g in range(12):
        T = B0 + g*(E_('BEND', 58) - B0)//12
        if g == 8:
            assert T >= 50
            side[T - 1].append('bar')
        side[T].append(lambda g=g: w1dma(g >> 3, g & 7, W1F))
    def tch(tag, w, srdr, base_expr):
        def f():
            a(f's_cmp_lg_u32 s3, {w}')
            a(f's_cbranch_scc1 M_T{tag}')
            for x in base_expr: a(x)
            a(f'buffer_load_dword v1, v11, s[{srdr}:{srdr+3}], s55 offen')
            a(f'M_T{tag}:')
        return f
    if 'm' in TCH:
        side[E_('TG', 20)].append(tch('g', 5, 64, ['s_mul_i32 s55, s2, 7168']))
        side[E_('TG', 20) + 3].append(tch('u', 6, 68, ['s_mul_i32 s55, s2, 7168']))
    if 'u' in TCH:
        for k in range(4):
            side[E_('TU0', 40) + E_('TUS', 5)*k].append(tch(f'v{k}', k, 68, ['s_mul_i32 s55, s5, 28672', f's_add_u32 s55, s55, {917504 + min(k*8192, 28672-8192)}']))
    if 'd' in TCH:
        for k in range(7):
            side[E_('TD0', 20) + 3*k].append(tch(f'w{k}', k, 72, [f's_add_u32 s55, s54, {k*8192}']))
    def touch_wd():
        a('s_cmp_lg_u32 s3, 7')
        a('s_cbranch_scc1 M_TD')
        a('s_mul_i32 s55, s2, 7168')
        a('buffer_load_dword v1, v11, s[72:75], s55 offen')
        a('M_TD:')
    side[E_('TWD', 37)].append(touch_wd)
    for k in range(2):
        side[E_('TO', 12)].append(tch(f'o{k}', k, 20, ['s_lshl_b32 s55, s5, 14', f's_add_u32 s55, s55, {WS_WOF + k*8192}']))
    if E_('RTO', 0):
        side[E_('RTO', 0)].append(tch('r', 3, 20, ['s_lshl_b32 s55, s5, 14', f's_add_u32 s55, s55, {WS_WOF + 8192}']))
    def preown():
        a(f'global_store_dwordx4 v14, v[{Q}:{Q+3}], s[56:57]')
        nvm[0] += 1
    def preown2():
        a("""
s_lshl_b32 s36, s4, 3
s_add_u32 s36, s36, s3
s_mul_i32 s36, s36, 0x1c000
s_min_u32 s37, s5, 27
s_lshl_b32 s37, s37, 12
s_add_u32 s36, s36, s37
""")
        a(f's_add_u32 s36, s36, {WS_ACTF}')
        if 'L' in PRE:
            a('v_lshlrev_b32 v13, 6, v2')
            a(f'buffer_load_dword v1, v13, s[20:23], s36 offen')
            nvm[0] += 1
        else:
            a('s_cmp_ge_u32 s5, 28')
            a('s_cbranch_scc1 M_NPO')
            for c in range(4): a(f'buffer_store_dwordx4 v[{Q}:{Q+3}], v3, s[20:23], s36 offen offset:{c*1024}')
            a('M_NPO:')
    if 'h' in PRE: side[E_('PREH', 35)].append(preown)
    def act_touch(w):
        def f():
            a(f's_cmp_lg_u32 s3, {w}')
            a(f's_cbranch_scc1 M_AT{w}')
            a("""
s_lshl_b32 s36, s4, 3
s_add_u32 s36, s36, s3
s_mul_i32 s36, s36, 0x1c000
s_min_u32 s37, s5, 27
s_lshl_b32 s37, s37, 12
s_add_u32 s36, s36, s37
s_mov_b32 exec_hi, 0
""")
            a(f's_add_u32 s36, s36, {WS_ACTF}')
            a(f'buffer_load_dword v1, v11, s[20:23], s36 offen {ATF}')
            a('s_mov_b64 exec, -1')
            a(f'M_AT{w}:')
        return f
    if 'a' in PRE:
        for w in range(8): side[E_('AT0', 18) + w*E_('ATS', 2)].append(act_touch(w))
    if E_('PSEG', 1):
        ends = sorted(T for T in side if any(isinstance(x, str) for x in side[T])) + [63]
        st = 0
        FR = float(os.environ.get('PFR', '0.7'))
        MX = E_('PMX', 8)
        for e in ends:
            n = e - st + 1
            if n <= 0: continue
            k = -(-n // MX)
            for j in range(k):
                b0 = st + j*n//k; b1 = st + (j+1)*n//k
                h2_ = int(round((b1 - b0)*FR*2))
                side[b0].insert(0, prio(1, f'a{b0}'))
                Tl = b0 + h2_//2
                if Tl < b1:
                    if h2_ & 1:
                        fs_ = [x for x in side[Tl] if not isinstance(x, str)]
                        if not fs_: side[Tl].insert(0, lambda: None)
                        side[Tl].insert(1, prio(0, f'b{b0}'))
                    else: side[Tl].insert(0, prio(0, f'b{b0}'))
            st = e + 1
    else:
        for T in range(0, 64, PRIO_PERIOD):
            side[T].insert(0, prio(1, f'a{T}'))
            side[T + PRIO_HI].insert(0, prio(0, f'b{T}'))
    EL = E_('EL', 1)
    late = [C, C+4, C+8, C+12, S0, S0+4, S0+8, S0+12, O, O+4, O+8, O+12]
    def el(j0, j1):
        def f():
            for j in range(j0, j1): wo_ld(NREG + NLDS + j, late[j])
        return f
    if EL:
        side[63] = [x for x in side[63]] + [el(0, 2), el(2, 4), el(4, 6), el(6, 8)]
    SK = os.environ.get('SK', '')
    def kind(f):
        if isinstance(f, str): return 'b' if f == 'bar' else ''
        q = getattr(f, '__qualname__', '')
        src = f.__code__.co_names + f.__code__.co_freevars
        if 'modld' in q or 'ev_mod' in q: return 'm'
        if 'wo_ld' in src: return 'w'
        if 'w1dma' in src: return 'd'
        if 'preown' in q: return 'p'
        if 'tch' in q or 'touch_wd' in q or 'act_touch' in q: return 't'
        return ''
    for T in side: side[T] = [f for f in side[T] if not (kind(f) and kind(f) in SK)]
    LT = [int(x) for x in os.environ.get('LT', '2,5,11,20,33').split(',')]
    for T in range(64):
        tile(a, T & 7, [x for x in side[T] if not isinstance(x, str)], last=(T == 63))
        if 'vbar' in side[T]: a('s_waitcnt vmcnt(0)')
        if 'vbar6' in side[T]: a('s_waitcnt vmcnt(6)')
        if 'mbar' in side[T]:
            a(f's_waitcnt vmcnt({nvm[0] - mk_[2]})')
            a('s_barrier')
        if 'vbar' in side[T] or 'bar' in side[T] or 'vbar6' in side[T]: a('s_barrier')
        if 'l' in DIAG and T in LT: stamp(a, 6 + LT.index(T))

    if 'F' not in DIAG: stamp(a, 5)
    a('s_setprio 0')
    a(f'v_cvt_pk_bf16_f32 v{S1+7}, v{S1+14}, v{S1+15}')
    a('s_waitcnt lgkmcnt(0)')
    a(f'v_mfma_f32_32x32x16_bf16 v[{O}:{O+15}], v[{VB}:{VB+3}], v[{S1+4}:{S1+7}], v[{O}:{O+15}]')
    a(f'v_add_f32 v12, |v{O}|, |v{O+1}|')
    a(f'v_add_f32 v13, |v{O+2}|, |v{O+3}|')
    a(f'v_add_f32 v12, v12, |v{O+4}|')
    a(f'v_add_f32 v13, v13, |v{O+5}|')
    a(f'v_add_f32 v12, v12, |v{O+6}|')
    a(f'v_add_f32 v13, v13, |v{O+7}|')
    a(f'v_add_f32 v12, v12, v{O+8}')
    a('v_add_f32 v12, v12, v13')
    a('s_mov_b32 s12, 0x7e800000')
    a('v_cmp_gt_f32 vcc, s12, v12')
    a('s_cmp_eq_u64 vcc, -1')
    a('s_cbranch_scc0 M_SLOW')
    a('M_FIN:')
    ACC = S1
    ring = [KK, VA, VB, Q]
    a(f'v_rcp_f32 v12, v{O+8}')
    for i in range(8): a(f'v_mul_f32 v{O+i}, v{O+i}, v12')
    for i in range(4): a(f'v_cvt_pk_bf16_f32 v{S1+i}, v{O+2*i}, v{O+2*i+1}')
    a('s_mul_i32 s12, s3, 1056')
    a(f's_add_u32 s12, s12, {L_OX}')
    a('v_add_u32 v12, s12, v6')
    a(f'ds_write_b128 v12, v[{S1}:{S1+3}]')
    late = [C, C+4, C+8, C+12, S0, S0+4, S0+8, S0+12, O, O+4, O+8, O+12]
    freg = dict(treg)
    nxt = NREG + NLDS
    order.clear()
    a("""
v_and_b32 v13, 7, v2
v_mul_u32_u24 v13, 1056, v13
v_lshrrev_b32 v15, 4, v2
v_lshl_add_u32 v13, v15, 4, v13
s_lshl_b32 s10, s63, 1
""")
    a(f'v_add_u32 v13, {L_OX}, v13')
    a(f's_add_u32 s10, s10, {L_ONES}')
    a('v_add_u32 v8, s10, v3')
    a('s_add_u32 s10, s63, 98304')
    a('v_add_u32 v9, s10, v3')
    NB4 = E_('NB4', 12)
    for j, r in enumerate(late[:NB4]):
        freg[nxt] = r
        if not (EL and j < 8): wo_ld(nxt, r)
        order.append(nxt); nxt += 1
    if E_('EP', 1): prio(1, 'e1')()
    a('s_waitcnt lgkmcnt(0)')
    a('s_barrier')
    if 'e' in DIAG: stamp(a, 1)
    lg = []
    def lrd_b(ks):
        a(f'ds_read_b128 v[{ring[ks&3]}:{ring[ks&3]+3}], v13 offset:{64*ks}'); lg.append(('b', ks))
    for ks in range(4): lrd_b(ks)
    G, SB, CB, X = 184, 192, 200, 208
    M, D, ST, A1, A2, A3_, EPS = 216, 220, 228, 244, 245, 246, 247
    pr = lambda r: f'v[{r}:{r+1}]'
    def pre_ln():
        a("""
v_lshrrev_b32 v15, 3, v2
v_lshlrev_b32 v12, 5, v15
s_lshl_b32 s12, s3, 8
""")
        a(f's_add_u32 s12, s12, {L_MODS}')
        a('v_add_u32 v12, s12, v12')
        for i, r in enumerate((G, SB, CB)):
            a(f'ds_read_b128 v[{r}:{r+3}], v12 offset:{2048*i}')
            a(f'ds_read_b128 v[{r+4}:{r+7}], v12 offset:{2048*i+16}')
            lg.extend(['m', 'm'])
        unpack(a, X, XR, 4)
        a(f'v_and_b32 v{A1}, 8, v2')
        a(f'v_cmp_eq_u32 s[34:35], 0, v{A1}')
        a(f'v_and_b32 v{A2}, 7, v2')
        a(f'v_lshlrev_b32 v{A3_}, 9, v15')
        a(f'v_lshl_add_u32 v{A3_}, v{A2}, 4, v{A3_}')
        a(f'v_lshlrev_b32 v{A1}, 6, v{A2}')
        a(f'v_add_u32 v{A1}, {L_STAT}, v{A1}')
        a('s_lshl_b32 s12, s3, 3')
        a(f'v_add_u32 v{A2}, s12, v{A1}')
        a(f'v_mov_b32 v{EPS}, {f32(1e-5)}')
        a("""
s_lshr_b32 s38, s6, 5
s_lshl_b32 s38, s38, 15
s_and_b32 s14, s6, 31
s_lshl_b32 s14, s14, 4
s_add_u32 s38, s38, s14
s_lshl_b32 s14, s3, 12
s_add_u32 s38, s38, s14
""")
        a(f's_add_u32 s38, s38, {H2B}')
    pool = late[NB4:]
    w1q = [(1, g) for g in range(4, 8)]
    nl = 0
    for ks in range(16):
        br = ring[ks & 3]
        for c in range(4):
            f = 4*ks + c
            w = []
            need = [lg.index(('b', ks))] if c == 0 else []
            if ('w', f) in lg: need.append(lg.index(('w', f)))
            if f == 30: need.append(lg.index(('w', NREG + NLDS - 1)))
            if need: w.append(f'lgkmcnt({len(lg) - max(need) - 1})')
            if f in order: w.append(f'vmcnt({len(order) - order.index(f) - 1})')
            elif f == 0: w.append(f'vmcnt({len(order)})')
            if w: a('s_waitcnt ' + ' '.join(w))
            r = freg[f]
            cc = '0' if ks == 0 else f'v[{ACC+4*c}:{ACC+4*c+3}]'
            a(f'v_mfma_f32_16x16x32_bf16 v[{ACC+4*c}:{ACC+4*c+3}], v[{r}:{r+3}], v[{br}:{br+3}], {cc}')
            if f < 19: pool.append(r)
            if f == 42: pre_ln()
            if E_('EP', 1) and f == E_('EPF', 40): a('s_setprio 0')
            if nxt < 64:
                r2 = pool.pop(0)
                freg[nxt] = r2; wo_ld(nxt, r2); order.append(nxt); nxt += 1
            elif nl < NLDS:
                r2 = pool.pop(0); g_ = NREG + nl
                a(f'ds_read_b128 v[{r2}:{r2+3}], v{8 if nl == 0 else 9} offset:{0 if nl == 0 else (nl-1)*8192}')
                lg.append(('w', g_)); freg[g_] = r2; nl += 1
            elif w1q and f >= E_('W1L', 30): w1dma(*w1q.pop(0))
        if ks + 4 < 16: lrd_b(ks + 4)
    if 'e' in DIAG: stamp(a, 2)
    for i in range(8): a(f'v_cndmask_b32 v{ACC+i}, v{ACC+8+i}, v{ACC+i}, s[34:35]')
    for i in range(4): a(f'v_pk_fma_f32 {pr(X+2*i)}, {pr(ACC+2*i)}, {pr(G+2*i)}, {pr(X+2*i)}')
    def red(r, t):
        a(f'v_add_f32_dpp v{r}, v{r}, v{r} row_ror:8 row_mask:0xf bank_mask:0xf')
        a(f'v_mov_b32 v{t}, v{r}')
        a(f'v_permlane16_swap_b32 v{r}, v{t}')
        a(f'v_add_f32 v{r}, v{r}, v{t}')
        a(f'v_mov_b32 v{t}, v{r}')
        a(f'v_permlane32_swap_b32 v{r}, v{t}')
        a(f'v_add_f32 v{r}, v{r}, v{t}')
    a(f'v_pk_add_f32 {pr(M)}, {pr(X)}, {pr(X+2)}')
    a(f'v_pk_add_f32 {pr(M+2)}, {pr(X+4)}, {pr(X+6)}')
    a(f'v_pk_add_f32 {pr(M)}, {pr(M)}, {pr(M+2)}')
    a(f'v_add_f32 v{M}, v{M}, v{M+1}')
    for i in range(2): a(f'v_cvt_pk_bf16_f32 v{XR+i}, v{X+2*i}, v{X+2*i+1}')
    red(M, M+2)
    a(f'v_mul_f32 v{M}, {f32(1/64)}, v{M}')
    for i in range(4): a(f'v_pk_add_f32 {pr(D+2*i)}, {pr(X+2*i)}, {pr(M)} op_sel_hi:[1,0] neg_lo:[0,1] neg_hi:[0,1]')
    a(f'v_pk_mul_f32 {pr(M+2)}, {pr(D)}, {pr(D)}')
    for i in range(1, 4): a(f'v_pk_fma_f32 {pr(M+2)}, {pr(D+2*i)}, {pr(D+2*i)}, {pr(M+2)}')
    a(f'v_add_f32 v{M+1}, v{M+2}, v{M+3}')
    for i in range(2, 4): a(f'v_cvt_pk_bf16_f32 v{XR+i}, v{X+2*i}, v{X+2*i+1}')
    red(M+1, M+2)
    a('s_mov_b64 exec, 0xff')
    a(f'ds_write_b64 v{A2}, v[{M}:{M+1}]')
    a('s_mov_b64 exec, -1')
    a(f'global_store_dwordx4 v14, v[{XR}:{XR+3}], s[56:57]')
    for i in range(4): a(f'v_pk_mul_f32 {pr(D+2*i)}, {pr(D+2*i)}, {pr(CB+2*i)}')
    a('s_waitcnt lgkmcnt(0)')
    a('s_barrier')
    for i in range(4): a(f'ds_read_b128 v[{ST+4*i}:{ST+4*i+3}], v{A1} offset:{16*i}')
    a('s_waitcnt lgkmcnt(0)')
    T_ = X
    for i in range(4): a(f'v_pk_add_f32 {pr(T_+2*i)}, {pr(ST+4*i)}, {pr(ST+4*i+2)}')
    a(f'v_pk_add_f32 {pr(T_)}, {pr(T_)}, {pr(T_+2)}')
    a(f'v_pk_add_f32 {pr(T_+4)}, {pr(T_+4)}, {pr(T_+6)}')
    a(f'v_pk_add_f32 {pr(T_)}, {pr(T_)}, {pr(T_+4)}')
    a(f'v_mul_f32 v{T_}, {f32(1/8)}, v{T_}')
    a(f'v_fmamk_f32 v{T_+1}, v{T_+1}, {f32(1/512)}, v{EPS}')
    for i in range(8): a(f'v_sub_f32 v{ST+2*i}, v{ST+2*i}, v{T_}')
    a(f'v_sub_f32 v{M}, v{M}, v{T_}')
    a(f'v_mul_f32 v{T_+2}, v{ST}, v{ST}')
    a(f'v_mul_f32 v{T_+3}, v{ST+2}, v{ST+2}')
    for i in range(2, 8): a(f'v_fmac_f32 v{T_+2+(i&1)}, v{ST+2*i}, v{ST+2*i}')
    a(f'v_add_f32 v{T_+2}, v{T_+2}, v{T_+3}')
    a(f'v_fmac_f32 v{T_+1}, {f32(1/8)}, v{T_+2}')
    a(f'v_rsq_f32 v{T_+4}, v{T_+1}')
    for i in range(4): a(f'v_pk_fma_f32 {pr(D+2*i)}, {pr(CB+2*i)}, {pr(M)}, {pr(D+2*i)} op_sel_hi:[1,0,1]')
    for i in range(4): a(f'v_pk_fma_f32 {pr(SB+2*i)}, {pr(D+2*i)}, {pr(T_+4)}, {pr(SB+2*i)} op_sel_hi:[1,0,1]')
    for i in range(4): a(f'v_cvt_pk_bf16_f32 v{D+i}, v{SB+2*i}, v{SB+2*i+1}')
    a(f'buffer_store_dwordx4 v[{D}:{D+3}], v{A3_}, s[20:23], s38 offen {STH}')
    stamp(a, 6) if 'l' not in DIAG and 'F' not in DIAG else None
    a('''
s_lshl_b32 s12, s5, 3
s_add_u32 s12, s12, s3
s_lshl_b32 s12, s12, 2
v_mov_b32 v6, s12
v_mov_b32 v5, v7
v_mov_b32 v7, s59
v_bfe_u32 v16, v2, 4, 1
v_lshlrev_b32 v12, 16, v16
v_lshrrev_b32 v17, 5, v2
v_lshl_add_u32 v12, v17, 10, v12
v_bfe_u32 v17, v2, 2, 2
v_lshl_add_u32 v12, v17, 7, v12
v_bfe_u32 v13, v2, 1, 1
v_lshl_add_u32 v12, v13, 3, v12
v_and_b32 v13, 1, v2
v_and_b32 v17, 2, v17
v_xor_b32 v13, v13, v17
v_lshlrev_b32 v16, 2, v16
v_xor_b32 v13, v13, v16
v_lshl_add_u32 v8, v13, 4, v12
v_xor_b32 v9, 32, v8
v_xor_b32 v10, 64, v8
v_xor_b32 v11, 0x60, v8
s_lshl_b32 s11, s4, 3
s_add_u32 s11, s11, s3
s_mul_i32 s14, s11, 0x1c000
s_lshl_b32 s11, s11, 15
s_lshl_b32 s13, s5, 12
s_add_u32 s14, s14, s13
v_and_b32 v12, 31, v2
s_lshl_b32 s13, s3, 7
v_lshl_add_u32 v12, v12, 2, s13
''')
    a(f'v_mov_b32 v15, {f32(K1C)}')
    a(f's_mov_b32 s42, {f32(K1C)}')
    a(f's_mov_b32 s43, {f32(K0C)}')
    a(f's_add_u32 s11, s11, {H2B}')
    a(f's_add_u32 s14, s14, {WS_ACTF}')
    publish(a, 1, 6, 7, 's61')
    for mat, g in w1q:
        a(f's_add_u32 s36, s63, {mat*65536 + g*8192}')
        a('s_mov_b32 m0, s36')
        a(f's_add_u32 s37, s62, {g*8*28672}')
        a('buffer_load_dwordx4 v5, s[48:51], s37 offen lds')
    GB = 56
    a("""
s_and_b32 s15, s5, 7
s_lshl_b32 s17, s15, 1
s_and_b32 s6, s3, 1
s_add_u32 s17, s17, s6
s_lshl_b32 s17, s17, 2
s_lshr_b32 s8, s3, 2
s_add_u32 s17, s17, s8
s_lshl_b32 s17, s17, 4
s_lshl_b32 s38, s17, 1
v_lshrrev_b32 v16, 5, v2
""")
    a(f's_add_u32 s38, s38, {L_GB}')
    a('v_lshl_add_u32 v16, v16, 6, s38')
    a(f'ds_read_b128 v[{GB}:{GB+3}], v16')
    a(f'ds_read_b128 v[{GB+4}:{GB+7}], v16 offset:16')
    a("""
v_lshrrev_b32 v16, 3, v2
v_and_b32 v17, 7, v2
v_and_b32 v18, 2, v16
v_lshlrev_b32 v18, 1, v18
v_xor_b32 v17, v17, v18
v_lshlrev_b32 v14, 10, v16
v_lshl_add_u32 v14, v17, 4, v14
s_lshl_b32 s10, s15, 7
s_lshr_b32 s9, s5, 3
s_mul_i32 s13, s9, 7
s_mul_i32 s16, s15, 3
s_add_u32 s13, s13, s16
s_add_u32 s13, s13, s3
s_cmp_ge_u32 s13, 28
s_cselect_b32 s38, 28, 0
s_sub_u32 s13, s13, s38
s_mov_b32 s39, s13
s_lshl_b32 s41, s3, 11
""")
    WSLOT = [131072, 147456, 0, 16384, 65536, 81920]
    ASLOT = [32768, 49152, 98304, 114688]
    wloc = {i: WSLOT[i] for i in range(6)}
    aloc = {i: ASLOT[i] for i in range(4)}
    def nxt_stage(r):
        a(f's_add_u32 s{r}, s{r}, 8')
        a(f's_sub_u32 s38, s{r}, 28')
        a(f's_cmp_ge_u32 s{r}, 28')
        a(f's_cselect_b32 s{r}, s38, s{r}')
    def ks_of(s, r, dst):
        a(f's_lshl_b32 s{dst}, s{r}, 2')
        c0 = (8*s)//28
        if c0: a(f's_add_u32 s{dst}, s{dst}, {c0}')
        if s in (3, 10): a(f's_add_u32 s{dst}, s{dst}, s8')
    def wd_dma(s, k):
        if k == 0:
            ks_of(s, 13, 18)
            a('s_lshl_b32 s18, s18, 14')
            a('s_add_u32 s18, s18, s10')
        a(f's_add_u32 s16, s41, {wloc[s] + k*1024}')
        a('s_mov_b32 m0, s16')
        if k: a('s_add_u32 s18, s18, 0x2000')
        a('buffer_load_dwordx4 v14, s[72:75], s18 offen lds')
        if k and s < 13: nxt_stage(13)
    a("""
s_lshl_b32 s12, s3, 5
s_add_u32 s12, s12, s5
s_lshl_b32 s12, s12, 2
s_add_u32 s12, s12, 1024
v_mov_b32 v6, s12
""")
    a('s_cmp_ge_u32 s5, 28')
    a('s_cbranch_scc1 M_SPARE')
    poll(a, 1, 12, 13, 's61', 1)
    stamp(a, 7) if 'l' not in DIAG and 'F' not in DIAG else None

    BREG, AC1, AR, NR, LOOK = 128, 64, 32, 6, 4
    KS = E_('KS', 20)
    def rd(c, ks, reg):
        a(f'ds_read_b64_tr_b16 v[{reg}:{reg+1}], v{8+c} offset:{ks*2048}')
        a(f'ds_read_b64_tr_b16 v[{reg+2}:{reg+3}], v{8+c} offset:{ks*2048+512}')
    def store(c, reg):
        if E_('APL', 0):
            a('s_cmp_lg_u32 s60, 0')
            a(f's_cbranch_scc1 M_SP{c}')
            a(f'buffer_store_dwordx4 v[{reg}:{reg+3}], v3, s[20:23], s14 offen offset:{c*1024} sc0 sc1')
            a(f's_branch M_SQ{c}')
            a(f'M_SP{c}:')
            a(f'buffer_store_dwordx4 v[{reg}:{reg+3}], v3, s[20:23], s14 offen offset:{c*1024} {os.environ.get("APF", "")}')
            a(f'M_SQ{c}:')
        else:
            a(f'buffer_store_dwordx4 v[{reg}:{reg+3}], v3, s[20:23], s14 offen offset:{c*1024} {STA}')
    def epi(c):
        o = []
        for i in range(4): o += gelu_ops(AC1+16*c, AC1+16*c+8, 16 + 2*(i & 1), 24 + 4*(c & 1), i)
        o.append(('STORE', c))
        return o
    def emit(o):
        if isinstance(o, tuple): store(o[1], 24 + 4*(o[1] & 1))
        else: a(o)
    def f2_setup():
        a("""
s_bfe_u32 s7, s3, 0x10001
v_lshrrev_b32 v16, 5, v2
v_lshlrev_b32 v8, 10, v16
v_bfe_u32 v17, v2, 2, 2
v_lshl_add_u32 v8, v17, 7, v8
v_bfe_u32 v5, v2, 1, 1
v_lshl_add_u32 v8, v5, 3, v8
v_and_b32 v5, 1, v2
v_lshlrev_b32 v5, 1, v5
v_bfe_u32 v9, v2, 4, 1
v_add_u32 v5, v5, v9
v_and_b32 v17, 2, v17
v_lshl_add_u32 v5, v17, 1, v5
s_lshl_b32 s38, s6, 2
v_xor_b32 v5, s38, v5
v_lshl_add_u32 v8, v5, 4, v8
s_lshl_b32 s38, s8, 13
v_add_u32 v8, s38, v8
v_add_u32 v9, 0x10000, v8
v_add_u32 v13, 0x20000, v8
s_lshl_b32 s38, s7, 13
s_lshl_b32 s40, s8, 12
s_add_u32 s38, s38, s40
v_add_u32 v10, s38, v3
v_add_u32 v11, 0x10000, v10
v_add_u32 v0, 0x20000, v10
s_lshl_b32 s40, s4, 2
s_add_u32 s40, s40, s9
s_mul_i32 s11, s40, 0x38000
""")
        a(f's_add_u32 s11, s11, {WS_ACTF}')
        a("""
s_lshl_b32 s40, s40, 1
s_add_u32 s40, s40, s7
s_lshl_b32 s40, s40, 15
s_add_u32 s40, s40, s17
v_and_b32 v12, 31, v2
v_min_u32 v5, 27, v12
v_lshlrev_b32 v12, 10, v12
v_lshl_add_u32 v12, v16, 5, v12
v_add_u32 v12, s40, v12
v_lshl_add_u32 v5, v16, 5, v5
s_lshl_b32 s38, s9, 8
s_add_u32 s38, s38, 1024
v_lshl_add_u32 v5, v5, 2, s38
""")
    SPAN = E_('F1SPAN', 52)
    def tail(c):
        A3 = AC1 + 16*c
        out = 24 + 4*(c & 1)
        if E_('PK', 0):
            G_, U_, T_ = A3, A3 + 8, 16
            pr = lambda b, i: f'v[{b+2*i}:{b+2*i+1}]'
            for i in range(4): a(f'v_pk_mul_f32 {pr(T_,i)}, {pr(G_,i)}, {pr(G_,i)}')
            for i in range(4): a(f'v_pk_fma_f32 {pr(T_,i)}, {pr(T_,i)}, s[42:43], s[42:43] op_sel:[0,0,1] op_sel_hi:[1,0,1]')
            for i in range(4): a(f'v_pk_mul_f32 {pr(T_,i)}, {pr(T_,i)}, {pr(G_,i)}')
            for i in range(8): a(f'v_exp_f32 v{T_+i}, v{T_+i}')
            for i in range(4): a(f'v_pk_mul_f32 {pr(G_,i)}, {pr(G_,i)}, {pr(U_,i)}')
            for i in range(4): a(f'v_pk_add_f32 {pr(T_,i)}, {pr(T_,i)}, 1.0 op_sel_hi:[1,0]')
            for i in range(8): a(f'v_rcp_f32 v{T_+i}, v{T_+i}')
            for i in range(4): a(f'v_pk_mul_f32 {pr(G_,i)}, {pr(G_,i)}, {pr(T_,i)}')
            for i in range(4): a(f'v_cvt_pk_bf16_f32 v{out+i}, v{G_+2*i}, v{G_+2*i+1}')
        else:
            seqs = [[o for o in gelu_ops(A3, A3+8, 16 + 2*i, out, i) if o != 's_nop 0'] for i in range(4)]
            for k in range(0, len(seqs[0]), 2):
                for s_ in seqs:
                    for o in s_[k:k+2]: a(o)
        store(c, out)
    seq = [(c, ks) for ks in range(16) for c in range(4)] + [(c, ks) for c in range(4) for ks in range(16, 32)]
    def step(n, wv=''):
        c, ks = seq[n]
        if n + LOOK < len(seq): rd(*seq[n + LOOK], AR + 4*((n + LOOK) % NR))
        a(f's_waitcnt lgkmcnt({2*(min(len(seq)-1, n+LOOK) - n)}){wv}')
        cc = '0' if ks == 0 else f'v[{AC1+16*c}:{AC1+16*c+15}]'
        r = AR + 4*(n % NR)
        a(f'v_mfma_f32_32x32x16_bf16 v[{AC1+16*c}:{AC1+16*c+15}], v[{r}:{r+3}], v[{BREG+4*ks}:{BREG+4*ks+3}], {cc}')
        if 'f' in DIAG and n in (0, 32, 63, 96, 127): stamp(a, 1 + (0, 32, 63, 96, 127).index(n))
    def half1(young):
        vm = []
        def bld(ks):
            if ks & 3 == 0 and ks: a('s_add_u32 s11, s11, 4096')
            a(f'buffer_load_dwordx4 v[{BREG+4*ks}:{BREG+4*ks+3}], v3, s[20:23], s11 offen offset:{(ks&3)*1024} {LD}')
            vm.append(ks)
        if young:
            a('s_waitcnt lgkmcnt(0)')
            a('s_barrier')
            a('s_barrier')
            for ks in range(16): bld(ks)
        else:
            for ks in range(NL0): bld(ks)
            a('s_waitcnt lgkmcnt(0)')
            a('s_barrier')
        for n in range(LOOK): rd(*seq[n], AR + 4*(n % NR))
        for n in range(64):
            c, ks = seq[n]
            if not young and len(vm) < 16:
                bld(len(vm))
                if len(vm) == 16: a('s_barrier')
            if young and n >= 64 - 16*PY and (64 - n) % PY == 0: bld(len(vm))
            if not young and n >= LB0 and len(vm) < 32 and n % 4 == 2: bld(len(vm))
            step(n, f' vmcnt({len(vm) - vm.index(ks) - 1})' if c == 0 else '')
        while len(vm) < 32: bld(len(vm))
    NL0, PY, LB0 = E_('NL0', 10), E_('PY', 2), E_('LB0', 40)
    a('s_cmp_ge_u32 s3, 4')
    a('s_cbranch_scc1 M_F1Y')
    half1(False)
    a('s_branch M_F1J')
    a('M_F1Y:')
    half1(True)
    a('M_F1J:')
    a('s_barrier')
    if 'e' in DIAG: stamp(a, 3)
    wdq = [(s_, k) for s_ in range(6) for k in range(2)]
    nd = 0
    WDN = E_('WDN', 70)
    gops = []
    for n in range(64, 128):
        step(n, f' vmcnt({79 - n + nd})' if n < 80 else '')
        if wdq and n >= WDN and (n - WDN) % 3 == 0: wd_dma(*wdq.pop(0)); nd += 1
        GI = E_('GI', 0)
        if n == 95: nd95 = nd
        if n == E_('EFN', 109): flag_only(a, '2e', 6, 7, 's61', 1024, nd - nd95)
        if n == E_('EFN', 109) and E_('RT', 0):
            a('v_lshlrev_b32 v4, 7, v2')
            a('s_mov_b64 exec, 0xffff')
            a('buffer_load_dword v1, v4, s[20:23], s14 offen sc1')
            a('s_mov_b64 exec, -1')
        if GI == 0:
            if n % 16 == 15: tail(seq[n][0])
        else:
            if n % 16 == 2 and n > 80:
                c_ = seq[n][0] - 1
                A3 = AC1 + 16*c_; out = 24 + 4*(c_ & 1)
                sq = [[o for o in gelu_ops(A3, A3+8, 16 + 2*i, out, i) if o != 's_nop 0'] for i in range(4)]
                for k in range(0, len(sq[0]), 2):
                    for s2 in sq: gops.extend(s2[k:k+2])
                gops.append(('STORE', c_))
            for _ in range(E_('GPER', 5)):
                if gops: emit(gops.pop(0))
            if n == 127:
                while gops: emit(gops.pop(0))
                tail(3)
    assert not wdq
    stamp(a, 8) if 'l' not in DIAG and 'F' not in DIAG else None
    f2_setup()
    assert 'sc1' in STA
    a('s_waitcnt vmcnt(2)')
    a('s_branch M_F2')
    a('M_SPARE:')
    a('s_waitcnt vmcnt(0) lgkmcnt(0)')
    a('s_barrier')
    a('''
s_sub_u32 s7, s5, 28
s_lshl_b32 s7, s7, 3
s_add_u32 s7, s7, s3
s_lshr_b32 s36, s7, 2
s_lshl_b32 s36, s36, 16
s_and_b32 s37, s7, 3
s_lshl_b32 s37, s37, 13
s_add_u32 s36, s36, s37
s_add_u32 s36, s36, 0x8000
v_lshlrev_b32 v4, 7, v2
s_lshr_b32 s37, s7, 1
s_lshl_b32 s37, s37, 16
s_and_b32 s7, s7, 1
s_lshl_b32 s7, s7, 13
s_add_u32 s37, s37, s7
''')
    SPO = os.environ.get('SPO', '231')
    def t23():
        for i in range(4):
            a(f'buffer_load_dword v{16+i}, v4, s[72:75], s36 offen')
            if i < 3: a('s_add_u32 s36, s36, 0x80000')
    def t1(c):
        a(f's_add_u32 s7, s37, {c*16384}')
        for i in range(2):
            a(f'buffer_load_dword v{20+2*c+i}, v4, s[72:75], s7 offen')
            if i < 1: a('s_add_u32 s7, s7, 0x100000')
    for ch in SPO:
        if ch == '2': t23()
        if ch == '1': t1(1)
        if ch == '0': t1(0)
    for s_ in range(6):
        for k in range(2): wd_dma(s_, k)
    f2_setup()
    a('s_waitcnt vmcnt(0)')

    a('M_F2:')
    AC2, AF, BF, X2 = 16, 32, 64, 80
    a('s_cmp_lg_u32 s3, 0')
    a('s_cbranch_scc1 M_NP2')
    poll(a, 2, 5, 16, 's61', 2)
    a('M_NP2:')
    a('s_barrier')
    stamp(a, 9) if 'l' not in DIAG and 'F' not in DIAG else None
    vm = []
    def issue_a(s_):
        ks_of(s_, 39, 19)
        a('s_lshl_b32 s19, s19, 10')
        a('s_add_u32 s19, s19, s11')
        for k in range(2):
            a(f's_add_u32 s16, s63, {aloc[s_] + k*8192}')
            a('s_mov_b32 m0, s16')
            if k: a('s_add_u32 s19, s19, 0x1c000')
            a(f'buffer_load_dwordx4 v3, s[20:23], s19 offen {LD} lds')
        vm.extend([s_]*2)
        if s_ < 13: nxt_stage(39)
    AL = E_('AL', -1)
    items = sorted([('a', i) for i in range(4, 14)] + [('w', i) for i in range(6, 14)], key=lambda x: (x[1] - (AL if x[0] == 'a' else 0), x[0]))
    for s_ in range(4): issue_a(s_)
    a(f'global_load_dwordx4 v[{X2}:{X2+3}], v12, s[56:57] {LD}')
    vm.append(3)
    flag_only(a, 2, 6, 7, 's61', 0, len(vm))
    vm.append(99)
    if E_('RT', 0) == 1:
        a('v_lshlrev_b32 v4, 7, v2')
        a('s_mov_b64 exec, 0xffff')
        a('buffer_load_dword v1, v4, s[20:23], s14 offen offset:2048 sc1')
        a('s_mov_b64 exec, -1')
        vm.append(99)
    FCK = items.index(('a', 7))//2
    FR = lambda s_: 96 + 32*(s_ & 1)
    def reads(s_):
        wo_, ao = wloc[s_], aloc[s_]
        va = (8, 9, 13)[wo_ >> 16]; vb = (10, 11, 0)[ao >> 16]
        A_, B_ = FR(s_), FR(s_) + 16
        o = []
        for j in range(4):
            o.append(f'ds_read_b128 v[{B_+4*j}:{B_+4*j+3}], v{vb} offset:{(ao & 0xffff) + j*1024}')
            o.append(f'ds_read_b64_tr_b16 v[{A_+4*j}:{A_+4*j+1}], v{va} offset:{(wo_ & 0xffff) + j*2048}')
            o.append(f'ds_read_b64_tr_b16 v[{A_+4*j+2}:{A_+4*j+3}], v{va} offset:{(wo_ & 0xffff) + j*2048 + 512}')
        return o
    vw = lambda s_: len(vm) - 1 - max(i for i, x in enumerate(vm) if 0 <= x <= s_)
    a(f's_waitcnt vmcnt({vw(0)})')
    a('s_barrier')
    if 'e' in DIAG: stamp(a, 4)
    for o in reads(0): a(o)
    if FCK - E_('FLD', 2) < 0:
        a('buffer_load_dword v6, v5, s[20:23], s61 offen sc1'); vm.append(-1)
    for s_ in range(14):
        if s_ == FCK:
            a('s_cmp_lg_u32 s3, 0')
            a('s_cbranch_scc1 M_NP3')
            a(f's_waitcnt vmcnt({len(vm) - 1 - vm.index(-1)})')
            a('v_cmp_eq_u32 vcc, s59, v6')
            a('s_cmp_eq_u64 vcc, -1')
            a('s_cbranch_scc1 M_G3')
            poll(a, 3, 5, 6, 's61', 3)
            a('M_NP3:')
        if s_ < 13:
            a(f's_waitcnt vmcnt({vw(s_ + 1)}) lgkmcnt(0)')
            a('s_barrier')
        else: a('s_waitcnt lgkmcnt(0)')
        if 's' in DIAG and s_ in (0, 3, 6, 9, 12): stamp(a, 1 + s_//3)
        rd_ = reads(s_ + 1) if s_ < 13 else []
        A_, B_ = FR(s_), FR(s_) + 16
        for j in range(4):
            cc = '0' if (s_ == 0 and j == 0) else f'v[{AC2}:{AC2+15}]'
            a(f'v_mfma_f32_32x32x16_bf16 v[{AC2}:{AC2+15}], v[{A_+4*j}:{A_+4*j+3}], v[{B_+4*j}:{B_+4*j+3}], {cc}')
            for o in rd_[3*j:3*j+3]: a(o)
        if s_ == FCK - E_('FLD', 2):
            a('buffer_load_dword v6, v5, s[20:23], s61 offen sc1'); vm.append(-1)
        for slot in (aloc[s_], wloc[s_]):
            if not items: break
            kind_, st_ = items.pop(0)
            if kind_ == 'a':
                assert st_ < 7 or s_ >= FCK
                aloc[st_] = slot; issue_a(st_)
            else:
                wloc[st_] = slot
                for k in range(2): wd_dma(st_, k)
                vm.extend([st_]*2)
    stamp(a, 10) if 'l' not in DIAG and 'F' not in DIAG else None
    xs = aloc[11]
    assert xs not in (aloc[12], aloc[13], wloc[12], wloc[13])
    a('s_lshl_b32 s38, s3, 11')
    a(f's_add_u32 s40, s38, {xs}')
    a('v_add_u32 v4, s40, v3')
    a('s_xor_b32 s38, s38, 0x2000')
    a(f's_add_u32 s40, s38, {xs}')
    a('v_add_u32 v15, s40, v3')
    unpack(a, 88, X2, 4)
    a('s_cmp_ge_u32 s3, 4')
    a('s_cbranch_scc1 F2_HI')
    a(f'ds_write_b128 v4, v[{AC2+8}:{AC2+11}]')
    a(f'ds_write_b128 v4, v[{AC2+12}:{AC2+15}] offset:1024')
    a('s_branch F2_X')
    a('F2_HI:')
    a('s_nop 2')
    a(f'ds_write_b128 v4, v[{AC2}:{AC2+3}]')
    a(f'ds_write_b128 v4, v[{AC2+4}:{AC2+7}] offset:1024')
    for i in range(8): a(f'v_mov_b32 v{AC2+i}, v{AC2+8+i}')
    a('F2_X:')
    a('s_waitcnt lgkmcnt(0)')
    a('s_barrier')
    a(f'ds_read_b128 v[{AF}:{AF+3}], v15')
    a(f'ds_read_b128 v[{AF+4}:{AF+7}], v15 offset:1024')
    a('s_waitcnt lgkmcnt(0)')
    for i in range(8): a(f'v_add_f32 v{AC2+i}, v{AC2+i}, v{AF+i}')
    for i in range(8): a(f'v_fmac_f32 v{88+i}, v{AC2+i}, v{GB+i}')
    for i in range(4): a(f'v_cvt_pk_bf16_f32 v{X2+i}, v{88+2*i}, v{89+2*i}')
    a(f'global_store_dwordx4 v12, v[{X2}:{X2+3}], s[56:57] {STO}')
    for off in [int(x, 0) for x in os.environ.get('XLOAD', '').split(',') if x]:
        a('s_lshl_b32 s12, s2, 7')
        a(f's_add_u32 s12, s12, {off}')
        a('v_mov_b32 v0, s12')
        a('global_load_dword v1, v0, s[30:31]')
        a('s_waitcnt vmcnt(0)')
    prof_end(a, 0, 3, 30)
    a('M_END2:')
    a('s_endpgm')

    a('M_SLOW:')
    a('s_waitcnt vmcnt(0)')
    a('v_mov_b32 v12, 0xff800000')
    a(f's_mov_b32 s12, {WS_KVF}')
    a('M_SL1:')
    a(f'buffer_load_dwordx4 v[{KK}:{KK+3}], v3, s[20:23], s12 offen sc1')
    a('s_waitcnt vmcnt(0)')
    a(f'v_mfma_f32_32x32x16_bf16 v[{S0}:{S0+15}], v[{KK}:{KK+3}], v[{Q}:{Q+3}], 0')
    for i in range(0, 16, 2): a(f'v_max3_f32 v12, v12, v{S0+i}, v{S0+i+1}')
    a('s_add_u32 s12, s12, 2048')
    a(f's_cmp_lt_u32 s12, {WS_KVF + 131072}')
    a('s_cbranch_scc1 M_SL1')
    a('''
v_mov_b32 v13, v12
v_permlane32_swap_b32 v12, v13
v_max_f32 v12, v12, v13
''')
    for i in range(16): a(f'v_sub_f32 v{C+i}, 0, v12')
    for i in range(16): a(f'v_mov_b32 v{O+i}, 0')
    for i in range(8): a(f'v_mov_b32 v{VA+i}, 0x3f803f80')
    a('''
v_lshl_add_u32 v13, v5, 4, v4
v_lshlrev_b32 v13, 4, v13
''')
    a(f's_mov_b32 s12, {WS_KVF}')
    a('M_SL2:')
    a(f'buffer_load_dwordx4 v[{KK}:{KK+3}], v3, s[20:23], s12 offen sc1')
    a('s_mov_b64 exec, s[32:33]')
    a(f'buffer_load_dwordx4 v[{VA}:{VA+3}], v13, s[20:23], s12 offen offset:1024 sc1')
    a(f'buffer_load_dwordx4 v[{VB}:{VB+3}], v13, s[20:23], s12 offen offset:1536 sc1')
    a('s_mov_b64 exec, -1')
    a('s_waitcnt vmcnt(0)')
    a(f'v_mfma_f32_32x32x16_bf16 v[{S0}:{S0+15}], v[{KK}:{KK+3}], v[{Q}:{Q+3}], v[{C}:{C+15}]')
    for i in range(16): a(f'v_exp_f32 v{S0+i}, v{S0+i}')
    for i in range(8): a(f'v_cvt_pk_bf16_f32 v{S1+i}, v{S0+2*i}, v{S0+2*i+1}')
    a(f'v_mfma_f32_32x32x16_bf16 v[{O}:{O+15}], v[{VA}:{VA+3}], v[{S1}:{S1+3}], v[{O}:{O+15}]')
    a(f'v_mfma_f32_32x32x16_bf16 v[{O}:{O+15}], v[{VB}:{VB+3}], v[{S1+4}:{S1+7}], v[{O}:{O+15}]')
    a('s_add_u32 s12, s12, 2048')
    a(f's_cmp_lt_u32 s12, {WS_KVF + 131072}')
    a('s_cbranch_scc1 M_SL2')
    a('s_nop 15')
    if EL: el(0, 8)()
    a('s_branch M_FIN')
    a('CODE_END:')
    a('s_endpgm')
    return K
```

```python
from asmlib import Asm
import struct
NAME = "adaLN_cond__grouped_kv_mqa__geglu_ffn__prompt"
WS_MODP  = 0x000000
WS_GB    = 0x00C000
WS_FLAG  = 0x014000
WS_XCC   = 0x00D000
WS_STAT  = 0x010000
WS_WKVF  = 0x018000
WS_KVF   = 0x020000
WS_MODG  = 0x040000
WS_EPOCH = 0x00D800
WS_GFL   = 0x00E000
WS_WFL   = 0x00E400
WS_QFL   = 0x00F000
WS_MODF  = 0x180000
WS_MODR  = 0x1A0000
WS_MFL   = 0x011800
WS_KVL   = 0x060000
WS_LFL   = 0x011000
WS_XT    = 0x010000
WS_WQF   = 0x080000
WS_WOF   = 0x100000
WS_Q     = 0x200000
WS_H2F   = 0x400000
WS_WGUF  = 0x600000
WS_WDF   = 0x980000
WS_ACTF  = 0xC00000
WS_END   = 0x1300000
def f32(x): return '0x%08x' % struct.unpack('<I', struct.pack('<f', x))[0]
LOG2E = 1.4426950408889634

def dpp_reduce(a, regs):
    for ctl in ('row_shr:1 row_mask:0xf bank_mask:0xf', 'row_shr:2 row_mask:0xf bank_mask:0xf',
                'row_shr:4 row_mask:0xf bank_mask:0xf', 'row_shr:8 row_mask:0xf bank_mask:0xf',
                'row_bcast:15 row_mask:0xa bank_mask:0xf', 'row_bcast:31 row_mask:0xc bank_mask:0xf'):
        for r in regs:
            a(f'v_add_f32_dpp v{r}, v{r}, v{r} {ctl}')

def silu_bf16(a, dst, src, tmp):
    a(f'v_mul_f32 v{tmp}, {f32(-LOG2E)}, v{src}')
    a(f'v_exp_f32 v{tmp}, v{tmp}')
    a(f'v_add_f32 v{tmp}, 1.0, v{tmp}')
    a(f'v_rcp_f32 v{tmp}, v{tmp}')
    a(f'v_mul_f32 v{dst}, v{src}, v{tmp}')
    a(f'v_cvt_pk_bf16_f32 v{dst}, v{dst}, v{dst}')
    a(f'v_lshlrev_b32 v{dst}, 16, v{dst}')

def round_bf16(a, r):
    a(f'v_cvt_pk_bf16_f32 v{r}, v{r}, v{r}')
    a(f'v_lshlrev_b32 v{r}, 16, v{r}')

def unpack(a, dst, src, n):
    for i in range(n):
        a(f'v_lshlrev_b32 v{dst+2*i}, 16, v{src+i}')
        a(f'v_and_b32 v{dst+2*i+1}, 0xffff0000, v{src+i}')

def pack8(a, dst, src):
    for i in range(4):
        a(f'v_lshl_or_b32 v{dst+i}, v{src+2*i+1}, 16, v{src+2*i}')

def relay_load(a, dst, voff, sbase, stride, n=8):
    for jj in range(n):
        off = jj*stride - (4096 if stride == 1024 else 0)
        a(f'global_load_dwordx2 v[{dst+2*jj}:{dst+2*jj+1}], v{voff}, s[{sbase}:{sbase+1}] offset:{off}')

def relay_perm(a, dst, src, slo, shi):
    for c in range(4):
        for i in range(4):
            r0 = src + 2*(2*i) + (c >> 1); r1 = src + 2*(2*i+1) + (c >> 1)
            a(f'v_perm_b32 v{dst+4*c+i}, v{r1}, v{r0}, s{shi if c & 1 else slo}')

def code_touch(a, start_label, end_label, tag, vid=0, va=4, vd=62, sb=40):
    if os.environ.get('NOCT'): return
    a(f's_getpc_b64 s[{sb}:{sb+1}]')
    a(f'CT_{tag}:')
    a(f's_mov_b32 s{sb+2}, ({end_label}-{start_label}+4095)/4096')
    a(f's_lshr_b32 s{sb+3}, s2, 3')
    a(f's_mul_i32 s{sb+3}, s{sb+3}, s{sb+2}')
    a(f'v_add_u32 v{va}, s{sb+3}, v{vid}')
    a(f'v_lshlrev_b32 v{va}, 7, v{va}')
    a(f's_mov_b32 s{sb+4}, {end_label}-{start_label}-4')
    a(f'v_min_u32 v{va}, s{sb+4}, v{va}')
    a(f'v_add_u32 v{va}, {start_label}-CT_{tag}, v{va}')
    a(f'v_mov_b32 v{va+1}, s{sb+1}')
    a(f'v_add_co_u32 v{va}, vcc, s{sb}, v{va}')
    a(f'v_addc_co_u32 v{va+1}, vcc, 0, v{va+1}, vcc')
    a(f'v_cmp_gt_u32 vcc, s{sb+2}, v{vid}')
    a(f's_and_saveexec_b64 s[{sb+4}:{sb+5}], vcc')
    a(f's_cbranch_execz CT_X{tag}')
    a(f'global_load_dword v{vd}, v[{va}:{va+1}], off')
    a(f'CT_X{tag}:')
    a(f's_mov_b64 exec, s[{sb+4}:{sb+5}]')

def srd(a, d, base, size):
    a(f's_mov_b32 s{d}, s{base}')
    a(f's_and_b32 s{d+1}, s{base+1}, 0xffff')
    a(f's_mov_b32 s{d+2}, {size}')
    a(f's_mov_b32 s{d+3}, 0x20000')

class Kernel:
    def __init__(self, name, grid, block, lds):
        self.name, self.grid, self.block, self.lds = name, grid, block, lds
        self.a = Asm()
        self.accum = None
    def emit(self):
        a = self.a
        a.fix()
        mv, ms, ma = a.max_regs()
        acc = (mv + 1 + 3) // 4 * 4
        acc = max(acc, 4)
        nfv = acc + ma + 1 if ma >= 0 else mv + 1
        assert acc <= 256 and nfv <= 512, (self.name, acc, nfv)
        self.nfv = nfv
        code = f'.text\n.globl {self.name}\n.p2align 8\n.type {self.name},@function\n{self.name}:\n' + a.text()
        kd = f'''.section .rodata,"a"
.p2align 6
.amdhsa_kernel {self.name}
  .amdhsa_next_free_vgpr {nfv}
  .amdhsa_next_free_sgpr {max(ms+1, 16)}
  .amdhsa_accum_offset {acc}
  .amdhsa_group_segment_fixed_size 0
  .amdhsa_kernarg_size 112
  .amdhsa_user_sgpr_count 2
  .amdhsa_user_sgpr_kernarg_segment_ptr 1
  .amdhsa_system_sgpr_workgroup_id_x 1
.end_amdhsa_kernel
'''
        return code, kd

def build(kernels, path):
    ref = open(f'cdna_kernels/{NAME}.s.ref').read().split('\n')
    head = [l for l in ref if l.startswith(';') and '@launch' not in l and 'Override launch' not in l and 'grid=ceil' not in l]
    out = '\n'.join(head) + '\n'
    for k in kernels:
        if os.environ.get('PLAIN'): out += f'; @launch grid=({k.grid},1,1) block=({k.block},1,1) lds={k.lds}\n'
        else: out += f'; @launch kernel={k.name} grid=({k.grid},1,1) block=({k.block},1,1) lds={k.lds}\n'
    out += '.amdgcn_target "amdgcn-amd-amdhsa--gfx950"\n'
    kds = ''
    seen = set()
    for k in kernels:
        if k.name in seen: continue
        seen.add(k.name)
        c, kd = k.emit()
        out += c
        kds += kd
        print(f'{k.name}: vgpr {k.nfv}, instrs {sum(1 for i in k.a.ins if i.kind!="none")}')
    out += kds
    open(path, 'w').write(out)

import os
PROF = os.environ.get('PROF', '') == '1'
WS_PROF = 0x1400000
XCC = os.environ.get('XCC', '') == '1'
NST = 12
CYC = os.environ.get('CYC', '') == '1'
def stamp(a, i):
    if PROF: a(f's_mem{"time" if CYC and 4 <= i <= 10 else "realtime"} s[{76+2*i}:{77+2*i}]')
def prof_init(a):
    if PROF:
        for i in range(NST): a(f's_mov_b32 s{76+2*i}, 0')
        a('s_memrealtime s[76:77]')
def prof_end(a, kidx, wavereg, wsbase, nwaves=8, wait_stores=True):
    if not PROF: return
    if os.environ.get('SPIN'):
        i0, i1 = [int(x) for x in os.environ['SPIN'].split(',')]
        stamp(a, NST-1)
        a('s_waitcnt lgkmcnt(0)')
        a(f's_sub_u32 s100, s{76+2*i1}, s{76+2*i0}')
        a('s_lshl_b32 s100, s100, 2')
        a(f's_add_u32 s100, s100, s{76+2*(NST-1)}')
        a('SPIN_L:')
        a('s_memrealtime s[76:77]')
        a('s_waitcnt lgkmcnt(0)')
        a('s_sub_u32 s101, s76, s100')
        a('s_cmp_lt_i32 s101, 0')
        a('s_cbranch_scc1 SPIN_L')
        return
    if wait_stores: a('s_waitcnt vmcnt(0)')
    stamp(a, NST-1)
    a('s_waitcnt lgkmcnt(0)')
    a('s_mov_b64 exec, 1')
    a(f's_mul_i32 s100, s2, {nwaves}')
    a(f's_add_u32 s100, s100, s{wavereg}')
    a('s_lshl_b32 s100, s100, 6')
    a(f's_add_u32 s100, s100, {WS_PROF + kidx*256*8*64}')
    a('v_mov_b32 v0, s100')
    for i in range(NST): a(f'v_mov_b32 v{4+i}, s{76+2*i}')
    for i in range(NST//4):
        a(f'global_store_dwordx4 v0, v[{4+4*i}:{7+4*i}], s[{wsbase}:{wsbase+1}] offset:{16*i}')
    if os.environ.get('DBGWG'):
        a(f's_cmp_lg_u32 s2, {os.environ["DBGWG"]}')
        a('s_cbranch_scc1 DBG_SKIP')
        a(f's_cmp_lg_u32 s{wavereg}, 4')
        a('s_cbranch_scc1 DBG_SKIP')
        a('s_load_dwordx2 s[100:101], s[0:1], 96')
        for i in range(NST): a(f'v_subrev_u32 v{4+i}, s76, v{4+i}')
        a('v_mov_b32 v0, 0')
        a('s_waitcnt lgkmcnt(0)')
        for i in range(NST//4):
            a(f'global_store_dwordx4 v0, v[{4+4*i}:{7+4*i}], s[100:101] offset:{16*i}')
        a('DBG_SKIP:')
```

```python
from common import *
QSCALE = 0.25 * LOG2E
E_ = lambda k, d: int(os.environ.get(k, str(d)))
L_KVW = 131072
L_MOD = 147456
L_WOS = L_MOD + 4096
L_TAG = L_WOS + 4096
NW1 = E_('NW1', 16)
WT = 'sc0 sc1'

FD = 'F' in os.environ.get('DIAG', '')
def fs(a, i):
    if FD: stamp(a, i)
def fphase(a):
    a('''
s_load_dwordx4 s[16:19], s[0:1], 0
s_load_dwordx4 s[32:35], s[0:1], 72
s_load_dwordx2 s[30:31], s[0:1], 104
s_load_dwordx4 s[24:27], s[0:1], 16
s_load_dwordx2 s[28:29], s[0:1], 32
s_load_dwordx2 s[64:65], s[0:1], 48
s_load_dwordx2 s[68:69], s[0:1], 56
s_load_dwordx2 s[72:73], s[0:1], 64
s_load_dwordx2 s[56:57], s[0:1], 88
''')
    code_touch(a, 'CT_Xa', 'CODE_END', 'a')
    a('''
v_lshrrev_b32 v1, 6, v0
v_and_b32 v2, 63, v0
v_readfirstlane_b32 s3, v1
s_and_b32 s4, s2, 7
s_lshr_b32 s5, s2, 3
s_lshr_b32 s6, s5, 2
s_lshl_b32 s7, s4, 3
s_add_u32 s7, s7, s6
s_and_b32 s8, s5, 3
v_lshlrev_b32 v3, 4, v2
''')
    a(f'v_mov_b32 v15, {L_TAG}')
    KVP = E_('KVP', 2)
    def kvw():
        a("""
s_and_b32 s48, s8, 1
s_cmp_lg_u32 s48, 0
s_cselect_b32 s44, s26, s24
s_cselect_b32 s45, s27, s25
s_and_b32 s45, s45, 0xffff
s_mov_b32 s46, 16384
s_mov_b32 s47, 0x20000
s_lshl_b32 s48, s6, 11
s_add_u32 s48, s48, s12
""")
        for k in range(4):
            a('s_and_b32 s48, s48, 0x3fff')
            a(f's_add_u32 s49, s12, {L_KVW + k*4096}')
            a('s_mov_b32 m0, s49')
            a('s_nop 0')
            a('buffer_load_dwordx4 v3, s[44:47], s48 offen lds')
            if k < 3: a('s_add_u32 s48, s48, 4096')
    a('s_cmp_lt_u32 s3, 4')
    a('s_cbranch_scc1 F_LO')
    a("""
s_sub_u32 s9, s3, 4
v_lshrrev_b32 v6, 3, v2
v_and_b32 v7, 7, v2
v_and_b32 v5, 2, v6
v_lshlrev_b32 v5, 1, v5
v_xor_b32 v7, v7, v5
v_lshlrev_b32 v4, 10, v6
v_lshl_add_u32 v4, v7, 4, v4
v_add_u32 v14, 128, v4
s_lshl_b32 s10, s8, 8
s_lshl_b32 s11, s9, 13
s_add_u32 s10, s10, s11
s_lshl_b32 s12, s9, 10
s_lshl_b32 s13, s6, 16
s_mov_b32 s15, s12
s_mov_b32 s38, 524288
s_mov_b32 s39, 0x20000
s_waitcnt lgkmcnt(0)
""")
    fs(a, 1)
    a("""
s_mov_b32 s36, s18
s_and_b32 s37, s19, 0xffff
""")
    if KVP == 0: kvw()
    if E_('HW', 0):
        a(f's_load_dword s59, s[30:31], {WS_EPOCH}')
        a('s_waitcnt lgkmcnt(0)')
    a("""
F_WL:
s_add_u32 s14, s13, s10
s_mov_b32 m0, s15
s_add_u32 s11, s15, 0x10000
buffer_load_dwordx4 v4, s[36:39], s14 offen lds
s_mov_b32 m0, s11
s_add_u32 s13, s13, 0x8000
buffer_load_dwordx4 v14, s[36:39], s14 offen lds
s_and_b32 s13, s13, 0x7ffff
s_add_u32 s15, s15, 4096
""")
    a(f's_cmp_lt_u32 s15, {NW1*4096}')
    a('s_cbranch_scc1 F_WL')
    a('s_branch F_HI')
    a('F_LO:')
    def get_tag():
        a('ds_read_b32 v63, v15')
        a('s_waitcnt lgkmcnt(0)')
        a('v_readfirstlane_b32 s59, v63')
    def flag(soff_reg, fl=WT, n=0):
        a('v_mov_b32 v16, s59')
        a('v_mov_b32 v17, 0')
        a(f's_waitcnt vmcnt({n})')
        a('s_mov_b64 exec, 1')
        a(f'buffer_store_dword v16, v17, s[20:23], {soff_reg} offen {fl}')
        a('s_mov_b64 exec, -1')
    def get_fast():
        a('ds_read_b32 v63, v15 offset:4')
        a('s_waitcnt lgkmcnt(0)')
        a('v_readfirstlane_b32 s60, v63')
    X, XN, MR = 64, 96, 160
    a('''
s_lshl_b32 s10, s7, 5
s_lshl_b32 s11, s3, 3
s_add_u32 s10, s10, s11
s_lshl_b32 s11, s10, 10
s_add_u32 s11, s11, 4096
v_add_u32 v4, s11, v3
v_lshlrev_b32 v14, 5, v0
s_lshr_b32 s9, s5, 3
s_and_b32 s12, s5, 7
s_lshl_b32 s13, s4, 3
s_add_u32 s12, s12, s13
s_lshl_b32 s13, s12, 1
s_add_u32 s13, s13, s3
s_add_u32 s13, s13, 63
s_cmp_eq_u32 s3, 0
s_cselect_b32 s12, s12, s13
s_lshl_b32 s13, s12, 5
s_mul_i32 s14, s9, 786432
s_add_u32 s13, s13, s14
v_lshrrev_b32 v5, 1, v2
v_mul_u32_u24 v10, 24576, v5
v_and_b32 v11, 1, v2
v_lshl_add_u32 v10, v11, 4, v10
s_lshl_b32 s14, s9, 8
v_lshl_add_u32 v5, v5, 3, s14
s_waitcnt lgkmcnt(0)
''')
    def mod_load(B):
        for r in range(4):
            a(f'buffer_load_dwordx4 v[{B+4*r}:{B+4*r+3}], v10, s[36:39], s13 offen')
            if r < 3: a('s_add_u32 s13, s13, 6144')
        a(f'global_load_dwordx2 v[{B+16}:{B+17}], v5, s[32:33]')
    def mod_calc(B):
        Sx, Ac, Tm = B+20, B+24, B+32
        unpack(a, Sx, B+16, 2)
        for r in range(4): a(f'v_mul_f32 v{Ac+r}, {f32(-LOG2E)}, v{Sx+r}')
        for r in range(4): a(f'v_exp_f32 v{Ac+r}, v{Ac+r}')
        for r in range(4): a(f'v_add_f32 v{Ac+r}, 1.0, v{Ac+r}')
        for r in range(4): a(f'v_rcp_f32 v{Ac+r}, v{Ac+r}')
        for r in range(4): a(f'v_mul_f32 v{Sx+r}, v{Sx+r}, v{Ac+r}')
        a(f'v_cvt_pk_bf16_f32 v{Ac}, v{Sx}, v{Sx+1}')
        a(f'v_cvt_pk_bf16_f32 v{Ac+1}, v{Sx+2}, v{Sx+3}')
        unpack(a, Sx, Ac, 2)
        for r in range(4):
            unpack(a, Tm, B + 4*r, 4)
            for i in range(8):
                a(f'v_mul_f32 v{Ac+i}, v{Tm+i}, v{Sx}' if r == 0 else f'v_fmac_f32 v{Ac+i}, v{Tm+i}, v{Sx+r}')
        for i in range(4): a(f'v_permlane32_swap_b32 v{Ac+i}, v{Ac+4+i}')
        for i in range(4): a(f'v_add_f32 v{Ac+i}, v{Ac+i}, v{Ac+4+i}')
        for i in range(2): a(f'v_permlane16_swap_b32 v{Ac+i}, v{Ac+2+i}')
        for i in range(2): a(f'v_add_f32 v{Ac+i}, v{Ac+i}, v{Ac+2+i}')
        for sh in (8, 4, 2):
            for i in range(2): a(f'v_add_f32_dpp v{Ac+i}, v{Ac+i}, v{Ac+i} row_ror:{sh} row_mask:0xf bank_mask:0xf')
        a(f'v_mov_b32 v{Ac+2}, v{Ac+1}')
        a(f'v_mov_b32 v{Ac+1}, s59')
        a(f'v_mov_b32 v{Ac+3}, s59')
        a('s_mov_b32 exec_lo, 0x00030003')
        a('s_mov_b32 exec_hi, 0x00030003')
        a(f'buffer_store_dwordx4 v[{Ac}:{Ac+3}], v11, s[20:23], s14 offen {WT}')
        a('s_mov_b64 exec, -1')
    fs(a, 1)
    srd(a, 36, 34, 3145728)
    a('s_cmp_lg_u32 s3, 0')
    a('s_cbranch_scc1 F_X')
    mod_load(16)
    a('F_X:')
    a(f's_load_dword s59, s[30:31], {WS_EPOCH}')
    srd(a, 20, 30, WS_END)
    a('''
v_lshlrev_b32 v11, 6, v11
v_lshrrev_b32 v8, 5, v2
v_lshl_add_u32 v11, v8, 5, v11
v_bfe_u32 v8, v2, 4, 1
v_lshl_add_u32 v11, v8, 4, v11
s_mul_i32 s14, s9, 24576
s_lshl_b32 s15, s12, 7
s_add_u32 s14, s14, s15
''')
    a(f's_add_u32 s14, s14, {WS_MODG}')
    a('''
s_lshl_b32 s15, s6, 12
v_lshlrev_b32 v6, 9, v2
v_subrev_u32 v6, s15, v6
v_and_b32 v6, 0x7fff, v6
v_and_b32 v7, 7, v2
v_lshl_add_u32 v6, v7, 4, v6
s_lshl_b32 s15, s3, 7
v_add_u32 v6, s15, v6
v_lshlrev_b32 v12, 5, v2
''')
    a(f'v_add_u32 v12, {L_MOD}, v12')
    a('v_and_b32 v59, 31, v2')
    a('v_lshlrev_b32 v59, 3, v59')
    a('s_lshl_b32 s63, s4, 8')
    a(f's_add_u32 s63, s63, {WS_XT}')
    a('s_getreg_b32 s58, hwreg(HW_REG_XCC_ID)')
    a('s_and_b32 s58, s58, 7')
    if E_('XW', 0): a('s_waitcnt lgkmcnt(0)')
    for t in range(8):
        a(f'global_load_dwordx4 v[{X+4*t}:{X+4*t+3}], v4, s[16:17] offset:{t*1024-4096}')
    a('s_waitcnt lgkmcnt(0)')
    a('s_mul_i32 s59, s59, 1664525')
    a('s_add_u32 s59, s59, 1013904223')
    a('s_cmp_lg_u32 s3, 0')
    a('s_cbranch_scc1 F_LN0')
    a('s_waitcnt vmcnt(8)')
    mod_calc(16)
    a('ds_write_b32 v15, v41')
    a('''
s_getreg_b32 s15, hwreg(HW_REG_XCC_ID)
s_and_b32 s15, s15, 7
v_mov_b32 v42, s15
s_lshl_b32 s15, s4, 5
s_add_u32 s15, s15, s5
s_lshl_b32 s15, s15, 3
v_mov_b32 v44, 0
''')
    a(f's_add_u32 s15, s15, {WS_XT}')
    a('s_mov_b64 exec, 1')
    a(f'buffer_store_dwordx2 v[42:43], v44, s[20:23], s15 offen {WT}')
    a('s_mov_b64 exec, -1')
    a('s_waitcnt vmcnt(2)')
    a('s_branch F_LN')
    a('F_LN0:')
    a('s_waitcnt vmcnt(0)')
    a('F_LN:')
    fs(a, 5)
    SM = 48
    for t in range(8): unpack(a, XN + 8*t, X + 4*t, 4)
    pr = lambda r: f'v[{r}:{r+1}]'
    TT = 16
    for t in range(8):
        b = XN + 8*t
        a(f'v_pk_add_f32 {pr(TT+4*t)}, {pr(b)}, {pr(b+2)}')
        a(f'v_pk_add_f32 {pr(TT+4*t+2)}, {pr(b+4)}, {pr(b+6)}')
    for t in range(8): a(f'v_pk_add_f32 {pr(TT+4*t)}, {pr(TT+4*t)}, {pr(TT+4*t+2)}')
    for t in range(8): a(f'v_add_f32 v{SM+t}, v{TT+4*t}, v{TT+4*t+1}')
    dpp_reduce(a, [SM+t for t in range(8)])
    for t in range(8): a(f'v_mul_f32 v{SM+t}, {f32(-1/512)}, v{SM+t}')
    for t in range(8): a(f'v_readlane_b32 s{40+2*t}, v{SM+t}, 63')
    for t in range(8):
        for i in range(4): a(f'v_pk_add_f32 {pr(XN+8*t+2*i)}, {pr(XN+8*t+2*i)}, s[{40+2*t}:{41+2*t}] op_sel_hi:[1,0]')
    for i in range(4):
        for t in range(8):
            b = XN + 8*t + 2*i
            if i == 0: a(f'v_pk_mul_f32 {pr(TT+2*t)}, {pr(b)}, {pr(b)}')
            else: a(f'v_pk_fma_f32 {pr(TT+2*t)}, {pr(b)}, {pr(b)}, {pr(TT+2*t)}')
    for t in range(8): a(f'v_add_f32 v{SM+t}, v{TT+2*t}, v{TT+2*t+1}')
    dpp_reduce(a, [SM+t for t in range(8)])
    KW = 160
    def side_code(early):
        a('s_cmp_eq_u32 s3, 0')
        a('s_cbranch_scc1 F_SL0')
        a('s_cmp_eq_u32 s3, 3')
        a('s_cbranch_scc1 F_SL3')
        mod_load(MR)
        if early: a('s_waitcnt vmcnt(5)')
        a('s_branch F_SLY' if early else 's_branch F_SLX')
        a('F_SL3:')
        a('''
s_cmp_ge_u32 s2, 128
s_cbranch_scc1 F_SLX
v_lshrrev_b32 v9, 3, v2
v_lshlrev_b32 v10, 10, v9
v_and_b32 v9, 7, v2
v_lshl_add_u32 v10, v9, 4, v10
s_lshl_b32 s13, s5, 15
s_lshl_b32 s15, s4, 7
s_add_u32 s13, s13, s15
''')
        srd(a, 36, 28, 524288)
        for k in range(4):
            a(f's_mov_b32 m0, {L_WOS + k*1024}')
            if k: a('s_add_u32 s13, s13, 8192')
            a('buffer_load_dwordx4 v10, s[36:39], s13 offen lds')
        if early: a('s_waitcnt vmcnt(4)')
        a('s_branch F_SLY' if early else 's_branch F_SLX')
        a('F_SL0:')
        a('''
s_and_b32 s12, s8, 1
v_and_b32 v8, 3, v2
v_lshrrev_b32 v9, 1, v8
v_and_b32 v10, 1, v8
v_lshl_add_u32 v9, v10, 1, v9
s_cmp_lg_u32 s12, 0
s_cselect_b64 s[40:41], -1, 0
v_cndmask_b32 v8, v8, v9, s[40:41]
v_lshlrev_b32 v8, 3, v8
v_bfe_u32 v9, v2, 2, 2
v_lshl_add_u32 v8, v9, 5, v8
v_lshrrev_b32 v9, 4, v2
v_lshl_add_u32 v8, v9, 8, v8
''')
        a(f'v_add_u32 v8, {L_KVW}, v8')
        a('F_SLX:')

    def sweep_issue():
        for p in range(4):
            a(f's_mov_b32 s61, {WS_MODG + p*24576}')
            a(f'buffer_load_dwordx4 v[{16+8*p}:{19+8*p}], v14, s[20:23], s61 offen sc1')
            a(f'buffer_load_dwordx4 v[{20+8*p}:{23+8*p}], v14, s[20:23], s61 offen offset:16 sc1')
        a('buffer_load_dwordx2 v[60:61], v59, s[20:23], s63 offen sc1')
    a(f'v_mov_b32 v56, {f32(1e-5)}')
    for t in range(8): a(f'v_fmamk_f32 v{SM+t}, v{SM+t}, {f32(1/512)}, v56')
    for t in range(8): a(f'v_rsq_f32 v{SM+t}, v{SM+t}')
    for t in range(8): a(f'v_readlane_b32 s{40+2*t}, v{SM+t}, 63')
    for t in range(8):
        for i in range(4): a(f'v_pk_mul_f32 {pr(XN+8*t+2*i)}, {pr(XN+8*t+2*i)}, s[{40+2*t}:{41+2*t}] op_sel_hi:[1,0]')
    fs(a, 6)
    if E_('SWE', 0): sweep_issue()
    a('s_waitcnt lgkmcnt(0)')
    a('s_barrier')
    fs(a, 7)
    if not E_('SWE', 0): sweep_issue()
    a('s_mov_b32 s62, 0x40000')
    if E_('SE', 1): side_code(True)
    a('F_SW:')
    a('s_waitcnt vmcnt(0)')
    a('F_SLY:')
    a('v_xor_b32 v48, s59, v61')
    for r in range(17, 48, 2):
        a(f'v_xor_b32 v49, s59, v{r}')
        a('v_or_b32 v48, v48, v49')
    a('v_cmp_ne_u32 vcc, 0, v48')
    a('s_cmp_eq_u64 vcc, 0')
    a('s_cbranch_scc1 F_SG')
    a('s_mov_b64 exec, vcc')
    a(f's_sleep {E_("SWS", 2)}')
    sweep_issue()
    a('s_mov_b64 exec, -1')
    a('s_sub_u32 s62, s62, 1')
    a('s_cmp_lg_u32 s62, 0')
    a('s_cbranch_scc1 F_SW')
    a('s_waitcnt vmcnt(0)')
    a('F_SG:')
    fs(a, 8)
    a('v_cmp_eq_u32 vcc, s58, v60')
    a('s_cmp_eq_u64 vcc, -1')
    a(f's_cselect_b32 s60, {0 if E_("FORCE_SLOW", 0) else 1}, 0')
    a('v_mov_b32 v60, s60')
    a('ds_write_b32 v15, v60 offset:4')
    for i in range(4):
        a(f'v_add_f32 v{16+2*i}, v{16+2*i}, v{24+2*i}')
        a(f'v_add_f32 v{32+2*i}, v{32+2*i}, v{40+2*i}')
    for i in range(4): a(f'v_add_f32 v{16+i}, v{16+2*i}, v{32+2*i}')
    a('v_cvt_pk_bf16_f32 v20, v16, v17')
    a('v_cvt_pk_bf16_f32 v21, v18, v19')
    unpack(a, 16, 20, 2)
    a('s_cmp_lt_u32 s3, 2')
    a('s_cbranch_scc1 F_NOADD')
    for i in range(4): a(f'v_add_f32 v{16+i}, 1.0, v{16+i}')
    a('v_cvt_pk_bf16_f32 v20, v16, v17')
    a('v_cvt_pk_bf16_f32 v21, v18, v19')
    unpack(a, 16, 20, 2)
    a('F_NOADD:')
    a('v_lshrrev_b32 v20, 1, v14')
    a(f'v_add_u32 v20, {L_MOD}, v20')
    a('ds_write_b128 v20, v[16:19]')
    if not E_('SE', 1): side_code(False)
    a('s_waitcnt lgkmcnt(0)')
    if not FD: stamp(a, 1)
    a('s_barrier')
    fs(a, 9)
    a('ds_read_b128 v[16:19], v12')
    a('ds_read_b128 v[20:23], v12 offset:16')
    a('ds_read_b128 v[24:27], v12 offset:2048')
    a('ds_read_b128 v[28:31], v12 offset:2064')
    a('s_waitcnt lgkmcnt(0)')
    for t in range(8):
        T = XN + 8*t; x = X + 4*t
        for i in range(4):
            a(f'v_pk_fma_f32 v[{T+2*i}:{T+2*i+1}], v[{T+2*i}:{T+2*i+1}], v[{24+2*i}:{25+2*i}], v[{16+2*i}:{17+2*i}]')
        for i in range(4): a(f'v_cvt_pk_bf16_f32 v{x+i}, v{T+2*i}, v{T+2*i+1}')
        if t: a(f'v_xor_b32 v13, {16*t}, v6')
        a(f'ds_write_b128 v{13 if t else 6}, v[{x}:{x+3}]')
    a('s_waitcnt lgkmcnt(0)')
    a('s_barrier')
    fs(a, 10)
    a('s_cmp_eq_u32 s3, 0')
    a('s_cbranch_scc1 F_KV')
    a('s_waitcnt vmcnt(0)')
    a('s_cmp_eq_u32 s3, 3')
    a('s_cbranch_scc1 F_S3')
    mod_calc(MR)
    a('s_branch F_END')
    a('F_S3:')
    a('''
s_cmp_ge_u32 s2, 128
s_cbranch_scc1 F_END
v_lshrrev_b32 v9, 4, v2
v_lshlrev_b32 v8, 10, v9
v_bfe_u32 v9, v2, 2, 2
v_lshl_add_u32 v8, v9, 7, v8
v_and_b32 v9, 3, v2
v_lshl_add_u32 v8, v9, 5, v8
s_lshl_b32 s13, s4, 16
s_lshl_b32 s15, s5, 10
s_add_u32 s13, s13, s15
''')
    a(f'v_add_u32 v8, {L_WOS}, v8')
    a(f's_add_u32 s13, s13, {WS_WOF}')
    for c in range(4):
        a(f'ds_read_b64_tr_b16 v[{MR+4*c}:{MR+4*c+1}], v8 offset:{8*c}')
        a(f'ds_read_b64_tr_b16 v[{MR+4*c+2}:{MR+4*c+3}], v8 offset:{8*c+512}')
    a('s_waitcnt lgkmcnt(0)')
    for c in range(4):
        a(f'buffer_store_dwordx4 v[{MR+4*c}:{MR+4*c+3}], v3, s[20:23], s13 offen {WT}')
        if c < 3: a('s_add_u32 s13, s13, 16384')
    a('s_branch F_END')
    a('F_KV:')
    for n in range(16):
        a(f'ds_read_b64_tr_b16 v[{KW+4*n}:{KW+4*n+1}], v8 offset:{n*1024}')
        a(f'ds_read_b64_tr_b16 v[{KW+4*n+2}:{KW+4*n+3}], v8 offset:{n*1024+128}')
    a('''
s_lshr_b32 s13, s8, 1
s_lshl_b32 s13, s13, 4
v_and_b32 v10, 15, v2
v_add_u32 v10, s13, v10
v_bfe_u32 v11, v2, 4, 1
v_lshrrev_b32 v12, 5, v2
v_lshl_add_u32 v15, v11, 5, v10
v_lshl_add_u32 v14, v12, 1, v11
v_xor_b32 v7, v15, v14
v_lshlrev_b32 v7, 4, v7
v_lshl_add_u32 v7, v12, 10, v7
v_xor_b32 v9, 64, v7
v_add_u32 v9, 2048, v9
''')
    H = 96
    for n in range(16):
        a(f'ds_read_b128 v[{H+4*n}:{H+4*n+3}], v{9 if n & 1 else 7} offset:{(n>>1)*4096}')
    a('''
v_lshrrev_b32 v11, 4, v2
v_and_b32 v12, 1, v11
v_lshrrev_b32 v11, 1, v11
s_lshl_b32 s14, s7, 11
''')
    a(f's_add_u32 s14, s14, {WS_KVF}')
    a('s_cmp_lg_u32 s12, 0')
    a('s_cbranch_scc1 F_V')
    for n in range(16):
        a(f's_waitcnt lgkmcnt({15-n})')
        c = '0' if n == 0 else 'v[16:19]'
        a(f'v_mfma_f32_16x16x32_bf16 v[16:19], v[{KW+4*n}:{KW+4*n+3}], v[{H+4*n}:{H+4*n+3}], {c}')
    a('''
v_lshlrev_b32 v15, 9, v11
v_lshl_add_u32 v15, v10, 4, v15
v_lshl_add_u32 v15, v12, 3, v15
s_branch F_KVST
F_V:
''')
    for n in range(16):
        a(f's_waitcnt lgkmcnt({15-n})')
        c = '0' if n == 0 else 'v[16:19]'
        a(f'v_mfma_f32_16x16x32_bf16 v[16:19], v[{H+4*n}:{H+4*n+3}], v[{KW+4*n}:{KW+4*n+3}], {c}')
    a('''
v_and_b32 v15, 15, v2
v_lshl_add_u32 v15, v12, 4, v15
v_lshlrev_b32 v15, 4, v15
v_lshl_add_u32 v15, v11, 3, v15
s_lshl_b32 s13, s13, 5
s_add_u32 s13, s13, 1024
v_add_u32 v15, s13, v15
F_KVST:
s_nop 4
v_cvt_pk_bf16_f32 v20, v16, v17
v_cvt_pk_bf16_f32 v21, v18, v19
''')
    a(f's_add_u32 s15, s14, {WS_KVL - WS_KVF}')
    a('s_lshl_b32 s13, s4, 5')
    a('s_add_u32 s13, s13, s5')
    a('s_lshl_b32 s13, s13, 2')
    a(f's_add_u32 s12, s13, {WS_LFL}')
    a(f's_add_u32 s13, s13, {WS_GFL}')
    a('s_cmp_lg_u32 s60, 0')
    a('s_cbranch_scc0 F_KVS')
    a('buffer_store_dwordx2 v[20:21], v15, s[20:23], s15 offen')
    a(f'buffer_store_dwordx2 v[20:21], v15, s[20:23], s14 offen {WT}')
    flag('s12', '', 1)
    flag('s13', WT, 1)
    a('s_branch F_END')
    a('F_KVS:')
    a(f'buffer_store_dwordx2 v[20:21], v15, s[20:23], s15 offen {WT}')
    a(f'buffer_store_dwordx2 v[20:21], v15, s[20:23], s14 offen {WT}')
    flag('s12')
    flag('s13', WT, 1)
    a('s_branch F_END')

    a('F_HI:')
    W = 64
    if KVP == 1: kvw()
    a("""
v_lshrrev_b32 v7, 5, v2
v_lshlrev_b32 v8, 10, v7
v_bfe_u32 v6, v2, 2, 2
v_lshl_add_u32 v8, v6, 7, v8
v_bfe_u32 v5, v2, 1, 1
v_lshl_add_u32 v8, v5, 3, v8
v_and_b32 v5, 1, v2
v_lshlrev_b32 v5, 1, v5
v_bfe_u32 v9, v2, 4, 1
v_add_u32 v5, v5, v9
v_and_b32 v6, 2, v6
v_lshl_add_u32 v5, v6, 1, v5
s_and_b32 s52, s9, 1
s_lshl_b32 s52, s52, 2
v_xor_b32 v5, s52, v5
v_lshl_add_u32 v8, v5, 4, v8
s_lshr_b32 s52, s9, 1
s_lshl_b32 s52, s52, 16
v_add_u32 v13, s52, v8
""")
    fs(a, 5)
    a(f's_waitcnt vmcnt({2*NW1 - 16 + (4 if KVP == 1 else 0)})')
    a('s_barrier')
    fs(a, 7)
    def wrd(n):
        a(f'ds_read_b64_tr_b16 v[{W+4*n}:{W+4*n+1}], v13 offset:{n*2048}')
        a(f'ds_read_b64_tr_b16 v[{W+4*n+2}:{W+4*n+3}], v13 offset:{n*2048+512}')
    for n in range(16): wrd(n)
    for n in range(NW1, 16):
        a("""
s_add_u32 s14, s13, s10
s_mov_b32 m0, s15
s_add_u32 s11, s15, 0x10000
buffer_load_dwordx4 v4, s[36:39], s14 offen lds
s_mov_b32 m0, s11
s_add_u32 s13, s13, 0x8000
buffer_load_dwordx4 v14, s[36:39], s14 offen lds
s_and_b32 s13, s13, 0x7ffff
s_add_u32 s15, s15, 4096
""")
    if KVP == 2: kvw()
    for q in range(4):
        a(f'v_add_u32 v{8+q}, {2*q}, v7')
        a(f'v_xor_b32 v{8+q}, v{8+q}, v2')
        a(f'v_lshlrev_b32 v{8+q}, 4, v{8+q}')
        if q: a(f'v_add_u32 v{8+q}, {1024*q}, v{8+q}')
    a("""
s_lshl_b32 s53, s7, 2
s_add_u32 s53, s53, s8
s_lshl_b32 s53, s53, 2
s_add_u32 s53, s53, s9
s_lshl_b32 s54, s53, 2
s_lshl_b32 s53, s53, 11
""")
    a(f's_add_u32 s53, s53, {WS_Q}')
    a(f's_add_u32 s54, s54, {WS_QFL}')
    a(f's_mov_b32 s55, {f32(QSCALE)}')
    srd(a, 20, 30, WS_END)
    a("""
v_and_b32 v14, 15, v2
v_lshlrev_b32 v14, 7, v14
v_add_u32 v12, s53, v14
s_lshl_b32 s14, s7, 11
""")
    a(f's_add_u32 s14, s14, {WS_KVL}')
    a('v_add_u32 v14, s14, v14')
    a('v_cmp_gt_u32 vcc, 16, v2')
    a('s_lshl_b32 s14, s4, 7')
    a(f's_add_u32 s14, s14, {WS_LFL}')
    a('v_cndmask_b32 v12, v14, v12, vcc')
    a('v_writelane_b32 v12, s14, 32')
    a('v_writelane_b32 v12, s54, 33')
    get_tag()
    fs(a, 8)
    if not FD: stamp(a, 1)
    a('s_barrier')
    a('s_mov_b32 exec_hi, 3')
    a('buffer_load_dword v1, v12, s[20:23], 0 offen')
    a('s_mov_b64 exec, -1')
    get_fast()
    a('s_waitcnt vmcnt(1)')
    a('s_barrier')
    fs(a, 9)
    ACC = 16
    lg = []
    def rd(n):
        r = 32 + 4*(n & 7)
        a(f'ds_read_b128 v[{r}:{r+3}], v{8+(n&3)} offset:{(n>>2)*4096}'); lg.append(('h', n))
    for n in range(6): rd(n)
    for n in range(32):
        need = max(lg.index(('h', n)), lg.index(('w', n)) if n >= 16 else 0)
        a(f's_waitcnt lgkmcnt({min(15, len(lg) - need - 1)})')
        r = 32 + 4*(n & 7); w = W + 4*n
        c = '0' if n == 0 else f'v[{ACC}:{ACC+15}]'
        a(f'v_mfma_f32_32x32x16_bf16 v[{ACC}:{ACC+15}], v[{w}:{w+3}], v[{r}:{r+3}], {c}')
        if n + 6 < 32: rd(n + 6)
        if n < 16: wrd(16 + n); lg += [('w0', 16+n), ('w', 16+n)]
    fs(a, 10)
    for i in range(16): a(f'v_mul_f32 v{ACC+i}, s55, v{ACC+i}')
    for i in range(8): a(f'v_cvt_pk_bf16_f32 v{32+i}, v{ACC+2*i}, v{ACC+2*i+1}')
    a('s_cmp_lg_u32 s60, 0')
    a('s_cbranch_scc1 F_QF')
    a(f'buffer_store_dwordx4 v[32:35], v3, s[20:23], s53 offen {WT}')
    a(f'buffer_store_dwordx4 v[36:39], v3, s[20:23], s53 offen offset:1024 {WT}')
    flag('s54')
    a('s_branch F_END')
    a('F_QF:')
    a('buffer_store_dwordx4 v[32:35], v3, s[20:23], s53 offen')
    a('buffer_store_dwordx4 v[36:39], v3, s[20:23], s53 offen offset:1024')
    flag('s54', '')
    a('F_END:')
```

```python
from common import *
from k3 import gelu_ops, K1C, K0C
from fphase import fphase

L_ONES = 131072
L_STAT = 131072 + 1024
L_OX   = 147072
L_MODS = L_OX + 8448
L_GB   = 161792
L_END  = 163840
Q, C, S0, S1, P, O, KK, VA, VB = 16, 20, 36, 52, 68, 76, 92, 96, 100
XR, WO, NPRE = 104, 108, 36
E_ = lambda k, d: int(os.environ.get(k, str(d)))
PRIO_PERIOD, PRIO_HI = E_('PRIO_PERIOD', 8), E_('PRIO_HI', 6)
TOUCH, TSPAN, WOSTART = E_('TOUCH', 14), E_('TSPAN', 42), E_('WOSTART', 16)
FORCE_SLOW = E_('FORCE_SLOW', 0)
NP1 = E_('NP1', 2)
WD0 = E_('WD0', 8)
PRE = os.environ.get('PRE', 'h')
W1F = os.environ.get('W1F', 'nt')
STA = os.environ.get('STA', 'sc0 sc1')
STH = os.environ.get('STH', '')
STO = os.environ.get('STO', '')
TCH = os.environ.get('TCH', 'x')
ATF = os.environ.get('ATF', '')
DIAG = os.environ.get('DIAG', '')
H2B = WS_Q
LD = os.environ.get('LD', 'sc1')

def tile(a, t, side=(), last=False):
    side = list(side)
    def sd():
        if side: side.pop(0)()
    b = t & 1
    S = S1 if b else S0; SN = S0 if b else S1
    E = lambda i: a(f'v_exp_f32 v{S+i}, v{S+i}')
    Cv = lambda i: a(f'v_cvt_pk_bf16_f32 v{S+i}, v{S+2*i}, v{S+2*i+1}')
    E(0)
    a(f'v_cvt_pk_bf16_f32 v{SN+7}, v{SN+14}, v{SN+15}')
    E(1); E(2); Cv(0)
    a('s_waitcnt lgkmcnt(2)')
    a(f'v_mfma_f32_32x32x16_bf16 v[{O}:{O+15}], v[{VB}:{VB+3}], v[{SN+4}:{SN+7}], v[{O}:{O+15}]')
    a(f'ds_read_b128 v[{VB}:{VB+3}], v9 offset:{t*2048+512}')
    E(3); E(4); Cv(1); sd(); E(5); E(6); Cv(2)
    if not last:
        a('s_waitcnt lgkmcnt(2)')
        a(f'v_mfma_f32_32x32x16_bf16 v[{SN}:{SN+15}], v[{KK}:{KK+3}], v[{Q}:{Q+3}], v[{C}:{C+15}]')
        a(f'ds_read_b128 v[{KK}:{KK+3}], v8 offset:{(t+2)*2048}')
    else: sd()
    E(7); E(8); Cv(3); E(9); E(10)
    a(f's_waitcnt lgkmcnt({1 if last else 2})')
    a(f'v_mfma_f32_32x32x16_bf16 v[{O}:{O+15}], v[{VA}:{VA+3}], v[{S}:{S+3}], v[{O}:{O+15}]')
    if last: sd()
    elif t == 7:
        a('v_add_u32 v9, v9, v10')
        a(f'ds_read_b128 v[{VA}:{VA+3}], v9')
        a('v_add_u32 v8, 0x4000, v8')
    else:
        a(f'ds_read_b128 v[{VA}:{VA+3}], v9 offset:{(t+1)*2048}')
    Cv(4); E(11); E(12); Cv(5); sd(); E(13); E(14); Cv(6); E(15)
    while side: sd()

def publish(a, tag, voff, vone, soff, nyoung=0):
    a(f's_waitcnt vmcnt({nyoung})')
    a('s_mov_b64 exec, 1')
    a('s_cmp_lg_u32 s60, 0')
    a(f's_cbranch_scc1 M_PF{tag}')
    a('buffer_wbl2 sc1')
    a('s_waitcnt vmcnt(0)')
    a(f'buffer_store_dword v{vone}, v{voff}, s[20:23], {soff} offen sc0 sc1')
    a(f's_branch M_PX{tag}')
    a(f'M_PF{tag}:')
    a(f'buffer_store_dword v{vone}, v{voff}, s[20:23], {soff} offen')
    a(f'M_PX{tag}:')
    a('s_mov_b64 exec, -1')

def flag_only(a, tag, voff, vone, soff, off, n=0):
    a(f's_waitcnt vmcnt({n})')
    a('s_mov_b64 exec, 1')
    a('s_cmp_lg_u32 s60, 0')
    a(f's_cbranch_scc1 M_PF{tag}')
    a(f'buffer_store_dword v{vone}, v{voff}, s[20:23], {soff} offen offset:{off} sc0 sc1')
    a(f's_branch M_PX{tag}')
    a(f'M_PF{tag}:')
    a(f'buffer_store_dword v{vone}, v{voff}, s[20:23], {soff} offen offset:{off}')
    a(f'M_PX{tag}:')
    a('s_mov_b64 exec, -1')

def poll(a, tag, voff, vtmp, soff, code):
    a('s_mov_b32 s36, 0x80000')
    a(f'M_W{tag}:')
    a(f'buffer_load_dword v{vtmp}, v{voff}, s[20:23], {soff} offen offset:{1024 if code == 2 else 0} sc1')
    a('s_waitcnt vmcnt(0)')
    a(f'v_cmp_eq_u32 vcc, s59, v{vtmp}')
    a('s_cmp_eq_u64 vcc, -1')
    a(f's_cbranch_scc1 M_G{tag}')
    a('s_sleep 2')
    a('s_sub_u32 s36, s36, 1')
    a('s_cmp_lg_u32 s36, 0')
    a(f's_cbranch_scc1 M_W{tag}')
    a(f'M_G{tag}:')
    a('s_cmp_lg_u32 s60, 0')
    a(f's_cbranch_scc1 M_A{tag}')
    a('buffer_inv sc1')
    a('s_waitcnt vmcnt(0)')
    a(f'M_A{tag}:')

def mega():
    K = Kernel(NAME + '_kernel', 256, 512, L_END)
    a = K.a
    a('''
s_cmp_ge_u32 s2, 256
s_cbranch_scc1 M_END2
''')
    prof_init(a)
    fphase(a)
    stamp(a, 2)
    a("""
s_lshl_b32 s6, s4, 8
s_lshl_b32 s9, s5, 3
s_add_u32 s6, s6, s9
v_and_b32 v4, 31, v2
v_lshrrev_b32 v5, 5, v2
v_lshlrev_b32 v6, 5, v4
v_lshl_add_u32 v6, v5, 4, v6
v_lshrrev_b32 v7, 1, v4
v_lshlrev_b32 v7, 11, v7
v_lshl_add_u32 v7, v5, 10, v7
v_and_b32 v8, 1, v4
v_lshl_add_u32 v7, v8, 9, v7
s_add_u32 s9, s6, s3
s_and_b32 s9, s9, 31
s_lshl_b32 s9, s9, 4
s_lshl_b32 s10, s7, 15
s_add_u32 s9, s9, s10
""")
    a(f's_add_u32 s9, s9, {WS_Q}')
    a("""
v_mov_b32 v8, v3
v_lshl_add_u32 v9, v5, 4, v4
v_lshlrev_b32 v9, 4, v9
v_add_u32 v9, 0x400, v9
v_cmp_gt_u32 s[32:33], 16, v4
""")
    a(f'v_mov_b32 v11, {L_ONES+1024}')
    a("""
v_mov_b32 v12, 0x4000
v_and_b32 v13, 27, v4
v_cmp_eq_u32 s[34:35], 16, v13
v_add_u32 v13, 16, v11
v_cndmask_b32 v13, v13, v11, s[34:35]
v_add_u32 v14, 4, v4
v_and_b32 v14, 8, v14
v_lshl_add_u32 v13, v14, 3, v13
v_cndmask_b32 v9, v13, v9, s[32:33]
v_cndmask_b32 v10, 0, v12, s[32:33]
v_lshrrev_b32 v12, 1, v2
v_lshlrev_b32 v12, 11, v12
v_and_b32 v13, 1, v2
v_lshl_add_u32 v12, v13, 9, v12
v_add_u32 v12, v12, v11
""")
    for i in range(4): a(f'v_mov_b32 v{VA+i}, 0x3f803f80')
    for i in range(4): a(f'v_mov_b32 v{VB+i}, 0')
    for i in range(16): a(f'v_mov_b32 v{O+i}, 0')
    for i in range(4): a(f'v_mov_b32 v{S1+4+i}, 0')
    a(f'v_mov_b32 v{S1+14}, 0')
    a(f'v_mov_b32 v{S1+15}, 0')
    a("""
s_lshl_b32 s63, s3, 10
s_mov_b32 s10, s63
s_lshl_b32 s11, s4, 14
s_add_u32 s11, s11, s10
s_cmp_lg_u32 s3, 7
s_cbranch_scc1 M_NP0
v_and_b32 v13, 15, v2
s_lshl_b32 s14, s7, 6
s_lshl_b32 s15, s4, 7
""")
    a(f's_add_u32 s14, s14, {WS_QFL}')
    a(f's_add_u32 s15, s15, {WS_LFL}')
    a("""
v_lshl_add_u32 v13, v13, 2, s14
v_lshl_add_u32 v14, v4, 2, s15
v_cmp_gt_u32 vcc, 32, v2
s_mov_b32 s36, 0x80000
v_cndmask_b32 v13, v13, v14, vcc
M_W0:
buffer_load_dword v24, v13, s[20:23], 0 offen sc1
s_waitcnt vmcnt(0)
v_cmp_eq_u32 vcc, s59, v24
s_cmp_eq_u64 vcc, -1
s_cbranch_scc1 M_NP0
""")
    a(f's_sleep {E_("P0S", 1)}')
    a("""
s_sub_u32 s36, s36, 1
s_cmp_lg_u32 s36, 0
s_cbranch_scc1 M_W0
M_NP0:
s_barrier
""")
    stamp(a, 3)
    a(f'buffer_load_dwordx4 v[{Q}:{Q+3}], v7, s[20:23], s9 offen sc1')
    def dma(i):
        a('s_mov_b32 m0, s10')
        a(f's_add_u32 s12, s11, {WS_KVL if i < 2 else WS_KVF}')
        a('buffer_load_dwordx4 v3, s[20:23], s12 offen sc1 lds')
        if i < 15:
            a('s_add_u32 s10, s10, 8192')
            a('s_add_u32 s11, s11, 8192')
            a('s_and_b32 s11, s11, 0x1ffff')
    for i in range(2): dma(i)
    a('s_mov_b64 exec, 0xffff')
    a(f'ds_write_b128 v12, v[{VA}:{VA+3}]')
    a(f'ds_write_b128 v12, v[{VB}:{VB+3}] offset:16')
    a(f'ds_write_b128 v12, v[{VA}:{VA+3}] offset:64')
    a(f'ds_write_b128 v12, v[{VB}:{VB+3}] offset:80')
    a('s_mov_b64 exec, -1')
    a('s_waitcnt vmcnt(0) lgkmcnt(0)')
    a('s_barrier')
    stamp(a, 4)
    a('s_cmp_lg_u32 s3, 3')
    a('s_cbranch_scc1 M_NWF')
    a('s_cmp_ge_u32 s2, 128')
    a('s_cbranch_scc1 M_NWF')
    a('s_lshl_b32 s12, s2, 2')
    a(f's_add_u32 s12, s12, {WS_WFL}')
    a('v_mov_b32 v14, s59')
    a('v_mov_b32 v15, 0')
    a('s_mov_b64 exec, 1')
    a('buffer_store_dword v14, v15, s[20:23], s12 offen sc0 sc1')
    a('s_mov_b64 exec, -1')
    a('M_NWF:')
    a(f'ds_read_b128 v[{KK}:{KK+3}], v8')
    a('s_waitcnt lgkmcnt(0)')
    a(f'v_mfma_f32_32x32x16_bf16 v[{S0}:{S0+15}], v[{KK}:{KK+3}], v[{Q}:{Q+3}], 0')
    a(f'v_max3_f32 v12, v{S0}, v{S0+1}, v{S0+2}')
    a(f'v_max3_f32 v13, v{S0+3}, v{S0+4}, v{S0+5}')
    for i in range(6, 16, 4):
        a(f'v_max3_f32 v12, v12, v{S0+i}, v{S0+i+1}')
        if i + 2 < 16: a(f'v_max3_f32 v13, v13, v{S0+i+2}, v{S0+i+3}')
    a('''
v_max_f32 v12, v12, v13
v_mov_b32 v13, v12
v_permlane32_swap_b32 v12, v13
v_max_f32 v12, v12, v13
''')
    for i in range(16): a(f'v_sub_f32 v{C+i}, 0, v12')
    a(f'v_mfma_f32_32x32x16_bf16 v[{S0}:{S0+15}], v[{KK}:{KK+3}], v[{Q}:{Q+3}], v[{C}:{C+15}]')
    a(f'ds_read_b128 v[{KK}:{KK+3}], v8 offset:2048')
    a(f'ds_read_b128 v[{VA}:{VA+3}], v9')
    a('s_nop 7')

    nvm = [0]
    def wo_ld(f, reg):
        ks, c = f >> 2, f & 3
        a(f's_add_u32 s12, s13, {c*16384 + ks*1024}')
        a(f'buffer_load_dwordx4 v[{reg}:{reg+3}], v3, s[20:23], s12 offen sc1')
        nvm[0] += 1
    def wo_dma(f, ldsoff):
        ks, c = f >> 2, f & 3
        a(f's_add_u32 s10, s53, {ldsoff}')
        a('s_mov_b32 m0, s10')
        a(f's_add_u32 s12, s13, {c*16384 + ks*1024}')
        a('buffer_load_dwordx4 v3, s[20:23], s12 offen lds')
        nvm[0] += 1
    def ev_addr():
        a('''
v_and_b32 v13, 7, v2
v_add_u32 v13, s6, v13
v_lshlrev_b32 v14, 10, v13
v_lshrrev_b32 v15, 3, v2
v_lshl_add_u32 v14, v15, 4, v14
s_lshl_b32 s12, s3, 7
v_add_u32 v14, s12, v14
s_lshl_b32 s13, s3, 16
s_mul_i32 s62, s3, 28672
s_lshl_b32 s12, s5, 7
s_add_u32 s62, s62, s12
''')
        a(f's_add_u32 s13, s13, {WS_WOF}')
        a(f'global_load_dwordx4 v[{XR}:{XR+3}], v14, s[16:17]')
    xmark = [0]
    def ev_xld():
        a('s_getreg_b32 s58, hwreg(HW_REG_XCC_ID)')
        a('s_and_b32 s58, s58, 7')
        a('s_lshl_b32 s39, s4, 8')
        a(f's_add_u32 s39, s39, {WS_XT}')
        a('v_lshlrev_b32 v15, 3, v4')
        a('buffer_load_dwordx2 v[12:13], v15, s[20:23], s39 offen sc1')
        xmark[0] = nvm[0]
    def ev_xchk():
        a(f's_waitcnt vmcnt({nvm[0] - xmark[0]})')
        a("""
s_mov_b32 s38, 0x80000
M_XW:
v_cmp_eq_u32 vcc, s59, v13
s_cmp_eq_u64 vcc, -1
s_cbranch_scc1 M_XG
buffer_load_dwordx2 v[12:13], v15, s[20:23], s39 offen sc1
s_waitcnt vmcnt(0)
s_sub_u32 s38, s38, 1
s_cmp_lg_u32 s38, 0
s_cbranch_scc1 M_XW
M_XG:
v_cmp_eq_u32 vcc, s58, v12
s_cmp_eq_u64 vcc, -1
""")
        a(f's_cselect_b32 s60, {0 if FORCE_SLOW else 1}, 0')
        a('s_lshl_b32 s61, s4, 12')
        a(f's_add_u32 s61, s61, {WS_FLAG}')
    MW = 2
    def mod_a():
        a(f's_cmp_lg_u32 s3, {MW}')
        a('s_cbranch_scc1 M_MA')
        a('s_lshl_b32 s38, s5, 9')
        a(f's_add_u32 s38, s38, {WS_MODG + 8192}')
        mod_ld()
        a('M_MA:')
    def mod_ld():
        for p in range(4):
            a(f's_add_u32 s12, s38, {p*24576}')
            a(f'buffer_load_dwordx2 v[{240+2*p}:{241+2*p}], v12, s[20:23], s12 offen sc1')
    def mod_b():
        a(f's_cmp_lg_u32 s3, {MW}')
        a('s_cbranch_scc1 M_MB')
        a('s_mov_b32 s39, 0x40000')
        a('M_MW:')
        a('s_waitcnt vmcnt(0)')
        for p in range(4): a(f'v_xor_b32 v{241+2*p}, s59, v{241+2*p}')
        a('v_or3_b32 v241, v241, v243, v245')
        a('v_or_b32 v241, v241, v247')
        a('v_cmp_eq_u32 vcc, 0, v241')
        a('s_cmp_eq_u64 vcc, -1')
        a('s_cbranch_scc1 M_MG')
        mod_ld()
        a('s_sub_u32 s39, s39, 1')
        a('s_cmp_lg_u32 s39, 0')
        a('s_cbranch_scc1 M_MW')
        a('s_waitcnt vmcnt(0)')
        a('M_MG:')
        a('v_add_f32 v240, v240, v242')
        a('v_add_f32 v244, v244, v246')
        a('v_add_f32 v240, v240, v244')
        round_bf16(a, 240)
        a('s_lshr_b32 s12, s5, 3')
        a('s_cmp_lg_u32 s12, 2')
        a('s_cbranch_scc1 M_NOADD')
        a('v_add_f32 v240, 1.0, v240')
        round_bf16(a, 240)
        a('M_NOADD:')
        a('s_lshl_b32 s12, s4, 13')
        a('s_lshl_b32 s39, s5, 8')
        a('s_add_u32 s12, s12, s39')
        a(f's_add_u32 s12, s12, {WS_MODF}')
        a('v_lshlrev_b32 v241, 2, v2')
        a('buffer_store_dword v240, v241, s[20:23], s12 offen sc0 sc1')
        a('M_MB:')
        mk_[0] = nvm[0]
    mk_ = [0, 0, 0]
    def mod_c():
        a(f's_cmp_lg_u32 s3, {MW}')
        a('s_cbranch_scc1 M_MC')
        a('s_lshl_b32 s12, s4, 5')
        a('s_add_u32 s12, s12, s5')
        a('s_lshl_b32 s12, s12, 2')
        a(f's_add_u32 s12, s12, {WS_MFL}')
        a('v_mov_b32 v12, s59')
        a('v_mov_b32 v13, 0')
        a(f's_waitcnt vmcnt({nvm[0] - mk_[0]})')
        a('s_mov_b64 exec, 1')
        a('buffer_store_dword v12, v13, s[20:23], s12 offen sc0 sc1')
        a('s_mov_b64 exec, -1')
        a('M_MC:')
    def mod_d():
        a('s_lshl_b32 s38, s4, 7')
        a(f's_add_u32 s38, s38, {WS_MFL}')
        a('v_lshlrev_b32 v13, 2, v4')
        a('buffer_load_dword v12, v13, s[20:23], s38 offen sc1')
        mk_[1] = nvm[0]
    def mod_e():
        a(f's_waitcnt vmcnt({nvm[0] - mk_[1]})')
        a("""
s_mov_b32 s39, 0x80000
M_EW:
v_cmp_eq_u32 vcc, s59, v12
s_cmp_eq_u64 vcc, -1
s_cbranch_scc1 M_EG
s_sleep 2
buffer_load_dword v12, v13, s[20:23], s38 offen sc1
s_waitcnt vmcnt(0)
s_sub_u32 s39, s39, 1
s_cmp_lg_u32 s39, 0
s_cbranch_scc1 M_EW
M_EG:
s_cmp_ge_u32 s3, 6
""")
        a(f's_cselect_b32 s12, {L_GB - 6144}, {L_MODS}' if False else f's_mov_b32 s12, {L_MODS}')
        a(f's_cselect_b32 s12, {L_GB - 6144}, s12')
        a('s_add_u32 s12, s12, s63')
        a('s_mov_b32 m0, s12')
        a('s_lshl_b32 s12, s4, 13')
        a('s_add_u32 s12, s12, s63')
        a(f's_add_u32 s12, s12, {WS_MODF}')
        a('buffer_load_dwordx4 v3, s[20:23], s12 offen sc1 lds')
        mk_[2] = nvm[0]
    def prio(p, tag):
        def f():
            a('s_cmp_lt_u32 s3, 4')
            a(f's_cbranch_scc1 M_P{tag}')
            a(f's_setprio {p}')
            a(f'M_P{tag}:')
        return f
    def touch_setup():
        a('s_mul_i32 s54, s5, 57344')
        a('v_lshlrev_b32 v11, 7, v2')
        for r in (64, 68, 72):
            a(f's_and_b32 s{r+1}, s{r+1}, 0xffff')
            a(f's_mov_b32 s{r+2}, 1835008')
            a(f's_mov_b32 s{r+3}, 0x20000')
    def touch(u):
        def f():
            mat, k = u // 7, u % 7
            a(f's_cmp_lg_u32 s3, {u & 7}')
            a(f's_cbranch_scc1 M_T{u}')
            a(f's_add_u32 s55, s54, {k*8192}')
            a(f'buffer_load_dword v1, v11, s[{64+4*mat}:{67+4*mat}], s55 offen')
            a(f'M_T{u}:')
        return f
    side = {T: [] for T in range(64)}
    def gf_ld():
        a(f's_mov_b32 s15, {WS_GFL}')
        a('buffer_load_dwordx4 v[220:223], v3, s[20:23], s15 offen sc1')
    def gf_chk():
        a('s_mov_b32 s36, 0x80000')
        a('M_GW:')
        a('s_waitcnt vmcnt(0)')
        for r in (220, 221, 222, 223): a(f'v_xor_b32 v{r}, s59, v{r}')
        a("""
v_or3_b32 v220, v220, v221, v222
v_or_b32 v220, v220, v223
v_cmp_eq_u32 vcc, 0, v220
s_cmp_eq_u64 vcc, -1
s_cbranch_scc1 M_GG
s_sleep 4
""")
        gf_ld()
        a("""
s_sub_u32 s36, s36, 1
s_cmp_lg_u32 s36, 0
s_cbranch_scc1 M_GW
s_waitcnt vmcnt(0)
M_GG:
""")
        a('s_lshl_b32 s61, s4, 12')
        a(f's_add_u32 s61, s61, {WS_FLAG}')
    a('v_lshlrev_b32 v12, 3, v2')
    gf_ld()
    side[2].append(gf_chk)
    for i in range(2, 16): side[min(2 + (i-2)//2, 8)].append(lambda i=i: dma(i))
    side[5].append('vbar6')
    side[11].append('vbar')
    A0, MODT = E_('A0', 12), E_('MODT', 17)
    side[9].append(ev_addr)
    side[10].append(touch_setup)
    def wf_ld():
        a(f's_mov_b32 s15, {WS_WFL}')
        a('buffer_load_dwordx2 v[216:217], v12, s[20:23], s15 offen sc1')
    def wf_chk():
        a("""
s_mov_b32 s36, 0x80000
M_WW:
v_cmp_eq_u32 vcc, s59, v216
v_cmp_eq_u32 s[34:35], s59, v217
s_and_b64 vcc, vcc, s[34:35]
s_cmp_eq_u64 vcc, -1
s_cbranch_scc1 M_WG
s_sleep 4
buffer_load_dwordx2 v[216:217], v12, s[20:23], s15 offen sc1
s_waitcnt vmcnt(0)
s_sub_u32 s36, s36, 1
s_cmp_lg_u32 s36, 0
s_cbranch_scc1 M_WW
M_WG:
""")
    side[9].append(wf_ld)
    side[12].append(wf_chk)
    def bump():
        a('s_lshl_b32 s12, s2, 3')
        a('s_add_u32 s12, s12, s3')
        a('s_cmp_lg_u32 s12, 1')
        a('s_cbranch_scc1 M_NB')
        a('v_mov_b32 v220, s59')
        a('v_mov_b32 v221, 0')
        a(f's_mov_b32 s12, {WS_EPOCH}')
        a('s_mov_b64 exec, 1')
        a('buffer_store_dword v220, v221, s[20:23], s12 offen')
        a('s_mov_b64 exec, -1')
        a('M_NB:')
    side[10].append(bump)
    side[9].append(mod_a)
    side[12].append(mod_b)
    side[15].append(mod_c)
    side[E_('B0', 34) - 8].append(mod_d)
    side[E_('B0', 34) - 5].append(mod_e)
    NREG = 39
    treg = {f: WO + 4*f for f in range(37)}
    treg[37], treg[38] = P, P + 4
    NLDS = E_('NLDS', 4)
    def wo_park(j):
        f = NREG + j
        ks, c = f >> 2, f & 3
        if j == 0:
            a('s_lshl_b32 s10, s63, 1')
            a(f's_add_u32 s10, s10, {L_ONES}')
        else: a(f's_add_u32 s10, s63, {98304 + (j-1)*8192}')
        a('s_mov_b32 m0, s10')
        a(f's_add_u32 s12, s13, {c*16384 + ks*1024}')
        a('buffer_load_dwordx4 v3, s[20:23], s12 offen sc1 lds')
        nvm[0] += 1
    side[WOSTART].append(lambda: wo_park(0))
    if NLDS > 1:
        side[60].append('bar')
        for j in range(1, NLDS): side[61 + (j-1)//2].append(lambda j=j: wo_park(j))
    WOEND = E_('WOEND', 33)
    for f in range(NREG): side[WOSTART + f*(WOEND - WOSTART)//NREG].append(lambda f=f: wo_ld(f, treg[f]))
    order = []
    def w1setup():
        a("""
v_lshrrev_b32 v7, 3, v2
v_mul_u32_u24 v0, 3584, v7
v_and_b32 v15, 7, v2
v_and_b32 v7, 2, v7
v_xor_b32 v15, v15, v7
v_lshl_add_u32 v0, v15, 4, v0
v_xor_b32 v7, 64, v0
s_mov_b32 s44, s64
s_mov_b32 s45, s65
s_mov_b32 s47, 0x20000
s_mov_b32 s48, s68
s_mov_b32 s49, s69
s_mov_b32 s51, 0x20000
s_cmp_ge_u32 s5, 28
s_cselect_b32 s46, 0, s66
s_cselect_b32 s50, 0, s70
""")
    def w1dma(mat, g, fl=''):
        a(f's_add_u32 s36, s63, {mat*65536 + g*8192}')
        a('s_mov_b32 m0, s36')
        a(f's_add_u32 s37, s62, {g*8*28672}')
        a(f'buffer_load_dwordx4 v{7 if mat else 0}, s[{44+4*mat}:{47+4*mat}], s37 offen {fl} lds')
        order.append(('d', mat, g)); nvm[0] += 1
    B0 = E_('B0', 34)
    side[B0 - 2].append(w1setup)
    side[B0 - 1].append('mbar')
    for g in range(12):
        T = B0 + g*(E_('BEND', 58) - B0)//12
        if g == 8:
            assert T >= 50
            side[T - 1].append('bar')
        side[T].append(lambda g=g: w1dma(g >> 3, g & 7, W1F))
    def tch(tag, w, srdr, base_expr):
        def f():
            a(f's_cmp_lg_u32 s3, {w}')
            a(f's_cbranch_scc1 M_T{tag}')
            for x in base_expr: a(x)
            a(f'buffer_load_dword v1, v11, s[{srdr}:{srdr+3}], s55 offen')
            a(f'M_T{tag}:')
        return f
    if 'm' in TCH:
        side[E_('TG', 20)].append(tch('g', 5, 64, ['s_mul_i32 s55, s2, 7168']))
        side[E_('TG', 20) + 3].append(tch('u', 6, 68, ['s_mul_i32 s55, s2, 7168']))
    if 'u' in TCH:
        for k in range(4):
            side[E_('TU0', 40) + E_('TUS', 5)*k].append(tch(f'v{k}', k, 68, ['s_mul_i32 s55, s5, 28672', f's_add_u32 s55, s55, {917504 + min(k*8192, 28672-8192)}']))
    if 'd' in TCH:
        for k in range(7):
            side[E_('TD0', 20) + 3*k].append(tch(f'w{k}', k, 72, [f's_add_u32 s55, s54, {k*8192}']))
    def touch_wd():
        a('s_cmp_lg_u32 s3, 7')
        a('s_cbranch_scc1 M_TD')
        a('s_mul_i32 s55, s2, 7168')
        a('buffer_load_dword v1, v11, s[72:75], s55 offen')
        a('M_TD:')
    side[E_('TWD', 37)].append(touch_wd)
    for k in range(2):
        side[E_('TO', 12)].append(tch(f'o{k}', k, 20, ['s_lshl_b32 s55, s5, 14', f's_add_u32 s55, s55, {WS_WOF + k*8192}']))
    if E_('RTO', 0):
        side[E_('RTO', 0)].append(tch('r', 3, 20, ['s_lshl_b32 s55, s5, 14', f's_add_u32 s55, s55, {WS_WOF + 8192}']))
    def ct2():
        a('s_cmp_lg_u32 s3, 5')
        a('s_cbranch_scc1 M_CT2')
        code_touch(a, 'M_FIN', 'M_END2', 'b', vid=2, va=12, vd=1, sb=36)
        a('M_CT2:')
    if E_('CT2', 0): side[E_('CT2', 0)].append(ct2)
    def preown():
        a(f'global_store_dwordx4 v14, v[{Q}:{Q+3}], s[56:57]')
        nvm[0] += 1
    def preown2():
        a("""
s_lshl_b32 s36, s4, 3
s_add_u32 s36, s36, s3
s_mul_i32 s36, s36, 0x1c000
s_min_u32 s37, s5, 27
s_lshl_b32 s37, s37, 12
s_add_u32 s36, s36, s37
""")
        a(f's_add_u32 s36, s36, {WS_ACTF}')
        if 'L' in PRE:
            a('v_lshlrev_b32 v13, 6, v2')
            a(f'buffer_load_dword v1, v13, s[20:23], s36 offen')
            nvm[0] += 1
        else:
            a('s_cmp_ge_u32 s5, 28')
            a('s_cbranch_scc1 M_NPO')
            for c in range(4): a(f'buffer_store_dwordx4 v[{Q}:{Q+3}], v3, s[20:23], s36 offen offset:{c*1024}')
            a('M_NPO:')
    if 'h' in PRE: side[E_('PREH', 35)].append(preown)
    def act_touch(w):
        def f():
            a(f's_cmp_lg_u32 s3, {w}')
            a(f's_cbranch_scc1 M_AT{w}')
            a("""
s_lshl_b32 s36, s4, 3
s_add_u32 s36, s36, s3
s_mul_i32 s36, s36, 0x1c000
s_min_u32 s37, s5, 27
s_lshl_b32 s37, s37, 12
s_add_u32 s36, s36, s37
s_mov_b32 exec_hi, 0
""")
            a(f's_add_u32 s36, s36, {WS_ACTF}')
            a(f'buffer_load_dword v1, v11, s[20:23], s36 offen {ATF}')
            a('s_mov_b64 exec, -1')
            a(f'M_AT{w}:')
        return f
    if 'a' in PRE:
        for w in range(8): side[E_('AT0', 18) + w*E_('ATS', 2)].append(act_touch(w))
    if E_('PSEG', 1):
        ends = sorted(T for T in side if any(isinstance(x, str) for x in side[T])) + [63]
        st = 0
        FR = float(os.environ.get('PFR', '0.7'))
        MX = E_('PMX', 8)
        for e in ends:
            n = e - st + 1
            if n <= 0: continue
            k = -(-n // MX)
            for j in range(k):
                b0 = st + j*n//k; b1 = st + (j+1)*n//k
                h2_ = int(round((b1 - b0)*FR*2))
                side[b0].insert(0, prio(1, f'a{b0}'))
                Tl = b0 + h2_//2
                if Tl < b1:
                    if h2_ & 1:
                        fs_ = [x for x in side[Tl] if not isinstance(x, str)]
                        if not fs_: side[Tl].insert(0, lambda: None)
                        side[Tl].insert(1, prio(0, f'b{b0}'))
                    else: side[Tl].insert(0, prio(0, f'b{b0}'))
            st = e + 1
    else:
        for T in range(0, 64, PRIO_PERIOD):
            side[T].insert(0, prio(1, f'a{T}'))
            side[T + PRIO_HI].insert(0, prio(0, f'b{T}'))
    EL = E_('EL', 1)
    late = [C, C+4, C+8, C+12, S0, S0+4, S0+8, S0+12, O, O+4, O+8, O+12]
    def el(j0, j1):
        def f():
            for j in range(j0, j1): wo_ld(NREG + NLDS + j, late[j])
        return f
    if EL:
        side[63] = [x for x in side[63]] + [el(0, 2), el(2, 4), el(4, 6), el(6, 8)]
    SK = os.environ.get('SK', '')
    def kind(f):
        if isinstance(f, str): return 'b' if f == 'bar' else ''
        q = getattr(f, '__qualname__', '')
        src = f.__code__.co_names + f.__code__.co_freevars
        if 'modld' in q or 'ev_mod' in q: return 'm'
        if 'wo_ld' in src: return 'w'
        if 'w1dma' in src: return 'd'
        if 'preown' in q: return 'p'
        if 'tch' in q or 'touch_wd' in q or 'act_touch' in q: return 't'
        return ''
    for T in side: side[T] = [f for f in side[T] if not (kind(f) and kind(f) in SK)]
    LT = [int(x) for x in os.environ.get('LT', '2,5,11,20,33').split(',')]
    for T in range(64):
        tile(a, T & 7, [x for x in side[T] if not isinstance(x, str)], last=(T == 63))
        if 'vbar' in side[T]: a('s_waitcnt vmcnt(0)')
        if 'vbar6' in side[T]: a('s_waitcnt vmcnt(6)')
        if 'mbar' in side[T]:
            a(f's_waitcnt vmcnt({nvm[0] - mk_[2]})')
            a('s_barrier')
        if 'vbar' in side[T] or 'bar' in side[T] or 'vbar6' in side[T]: a('s_barrier')
        if 'l' in DIAG and T in LT: stamp(a, 6 + LT.index(T))

    if 'F' not in DIAG: stamp(a, 5)
    a('s_setprio 0')
    a(f'v_cvt_pk_bf16_f32 v{S1+7}, v{S1+14}, v{S1+15}')
    a('s_waitcnt lgkmcnt(0)')
    a(f'v_mfma_f32_32x32x16_bf16 v[{O}:{O+15}], v[{VB}:{VB+3}], v[{S1+4}:{S1+7}], v[{O}:{O+15}]')
    a(f'v_add_f32 v12, |v{O}|, |v{O+1}|')
    a(f'v_add_f32 v13, |v{O+2}|, |v{O+3}|')
    a(f'v_add_f32 v12, v12, |v{O+4}|')
    a(f'v_add_f32 v13, v13, |v{O+5}|')
    a(f'v_add_f32 v12, v12, |v{O+6}|')
    a(f'v_add_f32 v13, v13, |v{O+7}|')
    a(f'v_add_f32 v12, v12, v{O+8}')
    a('v_add_f32 v12, v12, v13')
    a('s_mov_b32 s12, 0x7e800000')
    a('v_cmp_gt_f32 vcc, s12, v12')
    a('s_cmp_eq_u64 vcc, -1')
    a('s_cbranch_scc0 M_SLOW')
    a('M_FIN:')
    ACC = S1
    ring = [KK, VA, VB, Q]
    a(f'v_rcp_f32 v12, v{O+8}')
    for i in range(8): a(f'v_mul_f32 v{O+i}, v{O+i}, v12')
    for i in range(4): a(f'v_cvt_pk_bf16_f32 v{S1+i}, v{O+2*i}, v{O+2*i+1}')
    a('s_mul_i32 s12, s3, 1056')
    a(f's_add_u32 s12, s12, {L_OX}')
    a('v_add_u32 v12, s12, v6')
    a(f'ds_write_b128 v12, v[{S1}:{S1+3}]')
    late = [C, C+4, C+8, C+12, S0, S0+4, S0+8, S0+12, O, O+4, O+8, O+12]
    freg = dict(treg)
    nxt = NREG + NLDS
    order.clear()
    a("""
v_and_b32 v13, 7, v2
v_mul_u32_u24 v13, 1056, v13
v_lshrrev_b32 v15, 4, v2
v_lshl_add_u32 v13, v15, 4, v13
s_lshl_b32 s10, s63, 1
""")
    a(f'v_add_u32 v13, {L_OX}, v13')
    a(f's_add_u32 s10, s10, {L_ONES}')
    a('v_add_u32 v8, s10, v3')
    a('s_add_u32 s10, s63, 98304')
    a('v_add_u32 v9, s10, v3')
    NB4 = E_('NB4', 12)
    for j, r in enumerate(late[:NB4]):
        freg[nxt] = r
        if not (EL and j < 8): wo_ld(nxt, r)
        order.append(nxt); nxt += 1
    if E_('EP', 1): prio(1, 'e1')()
    a('s_waitcnt lgkmcnt(0)')
    a('s_barrier')
    if 'e' in DIAG: stamp(a, 1)
    lg = []
    def lrd_b(ks):
        a(f'ds_read_b128 v[{ring[ks&3]}:{ring[ks&3]+3}], v13 offset:{64*ks}'); lg.append(('b', ks))
    for ks in range(4): lrd_b(ks)
    G, SB, CB, X = 184, 192, 200, 208
    M, D, ST, A1, A2, A3_, EPS = 216, 220, 228, 244, 245, 246, 247
    pr = lambda r: f'v[{r}:{r+1}]'
    def pre_ln():
        a("""
v_lshrrev_b32 v15, 3, v2
v_lshlrev_b32 v12, 5, v15
s_lshl_b32 s12, s3, 8
""")
        a(f's_add_u32 s12, s12, {L_MODS}')
        a('v_add_u32 v12, s12, v12')
        for i, r in enumerate((G, SB, CB)):
            a(f'ds_read_b128 v[{r}:{r+3}], v12 offset:{2048*i}')
            a(f'ds_read_b128 v[{r+4}:{r+7}], v12 offset:{2048*i+16}')
            lg.extend(['m', 'm'])
        unpack(a, X, XR, 4)
        a(f'v_and_b32 v{A1}, 8, v2')
        a(f'v_cmp_eq_u32 s[34:35], 0, v{A1}')
        a(f'v_and_b32 v{A2}, 7, v2')
        a(f'v_lshlrev_b32 v{A3_}, 9, v15')
        a(f'v_lshl_add_u32 v{A3_}, v{A2}, 4, v{A3_}')
        a(f'v_lshlrev_b32 v{A1}, 6, v{A2}')
        a(f'v_add_u32 v{A1}, {L_STAT}, v{A1}')
        a('s_lshl_b32 s12, s3, 3')
        a(f'v_add_u32 v{A2}, s12, v{A1}')
        a(f'v_mov_b32 v{EPS}, {f32(1e-5)}')
        a("""
s_lshr_b32 s38, s6, 5
s_lshl_b32 s38, s38, 15
s_and_b32 s14, s6, 31
s_lshl_b32 s14, s14, 4
s_add_u32 s38, s38, s14
s_lshl_b32 s14, s3, 12
s_add_u32 s38, s38, s14
""")
        a(f's_add_u32 s38, s38, {H2B}')
    pool = late[NB4:]
    w1q = [(1, g) for g in range(4, 8)]
    nl = 0
    for ks in range(16):
        br = ring[ks & 3]
        for c in range(4):
            f = 4*ks + c
            w = []
            need = [lg.index(('b', ks))] if c == 0 else []
            if ('w', f) in lg: need.append(lg.index(('w', f)))
            if f == 30: need.append(lg.index(('w', NREG + NLDS - 1)))
            if need: w.append(f'lgkmcnt({len(lg) - max(need) - 1})')
            if f in order: w.append(f'vmcnt({len(order) - order.index(f) - 1})')
            elif f == 0: w.append(f'vmcnt({len(order)})')
            if w: a('s_waitcnt ' + ' '.join(w))
            r = freg[f]
            cc = '0' if ks == 0 else f'v[{ACC+4*c}:{ACC+4*c+3}]'
            a(f'v_mfma_f32_16x16x32_bf16 v[{ACC+4*c}:{ACC+4*c+3}], v[{r}:{r+3}], v[{br}:{br+3}], {cc}')
            if f < 19: pool.append(r)
            if f == 42: pre_ln()
            if E_('EP', 1) and f == E_('EPF', 40): a('s_setprio 0')
            if nxt < 64:
                r2 = pool.pop(0)
                freg[nxt] = r2; wo_ld(nxt, r2); order.append(nxt); nxt += 1
            elif nl < NLDS:
                r2 = pool.pop(0); g_ = NREG + nl
                a(f'ds_read_b128 v[{r2}:{r2+3}], v{8 if nl == 0 else 9} offset:{0 if nl == 0 else (nl-1)*8192}')
                lg.append(('w', g_)); freg[g_] = r2; nl += 1
            elif w1q and f >= E_('W1L', 30): w1dma(*w1q.pop(0))
        if ks + 4 < 16: lrd_b(ks + 4)
    if 'e' in DIAG: stamp(a, 2)
    for i in range(8): a(f'v_cndmask_b32 v{ACC+i}, v{ACC+8+i}, v{ACC+i}, s[34:35]')
    for i in range(4): a(f'v_pk_fma_f32 {pr(X+2*i)}, {pr(ACC+2*i)}, {pr(G+2*i)}, {pr(X+2*i)}')
    def red(r, t):
        a(f'v_add_f32_dpp v{r}, v{r}, v{r} row_ror:8 row_mask:0xf bank_mask:0xf')
        a(f'v_mov_b32 v{t}, v{r}')
        a(f'v_permlane16_swap_b32 v{r}, v{t}')
        a(f'v_add_f32 v{r}, v{r}, v{t}')
        a(f'v_mov_b32 v{t}, v{r}')
        a(f'v_permlane32_swap_b32 v{r}, v{t}')
        a(f'v_add_f32 v{r}, v{r}, v{t}')
    a(f'v_pk_add_f32 {pr(M)}, {pr(X)}, {pr(X+2)}')
    a(f'v_pk_add_f32 {pr(M+2)}, {pr(X+4)}, {pr(X+6)}')
    a(f'v_pk_add_f32 {pr(M)}, {pr(M)}, {pr(M+2)}')
    a(f'v_add_f32 v{M}, v{M}, v{M+1}')
    for i in range(2): a(f'v_cvt_pk_bf16_f32 v{XR+i}, v{X+2*i}, v{X+2*i+1}')
    red(M, M+2)
    a(f'v_mul_f32 v{M}, {f32(1/64)}, v{M}')
    for i in range(4): a(f'v_pk_add_f32 {pr(D+2*i)}, {pr(X+2*i)}, {pr(M)} op_sel_hi:[1,0] neg_lo:[0,1] neg_hi:[0,1]')
    a(f'v_pk_mul_f32 {pr(M+2)}, {pr(D)}, {pr(D)}')
    for i in range(1, 4): a(f'v_pk_fma_f32 {pr(M+2)}, {pr(D+2*i)}, {pr(D+2*i)}, {pr(M+2)}')
    a(f'v_add_f32 v{M+1}, v{M+2}, v{M+3}')
    for i in range(2, 4): a(f'v_cvt_pk_bf16_f32 v{XR+i}, v{X+2*i}, v{X+2*i+1}')
    red(M+1, M+2)
    a('s_mov_b64 exec, 0xff')
    a(f'ds_write_b64 v{A2}, v[{M}:{M+1}]')
    a('s_mov_b64 exec, -1')
    a(f'global_store_dwordx4 v14, v[{XR}:{XR+3}], s[56:57]')
    for i in range(4): a(f'v_pk_mul_f32 {pr(D+2*i)}, {pr(D+2*i)}, {pr(CB+2*i)}')
    a('s_waitcnt lgkmcnt(0)')
    a('s_barrier')
    for i in range(4): a(f'ds_read_b128 v[{ST+4*i}:{ST+4*i+3}], v{A1} offset:{16*i}')
    a('s_waitcnt lgkmcnt(0)')
    T_ = X
    for i in range(4): a(f'v_pk_add_f32 {pr(T_+2*i)}, {pr(ST+4*i)}, {pr(ST+4*i+2)}')
    a(f'v_pk_add_f32 {pr(T_)}, {pr(T_)}, {pr(T_+2)}')
    a(f'v_pk_add_f32 {pr(T_+4)}, {pr(T_+4)}, {pr(T_+6)}')
    a(f'v_pk_add_f32 {pr(T_)}, {pr(T_)}, {pr(T_+4)}')
    a(f'v_mul_f32 v{T_}, {f32(1/8)}, v{T_}')
    a(f'v_fmamk_f32 v{T_+1}, v{T_+1}, {f32(1/512)}, v{EPS}')
    for i in range(8): a(f'v_sub_f32 v{ST+2*i}, v{ST+2*i}, v{T_}')
    a(f'v_sub_f32 v{M}, v{M}, v{T_}')
    a(f'v_mul_f32 v{T_+2}, v{ST}, v{ST}')
    a(f'v_mul_f32 v{T_+3}, v{ST+2}, v{ST+2}')
    for i in range(2, 8): a(f'v_fmac_f32 v{T_+2+(i&1)}, v{ST+2*i}, v{ST+2*i}')
    a(f'v_add_f32 v{T_+2}, v{T_+2}, v{T_+3}')
    a(f'v_fmac_f32 v{T_+1}, {f32(1/8)}, v{T_+2}')
    a(f'v_rsq_f32 v{T_+4}, v{T_+1}')
    for i in range(4): a(f'v_pk_fma_f32 {pr(D+2*i)}, {pr(CB+2*i)}, {pr(M)}, {pr(D+2*i)} op_sel_hi:[1,0,1]')
    for i in range(4): a(f'v_pk_fma_f32 {pr(SB+2*i)}, {pr(D+2*i)}, {pr(T_+4)}, {pr(SB+2*i)} op_sel_hi:[1,0,1]')
    for i in range(4): a(f'v_cvt_pk_bf16_f32 v{D+i}, v{SB+2*i}, v{SB+2*i+1}')
    a(f'buffer_store_dwordx4 v[{D}:{D+3}], v{A3_}, s[20:23], s38 offen {STH}')
    stamp(a, 6) if 'l' not in DIAG and 'F' not in DIAG else None
    a('''
s_lshl_b32 s12, s5, 3
s_add_u32 s12, s12, s3
s_lshl_b32 s12, s12, 2
v_mov_b32 v6, s12
v_mov_b32 v5, v7
v_mov_b32 v7, s59
v_bfe_u32 v16, v2, 4, 1
v_lshlrev_b32 v12, 16, v16
v_lshrrev_b32 v17, 5, v2
v_lshl_add_u32 v12, v17, 10, v12
v_bfe_u32 v17, v2, 2, 2
v_lshl_add_u32 v12, v17, 7, v12
v_bfe_u32 v13, v2, 1, 1
v_lshl_add_u32 v12, v13, 3, v12
v_and_b32 v13, 1, v2
v_and_b32 v17, 2, v17
v_xor_b32 v13, v13, v17
v_lshlrev_b32 v16, 2, v16
v_xor_b32 v13, v13, v16
v_lshl_add_u32 v8, v13, 4, v12
v_xor_b32 v9, 32, v8
v_xor_b32 v10, 64, v8
v_xor_b32 v11, 0x60, v8
s_lshl_b32 s11, s4, 3
s_add_u32 s11, s11, s3
s_mul_i32 s14, s11, 0x1c000
s_lshl_b32 s11, s11, 15
s_lshl_b32 s13, s5, 12
s_add_u32 s14, s14, s13
v_and_b32 v12, 31, v2
s_lshl_b32 s13, s3, 7
v_lshl_add_u32 v12, v12, 2, s13
''')
    a(f'v_mov_b32 v15, {f32(K1C)}')
    a(f's_mov_b32 s42, {f32(K1C)}')
    a(f's_mov_b32 s43, {f32(K0C)}')
    a(f's_add_u32 s11, s11, {H2B}')
    a(f's_add_u32 s14, s14, {WS_ACTF}')
    publish(a, 1, 6, 7, 's61')
    for mat, g in w1q:
        a(f's_add_u32 s36, s63, {mat*65536 + g*8192}')
        a('s_mov_b32 m0, s36')
        a(f's_add_u32 s37, s62, {g*8*28672}')
        a('buffer_load_dwordx4 v5, s[48:51], s37 offen lds')
    GB = 56
    a("""
s_and_b32 s15, s5, 7
s_lshl_b32 s17, s15, 1
s_and_b32 s6, s3, 1
s_add_u32 s17, s17, s6
s_lshl_b32 s17, s17, 2
s_lshr_b32 s8, s3, 2
s_add_u32 s17, s17, s8
s_lshl_b32 s17, s17, 4
s_lshl_b32 s38, s17, 1
v_lshrrev_b32 v16, 5, v2
""")
    a(f's_add_u32 s38, s38, {L_GB}')
    a('v_lshl_add_u32 v16, v16, 6, s38')
    a(f'ds_read_b128 v[{GB}:{GB+3}], v16')
    a(f'ds_read_b128 v[{GB+4}:{GB+7}], v16 offset:16')
    a("""
v_lshrrev_b32 v16, 3, v2
v_and_b32 v17, 7, v2
v_and_b32 v18, 2, v16
v_lshlrev_b32 v18, 1, v18
v_xor_b32 v17, v17, v18
v_lshlrev_b32 v14, 10, v16
v_lshl_add_u32 v14, v17, 4, v14
s_lshl_b32 s10, s15, 7
s_lshr_b32 s9, s5, 3
s_mul_i32 s13, s9, 7
s_mul_i32 s16, s15, 3
s_add_u32 s13, s13, s16
s_add_u32 s13, s13, s3
s_cmp_ge_u32 s13, 28
s_cselect_b32 s38, 28, 0
s_sub_u32 s13, s13, s38
s_mov_b32 s39, s13
s_lshl_b32 s41, s3, 11
""")
    WSLOT = [131072, 147456, 0, 16384, 65536, 81920]
    ASLOT = [32768, 49152, 98304, 114688]
    wloc = {i: WSLOT[i] for i in range(6)}
    aloc = {i: ASLOT[i] for i in range(4)}
    def nxt_stage(r):
        a(f's_add_u32 s{r}, s{r}, 8')
        a(f's_sub_u32 s38, s{r}, 28')
        a(f's_cmp_ge_u32 s{r}, 28')
        a(f's_cselect_b32 s{r}, s38, s{r}')
    def ks_of(s, r, dst):
        a(f's_lshl_b32 s{dst}, s{r}, 2')
        c0 = (8*s)//28
        if c0: a(f's_add_u32 s{dst}, s{dst}, {c0}')
        if s in (3, 10): a(f's_add_u32 s{dst}, s{dst}, s8')
    def wd_dma(s, k):
        if k == 0:
            ks_of(s, 13, 18)
            a('s_lshl_b32 s18, s18, 14')
            a('s_add_u32 s18, s18, s10')
        a(f's_add_u32 s16, s41, {wloc[s] + k*1024}')
        a('s_mov_b32 m0, s16')
        if k: a('s_add_u32 s18, s18, 0x2000')
        a('buffer_load_dwordx4 v14, s[72:75], s18 offen lds')
        if k and s < 13: nxt_stage(13)
    a("""
s_lshl_b32 s12, s3, 5
s_add_u32 s12, s12, s5
s_lshl_b32 s12, s12, 2
s_add_u32 s12, s12, 1024
v_mov_b32 v6, s12
""")
    a('s_cmp_ge_u32 s5, 28')
    a('s_cbranch_scc1 M_SPARE')
    poll(a, 1, 12, 13, 's61', 1)
    stamp(a, 7) if 'l' not in DIAG and 'F' not in DIAG else None

    BREG, AC1, AR, NR, LOOK = 128, 64, 32, 6, 4
    KS = E_('KS', 20)
    def rd(c, ks, reg):
        a(f'ds_read_b64_tr_b16 v[{reg}:{reg+1}], v{8+c} offset:{ks*2048}')
        a(f'ds_read_b64_tr_b16 v[{reg+2}:{reg+3}], v{8+c} offset:{ks*2048+512}')
    def store(c, reg):
        if E_('APL', 0):
            a('s_cmp_lg_u32 s60, 0')
            a(f's_cbranch_scc1 M_SP{c}')
            a(f'buffer_store_dwordx4 v[{reg}:{reg+3}], v3, s[20:23], s14 offen offset:{c*1024} sc0 sc1')
            a(f's_branch M_SQ{c}')
            a(f'M_SP{c}:')
            a(f'buffer_store_dwordx4 v[{reg}:{reg+3}], v3, s[20:23], s14 offen offset:{c*1024} {os.environ.get("APF", "")}')
            a(f'M_SQ{c}:')
        else:
            a(f'buffer_store_dwordx4 v[{reg}:{reg+3}], v3, s[20:23], s14 offen offset:{c*1024} {STA}')
    def epi(c):
        o = []
        for i in range(4): o += gelu_ops(AC1+16*c, AC1+16*c+8, 16 + 2*(i & 1), 24 + 4*(c & 1), i)
        o.append(('STORE', c))
        return o
    def emit(o):
        if isinstance(o, tuple): store(o[1], 24 + 4*(o[1] & 1))
        else: a(o)
    def f2_setup():
        a("""
s_bfe_u32 s7, s3, 0x10001
v_lshrrev_b32 v16, 5, v2
v_lshlrev_b32 v8, 10, v16
v_bfe_u32 v17, v2, 2, 2
v_lshl_add_u32 v8, v17, 7, v8
v_bfe_u32 v5, v2, 1, 1
v_lshl_add_u32 v8, v5, 3, v8
v_and_b32 v5, 1, v2
v_lshlrev_b32 v5, 1, v5
v_bfe_u32 v9, v2, 4, 1
v_add_u32 v5, v5, v9
v_and_b32 v17, 2, v17
v_lshl_add_u32 v5, v17, 1, v5
s_lshl_b32 s38, s6, 2
v_xor_b32 v5, s38, v5
v_lshl_add_u32 v8, v5, 4, v8
s_lshl_b32 s38, s8, 13
v_add_u32 v8, s38, v8
v_add_u32 v9, 0x10000, v8
v_add_u32 v13, 0x20000, v8
s_lshl_b32 s38, s7, 13
s_lshl_b32 s40, s8, 12
s_add_u32 s38, s38, s40
v_add_u32 v10, s38, v3
v_add_u32 v11, 0x10000, v10
v_add_u32 v0, 0x20000, v10
s_lshl_b32 s40, s4, 2
s_add_u32 s40, s40, s9
s_mul_i32 s11, s40, 0x38000
""")
        a(f's_add_u32 s11, s11, {WS_ACTF}')
        a("""
s_lshl_b32 s40, s40, 1
s_add_u32 s40, s40, s7
s_lshl_b32 s40, s40, 15
s_add_u32 s40, s40, s17
v_and_b32 v12, 31, v2
v_min_u32 v5, 27, v12
v_lshlrev_b32 v12, 10, v12
v_lshl_add_u32 v12, v16, 5, v12
v_add_u32 v12, s40, v12
v_lshl_add_u32 v5, v16, 5, v5
s_lshl_b32 s38, s9, 8
s_add_u32 s38, s38, 1024
v_lshl_add_u32 v5, v5, 2, s38
""")
    SPAN = E_('F1SPAN', 52)
    def tail(c):
        A3 = AC1 + 16*c
        out = 24 + 4*(c & 1)
        if E_('PK', 0):
            G_, U_, T_ = A3, A3 + 8, 16
            pr = lambda b, i: f'v[{b+2*i}:{b+2*i+1}]'
            for i in range(4): a(f'v_pk_mul_f32 {pr(T_,i)}, {pr(G_,i)}, {pr(G_,i)}')
            for i in range(4): a(f'v_pk_fma_f32 {pr(T_,i)}, {pr(T_,i)}, s[42:43], s[42:43] op_sel:[0,0,1] op_sel_hi:[1,0,1]')
            for i in range(4): a(f'v_pk_mul_f32 {pr(T_,i)}, {pr(T_,i)}, {pr(G_,i)}')
            for i in range(8): a(f'v_exp_f32 v{T_+i}, v{T_+i}')
            for i in range(4): a(f'v_pk_mul_f32 {pr(G_,i)}, {pr(G_,i)}, {pr(U_,i)}')
            for i in range(4): a(f'v_pk_add_f32 {pr(T_,i)}, {pr(T_,i)}, 1.0 op_sel_hi:[1,0]')
            for i in range(8): a(f'v_rcp_f32 v{T_+i}, v{T_+i}')
            for i in range(4): a(f'v_pk_mul_f32 {pr(G_,i)}, {pr(G_,i)}, {pr(T_,i)}')
            for i in range(4): a(f'v_cvt_pk_bf16_f32 v{out+i}, v{G_+2*i}, v{G_+2*i+1}')
        else:
            seqs = [[o for o in gelu_ops(A3, A3+8, 16 + 2*i, out, i) if o != 's_nop 0'] for i in range(4)]
            for k in range(0, len(seqs[0]), 2):
                for s_ in seqs:
                    for o in s_[k:k+2]: a(o)
        store(c, out)
    seq = [(c, ks) for ks in range(16) for c in range(4)] + [(c, ks) for c in range(4) for ks in range(16, 32)]
    def step(n, wv=''):
        c, ks = seq[n]
        if n + LOOK < len(seq): rd(*seq[n + LOOK], AR + 4*((n + LOOK) % NR))
        a(f's_waitcnt lgkmcnt({2*(min(len(seq)-1, n+LOOK) - n)}){wv}')
        cc = '0' if ks == 0 else f'v[{AC1+16*c}:{AC1+16*c+15}]'
        r = AR + 4*(n % NR)
        a(f'v_mfma_f32_32x32x16_bf16 v[{AC1+16*c}:{AC1+16*c+15}], v[{r}:{r+3}], v[{BREG+4*ks}:{BREG+4*ks+3}], {cc}')
        if 'f' in DIAG and n in (0, 32, 63, 96, 127): stamp(a, 1 + (0, 32, 63, 96, 127).index(n))
    def half1(young):
        vm = []
        def bld(ks):
            if ks & 3 == 0 and ks: a('s_add_u32 s11, s11, 4096')
            a(f'buffer_load_dwordx4 v[{BREG+4*ks}:{BREG+4*ks+3}], v3, s[20:23], s11 offen offset:{(ks&3)*1024} {LD}')
            vm.append(ks)
        if young:
            a('s_waitcnt lgkmcnt(0)')
            a('s_barrier')
            a('s_barrier')
            for ks in range(16): bld(ks)
        else:
            for ks in range(NL0): bld(ks)
            a('s_waitcnt lgkmcnt(0)')
            a('s_barrier')
        for n in range(LOOK): rd(*seq[n], AR + 4*(n % NR))
        for n in range(64):
            c, ks = seq[n]
            if not young and len(vm) < 16:
                bld(len(vm))
                if len(vm) == 16: a('s_barrier')
            if young and n >= 64 - 16*PY and (64 - n) % PY == 0: bld(len(vm))
            if not young and n >= LB0 and len(vm) < 32 and n % 4 == 2: bld(len(vm))
            step(n, f' vmcnt({len(vm) - vm.index(ks) - 1})' if c == 0 else '')
        while len(vm) < 32: bld(len(vm))
    NL0, PY, LB0 = E_('NL0', 10), E_('PY', 2), E_('LB0', 40)
    a('s_cmp_ge_u32 s3, 4')
    a('s_cbranch_scc1 M_F1Y')
    half1(False)
    a('s_branch M_F1J')
    a('M_F1Y:')
    half1(True)
    a('M_F1J:')
    a('s_barrier')
    if 'e' in DIAG: stamp(a, 3)
    wdq = [(s_, k) for s_ in range(6) for k in range(2)]
    nd = 0
    WDN = E_('WDN', 70)
    gops = []
    for n in range(64, 128):
        step(n, f' vmcnt({79 - n + nd})' if n < 80 else '')
        if wdq and n >= WDN and (n - WDN) % 3 == 0: wd_dma(*wdq.pop(0)); nd += 1
        GI = E_('GI', 0)
        if n == 95: nd95 = nd
        if n == E_('EFN', 109): flag_only(a, '2e', 6, 7, 's61', 1024, nd - nd95)
        if n == E_('EFN', 109) and E_('RT', 0):
            a('v_lshlrev_b32 v4, 7, v2')
            a('s_mov_b64 exec, 0xffff')
            a('buffer_load_dword v1, v4, s[20:23], s14 offen sc1')
            a('s_mov_b64 exec, -1')
        if GI == 0:
            if n % 16 == 15: tail(seq[n][0])
        else:
            if n % 16 == 2 and n > 80:
                c_ = seq[n][0] - 1
                A3 = AC1 + 16*c_; out = 24 + 4*(c_ & 1)
                sq = [[o for o in gelu_ops(A3, A3+8, 16 + 2*i, out, i) if o != 's_nop 0'] for i in range(4)]
                for k in range(0, len(sq[0]), 2):
                    for s2 in sq: gops.extend(s2[k:k+2])
                gops.append(('STORE', c_))
            for _ in range(E_('GPER', 5)):
                if gops: emit(gops.pop(0))
            if n == 127:
                while gops: emit(gops.pop(0))
                tail(3)
    assert not wdq
    stamp(a, 8) if 'l' not in DIAG and 'F' not in DIAG else None
    f2_setup()
    assert 'sc1' in STA
    a('s_waitcnt vmcnt(2)')
    a('s_branch M_F2')
    a('M_SPARE:')
    a('s_waitcnt vmcnt(0) lgkmcnt(0)')
    a('s_barrier')
    a('''
s_sub_u32 s7, s5, 28
s_lshl_b32 s7, s7, 3
s_add_u32 s7, s7, s3
s_lshr_b32 s36, s7, 2
s_lshl_b32 s36, s36, 16
s_and_b32 s37, s7, 3
s_lshl_b32 s37, s37, 13
s_add_u32 s36, s36, s37
s_add_u32 s36, s36, 0x8000
v_lshlrev_b32 v4, 7, v2
s_lshr_b32 s37, s7, 1
s_lshl_b32 s37, s37, 16
s_and_b32 s7, s7, 1
s_lshl_b32 s7, s7, 13
s_add_u32 s37, s37, s7
''')
    SPO = os.environ.get('SPO', '231')
    def t23():
        for i in range(4):
            a(f'buffer_load_dword v{16+i}, v4, s[72:75], s36 offen')
            if i < 3: a('s_add_u32 s36, s36, 0x80000')
    def t1(c):
        a(f's_add_u32 s7, s37, {c*16384}')
        for i in range(2):
            a(f'buffer_load_dword v{20+2*c+i}, v4, s[72:75], s7 offen')
            if i < 1: a('s_add_u32 s7, s7, 0x100000')
    for ch in SPO:
        if ch == '2': t23()
        if ch == '1': t1(1)
        if ch == '0': t1(0)
    for s_ in range(6):
        for k in range(2): wd_dma(s_, k)
    f2_setup()
    a('s_waitcnt vmcnt(0)')

    a('M_F2:')
    AC2, AF, BF, X2 = 16, 32, 64, 80
    a('s_cmp_lg_u32 s3, 0')
    a('s_cbranch_scc1 M_NP2')
    poll(a, 2, 5, 16, 's61', 2)
    a('M_NP2:')
    a('s_barrier')
    stamp(a, 9) if 'l' not in DIAG and 'F' not in DIAG else None
    vm = []
    def issue_a(s_):
        ks_of(s_, 39, 19)
        a('s_lshl_b32 s19, s19, 10')
        a('s_add_u32 s19, s19, s11')
        for k in range(2):
            a(f's_add_u32 s16, s63, {aloc[s_] + k*8192}')
            a('s_mov_b32 m0, s16')
            if k: a('s_add_u32 s19, s19, 0x1c000')
            a(f'buffer_load_dwordx4 v3, s[20:23], s19 offen {LD} lds')
        vm.extend([s_]*2)
        if s_ < 13: nxt_stage(39)
    AL = E_('AL', -1)
    items = sorted([('a', i) for i in range(4, 14)] + [('w', i) for i in range(6, 14)], key=lambda x: (x[1] - (AL if x[0] == 'a' else 0), x[0]))
    for s_ in range(4): issue_a(s_)
    a(f'global_load_dwordx4 v[{X2}:{X2+3}], v12, s[56:57] {LD}')
    vm.append(3)
    flag_only(a, 2, 6, 7, 's61', 0, len(vm))
    vm.append(99)
    if E_('RT', 0) == 1:
        a('v_lshlrev_b32 v4, 7, v2')
        a('s_mov_b64 exec, 0xffff')
        a('buffer_load_dword v1, v4, s[20:23], s14 offen offset:2048 sc1')
        a('s_mov_b64 exec, -1')
        vm.append(99)
    FCK = items.index(('a', 7))//2
    FR = lambda s_: 96 + 32*(s_ & 1)
    def reads(s_):
        wo_, ao = wloc[s_], aloc[s_]
        va = (8, 9, 13)[wo_ >> 16]; vb = (10, 11, 0)[ao >> 16]
        A_, B_ = FR(s_), FR(s_) + 16
        o = []
        for j in range(4):
            o.append(f'ds_read_b128 v[{B_+4*j}:{B_+4*j+3}], v{vb} offset:{(ao & 0xffff) + j*1024}')
            o.append(f'ds_read_b64_tr_b16 v[{A_+4*j}:{A_+4*j+1}], v{va} offset:{(wo_ & 0xffff) + j*2048}')
            o.append(f'ds_read_b64_tr_b16 v[{A_+4*j+2}:{A_+4*j+3}], v{va} offset:{(wo_ & 0xffff) + j*2048 + 512}')
        return o
    vw = lambda s_: len(vm) - 1 - max(i for i, x in enumerate(vm) if 0 <= x <= s_)
    a(f's_waitcnt vmcnt({vw(0)})')
    a('s_barrier')
    if 'e' in DIAG: stamp(a, 4)
    for o in reads(0): a(o)
    if FCK - E_('FLD', 2) < 0:
        a('buffer_load_dword v6, v5, s[20:23], s61 offen sc1'); vm.append(-1)
    for s_ in range(14):
        if s_ == FCK:
            a('s_cmp_lg_u32 s3, 0')
            a('s_cbranch_scc1 M_NP3')
            a(f's_waitcnt vmcnt({len(vm) - 1 - vm.index(-1)})')
            a('v_cmp_eq_u32 vcc, s59, v6')
            a('s_cmp_eq_u64 vcc, -1')
            a('s_cbranch_scc1 M_G3')
            poll(a, 3, 5, 6, 's61', 3)
            a('M_NP3:')
        if s_ < 13:
            a(f's_waitcnt vmcnt({vw(s_ + 1)}) lgkmcnt(0)')
            a('s_barrier')
        else: a('s_waitcnt lgkmcnt(0)')
        if 's' in DIAG and s_ in (0, 3, 6, 9, 12): stamp(a, 1 + s_//3)
        rd_ = reads(s_ + 1) if s_ < 13 else []
        A_, B_ = FR(s_), FR(s_) + 16
        for j in range(4):
            cc = '0' if (s_ == 0 and j == 0) else f'v[{AC2}:{AC2+15}]'
            a(f'v_mfma_f32_32x32x16_bf16 v[{AC2}:{AC2+15}], v[{A_+4*j}:{A_+4*j+3}], v[{B_+4*j}:{B_+4*j+3}], {cc}')
            for o in rd_[3*j:3*j+3]: a(o)
        if s_ == FCK - E_('FLD', 2):
            a('buffer_load_dword v6, v5, s[20:23], s61 offen sc1'); vm.append(-1)
        for slot in (aloc[s_], wloc[s_]):
            if not items: break
            kind_, st_ = items.pop(0)
            if kind_ == 'a':
                assert st_ < 7 or s_ >= FCK
                aloc[st_] = slot; issue_a(st_)
            else:
                wloc[st_] = slot
                for k in range(2): wd_dma(st_, k)
                vm.extend([st_]*2)
    stamp(a, 10) if 'l' not in DIAG and 'F' not in DIAG else None
    xs = aloc[11]
    assert xs not in (aloc[12], aloc[13], wloc[12], wloc[13])
    a('s_lshl_b32 s38, s3, 11')
    a(f's_add_u32 s40, s38, {xs}')
    a('v_add_u32 v4, s40, v3')
    a('s_xor_b32 s38, s38, 0x2000')
    a(f's_add_u32 s40, s38, {xs}')
    a('v_add_u32 v15, s40, v3')
    unpack(a, 88, X2, 4)
    a('s_cmp_ge_u32 s3, 4')
    a('s_cbranch_scc1 F2_HI')
    a(f'ds_write_b128 v4, v[{AC2+8}:{AC2+11}]')
    a(f'ds_write_b128 v4, v[{AC2+12}:{AC2+15}] offset:1024')
    a('s_branch F2_X')
    a('F2_HI:')
    a('s_nop 2')
    a(f'ds_write_b128 v4, v[{AC2}:{AC2+3}]')
    a(f'ds_write_b128 v4, v[{AC2+4}:{AC2+7}] offset:1024')
    for i in range(8): a(f'v_mov_b32 v{AC2+i}, v{AC2+8+i}')
    a('F2_X:')
    a('s_waitcnt lgkmcnt(0)')
    a('s_barrier')
    a(f'ds_read_b128 v[{AF}:{AF+3}], v15')
    a(f'ds_read_b128 v[{AF+4}:{AF+7}], v15 offset:1024')
    a('s_waitcnt lgkmcnt(0)')
    for i in range(8): a(f'v_add_f32 v{AC2+i}, v{AC2+i}, v{AF+i}')
    for i in range(8): a(f'v_fmac_f32 v{88+i}, v{AC2+i}, v{GB+i}')
    for i in range(4): a(f'v_cvt_pk_bf16_f32 v{X2+i}, v{88+2*i}, v{89+2*i}')
    a(f'global_store_dwordx4 v12, v[{X2}:{X2+3}], s[56:57] {STO}')
    for off in [int(x, 0) for x in os.environ.get('XLOAD', '').split(',') if x]:
        a('s_lshl_b32 s12, s2, 7')
        a(f's_add_u32 s12, s12, {off}')
        a('v_mov_b32 v0, s12')
        a('global_load_dword v1, v0, s[30:31]')
        a('s_waitcnt vmcnt(0)')
    prof_end(a, 0, 3, 30)
    a('M_END2:')
    a('s_endpgm')

    a('M_SLOW:')
    a('s_waitcnt vmcnt(0)')
    a('v_mov_b32 v12, 0xff800000')
    a(f's_mov_b32 s12, {WS_KVF}')
    a('M_SL1:')
    a(f'buffer_load_dwordx4 v[{KK}:{KK+3}], v3, s[20:23], s12 offen sc1')
    a('s_waitcnt vmcnt(0)')
    a(f'v_mfma_f32_32x32x16_bf16 v[{S0}:{S0+15}], v[{KK}:{KK+3}], v[{Q}:{Q+3}], 0')
    for i in range(0, 16, 2): a(f'v_max3_f32 v12, v12, v{S0+i}, v{S0+i+1}')
    a('s_add_u32 s12, s12, 2048')
    a(f's_cmp_lt_u32 s12, {WS_KVF + 131072}')
    a('s_cbranch_scc1 M_SL1')
    a('''
v_mov_b32 v13, v12
v_permlane32_swap_b32 v12, v13
v_max_f32 v12, v12, v13
''')
    for i in range(16): a(f'v_sub_f32 v{C+i}, 0, v12')
    for i in range(16): a(f'v_mov_b32 v{O+i}, 0')
    for i in range(8): a(f'v_mov_b32 v{VA+i}, 0x3f803f80')
    a('''
v_lshl_add_u32 v13, v5, 4, v4
v_lshlrev_b32 v13, 4, v13
''')
    a(f's_mov_b32 s12, {WS_KVF}')
    a('M_SL2:')
    a(f'buffer_load_dwordx4 v[{KK}:{KK+3}], v3, s[20:23], s12 offen sc1')
    a('s_mov_b64 exec, s[32:33]')
    a(f'buffer_load_dwordx4 v[{VA}:{VA+3}], v13, s[20:23], s12 offen offset:1024 sc1')
    a(f'buffer_load_dwordx4 v[{VB}:{VB+3}], v13, s[20:23], s12 offen offset:1536 sc1')
    a('s_mov_b64 exec, -1')
    a('s_waitcnt vmcnt(0)')
    a(f'v_mfma_f32_32x32x16_bf16 v[{S0}:{S0+15}], v[{KK}:{KK+3}], v[{Q}:{Q+3}], v[{C}:{C+15}]')
    for i in range(16): a(f'v_exp_f32 v{S0+i}, v{S0+i}')
    for i in range(8): a(f'v_cvt_pk_bf16_f32 v{S1+i}, v{S0+2*i}, v{S0+2*i+1}')
    a(f'v_mfma_f32_32x32x16_bf16 v[{O}:{O+15}], v[{VA}:{VA+3}], v[{S1}:{S1+3}], v[{O}:{O+15}]')
    a(f'v_mfma_f32_32x32x16_bf16 v[{O}:{O+15}], v[{VB}:{VB+3}], v[{S1+4}:{S1+7}], v[{O}:{O+15}]')
    a('s_add_u32 s12, s12, 2048')
    a(f's_cmp_lt_u32 s12, {WS_KVF + 131072}')
    a('s_cbranch_scc1 M_SL2')
    a('s_nop 15')
    if EL: el(0, 8)()
    a('s_branch M_FIN')
    a('CODE_END:')
    a('s_endpgm')
    return K
```
